```python
import torch

def _softmax(x, axis=-1):
    return torch.softmax(x, dim=axis)
def _gelu(x):
    return torch.nn.functional.gelu(x, approximate="tanh")
def _silu(x):
    return torch.nn.functional.silu(x)
def _sigmoid(x):
    return torch.sigmoid(x)
def _layernorm(x, axis=-1, eps=1e-5):
    m = x.mean(dim=axis, keepdim=True)
    v = x.var(dim=axis, keepdim=True, unbiased=False)
    return (x - m) / torch.sqrt(v + eps)
def _scatter_add(tgt, idx, src, axis=0):
    return tgt.clone().index_add_(axis, idx, src)
def _segment_sum(src, seg, n):
    out = torch.zeros((n,) + src.shape[1:], dtype=src.dtype)
    return out.index_add_(0, seg, src)
def _pad(x, pw):
    flat = tuple(v for pair in reversed(pw) for v in pair)
    return torch.nn.functional.pad(x, flat)

kernel_name = 'parallel_sum__sliding_local_dilated__glu_gated_glu__prompt'

def setup_inputs():

    _w = (lambda a: (lambda t: t.to(torch.bfloat16) if t.is_floating_point() else t)(torch.as_tensor(a)))
    def _A_setup():
        B, S, D = 1, 2048, 640
        return {
            "x": _w((lambda *s: torch.randn(*s, dtype=torch.bfloat16) * 0.05)(B, S, D)),
            "wqkv": _w((lambda *s: torch.randn(*s, dtype=torch.bfloat16) * 0.05)(D, 3 * D)),
            "wo": _w((lambda *s: torch.randn(*s, dtype=torch.bfloat16) * 0.05)(D, D)),
        }
    _A_in = _A_setup()

    def _B_setup():
        B, S, D, F = 1, 2048, 640, 1536
        return {
            "x": _w((lambda *s: torch.randn(*s, dtype=torch.bfloat16) * 0.05)(B, S, D)),
            "w_gate": _w((lambda *s: torch.randn(*s, dtype=torch.bfloat16) * 0.05)(D, F)),
            "w_up": _w((lambda *s: torch.randn(*s, dtype=torch.bfloat16) * 0.05)(D, F)),
            "w_down": _w((lambda *s: torch.randn(*s, dtype=torch.bfloat16) * 0.05)(F, D)),
        }
    _B_in = _B_setup()

    return {
        "A_x": _A_in["x"],
        "A_wqkv": _A_in["wqkv"],
        "A_wo": _A_in["wo"],
        "B_x": _B_in["x"],
        "B_w_gate": _B_in["w_gate"],
        "B_w_up": _B_in["w_up"],
        "B_w_down": _B_in["w_down"],
    }

def reference(A_x, A_wqkv, A_wo, B_x, B_w_gate, B_w_up, B_w_down):
    def _A_ref(x, wqkv, wo):
        B, S, D = x.shape
        H = 32; Dh = D // H
        W, dil = 8, 2
        qkv = (lambda x, *d: x.permute(*d))((x @ wqkv).reshape(B, S, 3, H, Dh), 2, 0, 3, 1, 4)
        q, k, v = qkv[0], qkv[1], qkv[2]
        scale = Dh ** -0.5
        pos = torch.arange(S)
        off = torch.arange(W) * dil
        idx = pos[:, None] - off[None, :]
        mask = idx >= 0
        idx_c = torch.where(mask, idx, 0).reshape(-1)
        kg = k[:, :, idx_c, :].reshape(B, H, S, W, Dh)
        vg = v[:, :, idx_c, :].reshape(B, H, S, W, Dh)
        logits = torch.einsum("bhsd,bhswd->bhsw", q, kg) * scale
        logits = torch.where(mask[None, None, :, :], logits, -1e9)
        attn = _softmax(logits, axis=-1)
        o = torch.einsum("bhsw,bhswd->bhsd", attn, vg)
        return (lambda x, *d: x.permute(*d))(o, 0, 2, 1, 3).reshape(B, S, D) @ wo

    def _B_ref(x, w_gate, w_up, w_down):
        g = torch.einsum("bsd,df->bsf", x, w_gate)
        u = torch.einsum("bsd,df->bsf", x, w_up)
        h = _sigmoid(g) * u
        return torch.einsum("bsf,fd->bsd", h, w_down)

    x = A_x
    xn = _layernorm(x, axis=-1)
    return x + _A_ref(xn, A_wqkv, A_wo) + _B_ref(xn, B_w_gate, B_w_up, B_w_down)
```

```python
import sys

NAME = "parallel_sum__sliding_local_dilated__glu_gated_glu__prompt"
A2_OFF = 4 << 20
WS_BYTES = 16 << 20
XN_MT = 20 * 1024
A2_MT = 68 * 1024


class Asm:
    def __init__(self):
        self.lines = []

    def __call__(self, s):
        for ln in s.strip("\n").split("\n"):
            self.lines.append("    " + ln.strip())

    def label(self, l):
        self.lines.append(l + ":")

    def raw(self, s):
        self.lines.append(s)

    def text(self):
        return "\n".join(self.lines) + "\n"


def srd(a, d, base, nbytes):
    a(f"s_mov_b32 s{d}, s{base}")
    a(f"s_mov_b32 s{d+1}, s{base+1}")
    a(f"s_mov_b32 s{d+2}, {nbytes}")
    a(f"s_mov_b32 s{d+3}, 0x00020000")


def vr(b, n):
    return f"v[{b}:{b+n-1}]"


def unswap23(a, dst, src, t0, t1):
    a(f"v_lshrrev_b32 v{t0}, 1, v{src}")
    a(f"v_and_b32 v{t0}, 4, v{t0}")
    a(f"v_lshlrev_b32 v{t1}, 1, v{src}")
    a(f"v_and_b32 v{t1}, 8, v{t1}")
    a(f"v_and_b32 v{dst}, 0x13, v{src}")
    a(f"v_or3_b32 v{dst}, v{dst}, v{t0}, v{t1}")


def divsmall(a, q, p, d, st):
    m = (65536 + d - 1) // d
    for x in range(1024):
        assert (x * m) >> 16 == x // d, (d, x)
    a(f"v_mul_u32_u24 v{q}, {m}, v{p}")
    a(f"v_lshrrev_b32 v{q}, 16, v{q}")


def gen_ln(a):
    a.raw(".p2align 8")
    a.label("ln_kernel")
    a("""
    s_cmp_ge_u32 s2, 128
    s_cbranch_scc1 L_ln_done
    s_load_dwordx2 s[4:5], s[0:1], 0
    s_load_dwordx2 s[6:7], s[0:1], 72
    v_and_b32 v1, 15, v0
    v_lshrrev_b32 v2, 4, v0
    s_lshl_b32 s3, s2, 4
    v_add_u32 v3, s3, v2
    v_mul_u32_u24 v3, 1280, v3
    v_lshl_add_u32 v3, v1, 4, v3
    s_waitcnt lgkmcnt(0)
    """)
    srd(a, 8, 4, 2048 * 1280)
    srd(a, 12, 6, WS_BYTES)
    for i in range(5):
        a(f"buffer_load_dwordx4 {vr(8+4*i,4)}, v3, s[8:11], 0 offen offset:{256*i}")
    a("""
    v_lshrrev_b32 v4, 2, v1
    v_lshlrev_b32 v4, 6, v4
    v_and_b32 v5, 3, v1
    v_lshl_add_u32 v4, v5, 4, v4
    v_add_u32 v4, v4, v2
    v_lshlrev_b32 v4, 4, v4
    s_mul_i32 s3, s2, 20480
    v_add_u32 v4, s3, v4
    s_mov_b32 s16, 0xffff0000
    s_waitcnt vmcnt(0)
    """)
    for d in range(20):
        a(f"v_lshlrev_b32 v{32+2*d}, 16, v{8+d}")
        a(f"v_and_b32 v{33+2*d}, s16, v{8+d}")
    a("v_add_f32 v5, v32, v33")
    a("v_add_f32 v6, v34, v35")
    for d in range(2, 20):
        a(f"v_add_f32 v{5+(d&1)}, v{5+(d&1)}, v{32+2*d}")
        a(f"v_add_f32 v{5+(d&1)}, v{5+(d&1)}, v{33+2*d}")
    a("v_add_f32 v5, v5, v6")

    def dppred(r):
        for sh in (8, 4, 2, 1):
            a("s_nop 1")
            a(f"v_add_f32_dpp v{r}, v{r}, v{r} row_ror:{sh} row_mask:0xf bank_mask:0xf")
    dppred(5)
    a("s_mov_b32 s17, 0x3acccccd")
    a("v_mul_f32 v5, s17, v5")
    a("v_mov_b32 v6, 0")
    a("v_mov_b32 v7, 0")
    for e in range(40):
        a(f"v_sub_f32 v72, v{32+e}, v5")
        a(f"v_fmac_f32 v{6+(e&1)}, v72, v72")
    a("v_add_f32 v6, v6, v7")
    dppred(6)
    a("""
    v_mul_f32 v6, s17, v6
    v_cvt_pk_bf16_f32 v7, v5, v6
    v_lshlrev_b32 v5, 16, v7
    v_and_b32 v6, s16, v7
    v_add_f32 v6, 0x3727c5ac, v6
    v_cvt_pk_bf16_f32 v7, v6, v6
    v_and_b32 v6, s16, v7
    v_sqrt_f32 v6, v6
    s_nop 0
    v_cvt_pk_bf16_f32 v7, v6, v6
    v_and_b32 v6, s16, v7
    v_rcp_f32 v7, v6
    s_nop 0
    """)
    for d in range(20):
        lo, hi = 32 + 2 * d, 33 + 2 * d
        a(f"v_sub_f32 v{lo}, v{lo}, v5")
        a(f"v_sub_f32 v{hi}, v{hi}, v5")
        a(f"v_cvt_pk_bf16_f32 v72, v{lo}, v{hi}")
        a(f"v_lshlrev_b32 v{lo}, 16, v72")
        a(f"v_and_b32 v{hi}, s16, v72")
        for r in (lo, hi):
            a(f"v_mul_f32 v72, v{r}, v7")
            a(f"v_fma_f32 v73, -v72, v6, v{r}")
            a(f"v_fma_f32 v{r}, v73, v7, v72")
        a(f"v_cvt_pk_bf16_f32 v{8+d}, v{lo}, v{hi}")
    for i in range(5):
        if i:
            a(f"s_mov_b32 s18, {4096*i}")
            a(f"buffer_store_dwordx4 {vr(8+4*i,4)}, v4, s[12:15], s18 offen")
        else:
            a(f"buffer_store_dwordx4 {vr(8+4*i,4)}, v4, s[12:15], 0 offen")
    a.label("L_ln_done")
    a("s_endpgm")


SB = 32768


def k1_mainloop(a, NM, NN, dma_fn, xaddr, waddr_fn, ndma, ACC, FR):
    FS = 4 * NM + 4 * NN
    NK = 20

    def xfrag(s, mi):
        return FR + s * FS + 4 * mi

    def wfrag(s, j):
        return FR + s * FS + 4 * NM + 4 * j

    def reads(ks):
        s = ks & 1
        slot = ks & 3
        out = []
        for mi in range(NM):
            out.append(f"ds_read_b128 {vr(xfrag(s,mi),4)}, v{xaddr[slot>>1]} offset:{(slot&1)*SB + mi*1024}")
        for j in range(NN):
            v, off, dt = waddr_fn(j, slot)
            out.append(f"ds_read_b64_tr_b16 {vr(wfrag(s,j),2)}, v{v} offset:{off}")
            out.append(f"ds_read_b64_tr_b16 {vr(wfrag(s,j)+2,2)}, v{v} offset:{off+dt}")
        return out

    def mfmas(ks):
        s = ks & 1
        out = []
        for j in range(NN):
            for mi in range(NM):
                acc = ACC + 4 * (mi * NN + j)
                c = "0" if ks == 0 else vr(acc, 4)
                out.append(f"v_mfma_f32_16x16x32_bf16 {vr(acc,4)}, {vr(wfrag(s,j),4)}, {vr(xfrag(s,mi),4)}, {c}")
        return out

    for st in range(4):
        dma_fn(st)
    a(f"s_waitcnt vmcnt({3*ndma})")
    a("s_barrier")
    for r in reads(0):
        a(r)
    for ks in range(NK):
        if ks + 1 < NK:
            inflight = min(NK - 1, ks + 3) - (ks + 1)
            a(f"s_waitcnt vmcnt({inflight*ndma}) lgkmcnt(0)")
            a("s_barrier")
            if ks + 4 < NK:
                dma_fn(ks + 4)
            rd = reads(ks + 1)
        else:
            a("s_waitcnt lgkmcnt(0)")
            rd = []
        mf = mfmas(ks)
        n = 0
        for i, m in enumerate(mf):
            a(m)
            while n < len(rd) and n < (i + 1) * len(rd) // max(1, len(mf) - 4):
                a(rd[n])
                n += 1
        while n < len(rd):
            a(rd[n])
            n += 1


def gen_k1(a):
    a.raw(".p2align 8")
    a.label("g1_kernel")
    a("""
    s_cmp_ge_u32 s2, 256
    s_cbranch_scc1 L_g1_done
    s_load_dwordx2 s[4:5], s[0:1], 8
    s_load_dwordx4 s[8:11], s[0:1], 32
    s_load_dwordx2 s[6:7], s[0:1], 72
    v_lshrrev_b32 v1, 6, v0
    v_and_b32 v0, 63, v0
    s_nop 0
    v_readfirstlane_b32 s32, v1
    s_and_b32 s34, s2, 7
    s_lshr_b32 s3, s2, 3
    s_lshr_b32 s33, s3, 1
    s_and_b32 s3, s3, 1
    s_lshr_b32 s36, s32, 2
    s_and_b32 s37, s32, 3
    v_lshrrev_b32 v2, 4, v0
    v_bfe_u32 v3, v0, 2, 2
    v_and_b32 v4, 3, v0
    v_lshlrev_b32 v5, 4, v0
    s_waitcnt lgkmcnt(0)
    """)
    srd(a, 12, 6, WS_BYTES)
    a("s_cmp_eq_u32 s3, 0")
    a("s_cbranch_scc1 L_g1_attn")

    srd(a, 16, 8, 640 * 3072)
    srd(a, 20, 10, 640 * 3072)
    a("""
    s_cmp_lt_u32 s32, 4
    s_cselect_b32 s24, s8, s10
    s_cselect_b32 s25, s9, s11
    s_mov_b32 s26, 1966080
    s_mov_b32 s27, 0x00020000
    s_mov_b32 s43, 20480
    s_cselect_b32 s43, 8192, s43
    """)
    a("""
    s_lshl_b32 s40, s32, 10
    s_add_u32 s41, s40, 8192
    s_add_u32 s42, s40, 20480
    s_lshl_b32 s44, s37, 10
    s_add_u32 s43, s43, s44
    s_add_u32 s43, s43, 8192
    """)
    a("""
    s_lshl_b32 s44, s33, 3
    s_add_u32 s44, s44, s32
    s_mul_i32 s44, s44, 20480
    v_add_u32 v10, s44, v5
    s_mul_i32 s45, s34, 384
    """)

    def gate_off(dst, sInstr):
        a(f"s_lshl_b32 s44, s{sInstr}, 6")
        a(f"v_add_u32 v20, s44, v0")
        divsmall(a, 21, 20, 48, 44)
        a("v_mul_u32_u24 v22, 48, v21")
        a("v_sub_u32 v22, v20, v22")
        a("v_and_b32 v23, 7, v21")
        a("v_lshlrev_b32 v23, 1, v23")
        a("v_xor_b32 v22, v22, v23")
        a("v_cmp_le_u32 vcc, 24, v22")
        a("s_nop 1")
        a("v_cndmask_b32 v23, 0, 1, vcc")
        a("v_mul_u32_u24 v24, 24, v23")
        a("v_sub_u32 v22, v22, v24")
        a("v_lshl_add_u32 v21, v23, 4, v21")
        unswap23(a, 24, 21, 25, 26)
        a("v_mul_u32_u24 v24, 3072, v24")
        a("v_lshl_add_u32 v24, v22, 4, v24")
        a(f"v_add_u32 v{dst}, s45, v24")
    gate_off(11, 32)
    a("s_add_u32 s46, s37, 8")
    gate_off(12, 46)
    a("""
    s_lshl_b32 s44, s36, 12
    v_add_u32 v13, s44, v5
    v_add_u32 v14, 0x10000, v13
    """)
    a("""
    v_and_b32 v20, 1, v2
    v_lshl_add_u32 v20, v20, 2, v3
    v_lshrrev_b32 v21, 1, v2
    v_mul_u32_u24 v21, 12, v21
    s_mul_i32 s44, s37, 3
    v_add_u32 v21, s44, v21
    v_mul_u32_u24 v22, 768, v20
    v_lshl_add_u32 v22, v4, 3, v22
    v_add_u32 v22, 8192, v22
    """)
    for i in range(3):
        a(f"v_add_u32 v23, {i}, v21")
        a("v_xor_b32 v23, v23, v20")
        a(f"v_lshl_add_u32 v{15+i}, v23, 5, v22")
    for i, d in enumerate((18, 19, 27)):
        a(f"v_add_u32 v{d}, 0x10000, v{15+i}")
    a("s_mov_b32 s47, 0")
    a("s_mov_b32 s48, 0")

    def dma_g(st):
        sb = (st & 3) * SB
        a(f"s_add_u32 m0, s40, {sb}")
        a("s_nop 0")
        a("buffer_load_dwordx4 v10, s[12:15], s47 offen lds")
        a(f"s_add_u32 m0, s41, {sb}")
        a("s_nop 0")
        a("buffer_load_dwordx4 v11, s[16:19], s48 offen lds")
        a(f"s_add_u32 m0, s42, {sb}")
        a("s_nop 0")
        a("buffer_load_dwordx4 v11, s[20:23], s48 offen lds")
        a(f"s_add_u32 m0, s43, {sb}")
        a("s_nop 0")
        a("buffer_load_dwordx4 v12, s[24:27], s48 offen lds")
        a("s_add_u32 s47, s47, 1024")
        a("s_add_u32 s48, s48, 98304")

    def waddr_g(j, slot):
        i = j % 3
        v = (15 + i) if slot < 2 else (18, 19, 27)[i]
        off = (slot & 1) * SB + (12288 if j >= 3 else 0)
        return v, off, 6144

    ACC = 32
    FR = 128
    k1_mainloop(a, 4, 6, dma_g, (13, 14), waddr_g, 4, ACC, FR)
    a("s_nop 7")
    a("s_nop 7")
    a("s_mov_b32 s16, 0xffff0000")
    a("s_mov_b32 s17, 0xbfb8aa3b")
    a("""
    v_and_b32 v20, 15, v0
    v_lshrrev_b32 v21, 1, v2
    v_lshl_add_u32 v20, v21, 4, v20
    v_lshlrev_b32 v20, 4, v20
    v_and_b32 v21, 1, v2
    v_lshl_add_u32 v20, v21, 3, v20
    s_lshl_b32 s44, s33, 3
    s_lshl_b32 s45, s36, 2
    s_add_u32 s44, s44, s45
    s_mul_i32 s44, s44, 69632
    s_add_u32 s44, s44, 4214784
    v_add_u32 v20, s44, v20
    s_mul_i32 s45, s34, 12
    s_mul_i32 s46, s37, 3
    s_add_u32 s45, s45, s46
    """)
    assert A2_OFF + 20 * 1024 == 4214784
    for i in range(3):
        a(f"s_add_u32 s46, s45, {i}")
        a("s_lshl_b32 s46, s46, 9")
        for mi in range(4):
            g = ACC + 4 * (mi * 6 + i)
            u = ACC + 4 * (mi * 6 + 3 + i)
            for p in range(2):
                g0, g1, u0, u1 = g + 2 * p, g + 2 * p + 1, u + 2 * p, u + 2 * p + 1
                a(f"v_cvt_pk_bf16_f32 v22, v{g0}, v{g1}")
                a(f"v_cvt_pk_bf16_f32 v23, v{u0}, v{u1}")
                a(f"v_lshlrev_b32 v{g0}, 16, v22")
                a(f"v_and_b32 v{g1}, s16, v22")
                a(f"v_mul_f32 v{g0}, s17, v{g0}")
                a(f"v_mul_f32 v{g1}, s17, v{g1}")
                a(f"v_exp_f32 v{g0}, v{g0}")
                a(f"v_exp_f32 v{g1}, v{g1}")
                a(f"v_lshlrev_b32 v{u0}, 16, v23")
                a(f"v_and_b32 v{u1}, s16, v23")
                a(f"v_add_f32 v{g0}, 1.0, v{g0}")
                a(f"v_add_f32 v{g1}, 1.0, v{g1}")
                a(f"v_rcp_f32 v{g0}, v{g0}")
                a(f"v_rcp_f32 v{g1}, v{g1}")
                a("s_nop 0")
                a(f"v_cvt_pk_bf16_f32 v22, v{g0}, v{g1}")
                a(f"v_lshlrev_b32 v{g0}, 16, v22")
                a(f"v_and_b32 v{g1}, s16, v22")
                a(f"v_mul_f32 v{g0}, v{g0}, v{u0}")
                a(f"v_mul_f32 v{g1}, v{g1}, v{u1}")
                a(f"v_cvt_pk_bf16_f32 v{24+p}, v{g0}, v{g1}")
            if mi == 0:
                a("v_mov_b32 v21, v20")
            else:
                a(f"v_add_u32 v21, {mi*A2_MT}, v20")
            a("buffer_store_dwordx2 v[24:25], v21, s[12:15], s46 offen")
            a("s_nop 0")
    a("s_endpgm")

    a.label("L_g1_attn")
    srd(a, 16, 4, 640 * 3840)
    a("""
    s_cmp_lt_u32 s32, 7
    s_cselect_b32 s24, s4, s6
    s_cselect_b32 s25, s5, s7
    s_mov_b32 s26, 16777216
    s_cselect_b32 s26, 2457600, s26
    s_mov_b32 s27, 0x00020000
    s_mov_b32 s49, 1024
    s_cselect_b32 s49, 122880, s49
    """)
    a("""
    s_lshl_b32 s42, s32, 10
    s_add_u32 s40, s42, 9216
    s_add_u32 s41, s42, 17408
    s_cmp_lt_u32 s32, 7
    s_cselect_b32 s41, s41, 8192
    s_mul_i32 s45, s34, 160
    """)

    def qkv_off(dst, sInstr):
        a(f"s_lshl_b32 s44, s{sInstr}, 6")
        a(f"v_add_u32 v20, s44, v0")
        divsmall(a, 21, 20, 30, 44)
        a("v_mul_u32_u24 v22, 30, v21")
        a("v_sub_u32 v22, v20, v22")
        divsmall(a, 23, 22, 10, 44)
        a("v_mul_u32_u24 v24, 10, v23")
        a("v_sub_u32 v22, v22, v24")
        a("v_and_b32 v21, 31, v21")
        unswap23(a, 24, 21, 25, 26)
        a("v_mul_u32_u24 v24, 3840, v24")
        a("v_mul_u32_u24 v23, 1280, v23")
        a("v_add_u32 v24, v24, v23")
        a("v_lshl_add_u32 v24, v22, 4, v24")
        a(f"v_add_u32 v{dst}, s45, v24")

    def afrag_off(dst, sF):
        a("s_lshl_b32 s44, s33, 3")
        a(f"s_add_u32 s44, s44, s{sF}")
        a("s_max_u32 s44, s44, 1")
        a("s_sub_u32 s44, s44, 1")
        a("s_mul_i32 s44, s44, 20480")
        a(f"v_add_u32 v{dst}, s44, v5")
    qkv_off(11, 32)
    a("s_add_u32 s46, s32, 8")
    qkv_off(12, 46)
    afrag_off(10, 32)
    a("s_cmp_lt_u32 s32, 7")
    a("s_cbranch_scc1 L_g1_a_s1")
    a("s_mov_b32 s46, 8")
    afrag_off(12, 46)
    a.label("L_g1_a_s1")
    a("""
    s_lshl_b32 s44, s36, 12
    v_add_u32 v13, s44, v5
    v_add_u32 v14, 0x10000, v13
    """)
    a("""
    v_and_b32 v20, 1, v2
    v_lshl_add_u32 v20, v20, 2, v3
    v_lshrrev_b32 v21, 1, v2
    v_lshl_add_u32 v20, v21, 4, v20
    v_mul_u32_u24 v20, 480, v20
    v_lshl_add_u32 v20, v4, 3, v20
    s_lshl_b32 s44, s37, 7
    s_add_u32 s44, s44, 9216
    v_add_u32 v15, s44, v20
    v_add_u32 v18, 0x10000, v15
    s_mov_b32 s47, 0
    s_mov_b32 s48, 0
    s_mov_b32 s50, 0
    """)

    def dma_a(st):
        sb = (st & 3) * SB
        a(f"s_add_u32 m0, s40, {sb}")
        a("s_nop 0")
        a("buffer_load_dwordx4 v11, s[16:19], s48 offen lds")
        a(f"s_add_u32 m0, s41, {sb}")
        a("s_nop 0")
        a("buffer_load_dwordx4 v12, s[24:27], s50 offen lds")
        a(f"s_add_u32 m0, s42, {sb}")
        a("s_nop 0")
        a("buffer_load_dwordx4 v10, s[12:15], s47 offen lds")
        a("s_add_u32 s47, s47, 1024")
        a("s_add_u32 s48, s48, 122880")
        a("s_add_u32 s50, s50, s49")

    def waddr_a(j, slot):
        v = 15 if slot < 2 else 18
        return v, (slot & 1) * SB + 32 * j, 3840

    k1_mainloop(a, 5, 4, dma_a, (13, 14), waddr_a, 3, ACC, FR)
    a("s_barrier")
    a("s_nop 7")
    a("""
    v_and_b32 v20, 15, v0
    s_lshl_b32 s44, s36, 6
    v_add_u32 v20, s44, v20
    v_mul_u32_u24 v20, 488, v20
    v_lshl_add_u32 v20, v2, 3, v20
    s_lshl_b32 s44, s37, 7
    v_add_u32 v20, s44, v20
    """)
    for i in range(4):
        if i == 3:
            a("s_cmp_eq_u32 s37, 3")
            a("s_cbranch_scc1 L_g1_a_skip")
        for mi in range(5):
            acc = ACC + 4 * (mi * 4 + i)
            a(f"v_cvt_pk_bf16_f32 v22, v{acc}, v{acc+1}")
            a(f"v_cvt_pk_bf16_f32 v23, v{acc+2}, v{acc+3}")
            a(f"ds_write_b64 v20, v[22:23] offset:{mi*16*488 + i*32}")
    a.label("L_g1_a_skip")
    a("s_waitcnt lgkmcnt(0)")
    a("s_barrier")
    Q, KR, VR = 32, 48, 128
    a("""
    s_lshl_b32 s44, s36, 6
    v_add_u32 v20, s44, v0
    v_add_u32 v21, 2, v20
    v_mul_u32_u24 v21, 488, v21
    s_mul_i32 s44, s37, 40
    v_add_u32 v21, s44, v21
    """)
    for m in range(5):
        a(f"ds_read_b64 {vr(Q+2*m,2)}, v21 offset:{14*488 + 8*m}")
    for wi in range(8):
        for m in range(5):
            a(f"ds_read_b64 {vr(KR+10*wi+2*m,2)}, v21 offset:{(14-2*wi)*488 + 160 + 8*m}")
    for wi in range(8):
        for m in range(5):
            a(f"ds_read_b64 {vr(VR+10*wi+2*m,2)}, v21 offset:{(14-2*wi)*488 + 320 + 8*m}")
    a("""
    s_lshl_b32 s44, s33, 7
    v_add_u32 v22, s44, v20
    s_mov_b32 s16, 0xffff0000
    s_mov_b32 s17, 0x3e64f92e
    s_mov_b32 s18, 0xce6e0000
    s_mov_b32 s19, 0x3fb8aa3b
    s_waitcnt lgkmcnt(0)
    """)
    L = 24
    for wi in range(8):
        for m in range(10):
            c = "0" if m == 0 else f"v{L+wi}"
            a(f"v_dot2_f32_bf16 v{L+wi}, v{Q+m}, v{KR+10*wi+m}, {c}")
    a("s_nop 4")
    for p in range(4):
        l0, l1 = L + 2 * p, L + 2 * p + 1
        a(f"v_cvt_pk_bf16_f32 v23, v{l0}, v{l1}")
        a(f"v_lshlrev_b32 v{l0}, 16, v23")
        a(f"v_and_b32 v{l1}, s16, v23")
        a(f"v_mul_f32 v{l0}, s17, v{l0}")
        a(f"v_mul_f32 v{l1}, s17, v{l1}")
        a(f"v_cvt_pk_bf16_f32 v23, v{l0}, v{l1}")
        a(f"v_lshlrev_b32 v{l0}, 16, v23")
        a(f"v_and_b32 v{l1}, s16, v23")
    a("v_mov_b32 v23, s18")
    for wi in range(1, 8):
        a(f"v_cmp_le_u32 vcc, {2*wi}, v22")
        a("s_nop 1")
        a(f"v_cndmask_b32 v{L+wi}, v23, v{L+wi}, vcc")
    a(f"v_max3_f32 v23, v{L}, v{L+1}, v{L+2}")
    a(f"v_max3_f32 v23, v23, v{L+3}, v{L+4}")
    a(f"v_max3_f32 v23, v23, v{L+5}, v{L+6}")
    a(f"v_max_f32 v23, v23, v{L+7}")
    for wi in range(8):
        a(f"v_sub_f32 v{L+wi}, v{L+wi}, v23")
        a(f"v_mul_f32 v{L+wi}, s19, v{L+wi}")
        a(f"v_exp_f32 v{L+wi}, v{L+wi}")
    a("s_nop 0")
    a(f"v_add_f32 v23, v{L}, v{L+1}")
    for wi in range(2, 8):
        a(f"v_add_f32 v23, v23, v{L+wi}")
    a("v_rcp_f32 v23, v23")
    a("s_nop 0")
    for p in range(4):
        l0, l1 = L + 2 * p, L + 2 * p + 1
        a(f"v_mul_f32 v{l0}, v{l0}, v23")
        a(f"v_mul_f32 v{l1}, v{l1}, v23")
        a(f"v_cvt_pk_bf16_f32 v21, v{l0}, v{l1}")
        a(f"v_lshlrev_b32 v{l0}, 16, v21")
        a(f"v_and_b32 v{l1}, s16, v21")
    O = 48
    for wi in range(8):
        for m in range(10):
            a(f"v_lshlrev_b32 v68, 16, v{VR+10*wi+m}")
            a(f"v_and_b32 v69, s16, v{VR+10*wi+m}")
            if wi == 0:
                a(f"v_mul_f32 v{O+2*m}, v{L}, v68")
                a(f"v_mul_f32 v{O+2*m+1}, v{L}, v69")
            else:
                a(f"v_fmac_f32 v{O+2*m}, v{L+wi}, v68")
                a(f"v_fmac_f32 v{O+2*m+1}, v{L+wi}, v69")
    for m in range(10):
        a(f"v_cvt_pk_bf16_f32 v{70+m}, v{O+2*m}, v{O+2*m+1}")
    a("""
    v_lshrrev_b32 v23, 4, v22
    v_mul_u32_u24 v23, 69632, v23
    v_and_b32 v21, 15, v22
    v_lshl_add_u32 v23, v21, 4, v23
    v_add_u32 v23, 0x400000, v23
    s_mul_i32 s44, s34, 80
    s_mul_i32 s45, s37, 20
    s_add_u32 s44, s44, s45
    """)
    for m in range(5):
        a(f"s_add_u32 s45, s44, {4*m}")
        a("s_lshr_b32 s46, s45, 3")
        a("s_lshl_b32 s46, s46, 8")
        a("s_and_b32 s45, s45, 4")
        a("s_lshl_b32 s45, s45, 1")
        a("s_add_u32 s46, s46, s45")
        a(f"buffer_store_dwordx2 {vr(70+2*m,2)}, v23, s[12:15], s46 offen")
    a.label("L_g1_done")
    a("s_endpgm")


def gen_k2(a):
    a.raw(".p2align 8")
    a.label("g2_kernel")
    a("""
    s_cmp_ge_u32 s2, 256
    s_cbranch_scc1 L_g2_done
    s_load_dwordx2 s[4:5], s[0:1], 0
    s_load_dwordx2 s[6:7], s[0:1], 16
    s_load_dwordx4 s[8:11], s[0:1], 48
    s_load_dwordx2 s[28:29], s[0:1], 72
    v_lshrrev_b32 v1, 6, v0
    v_and_b32 v0, 63, v0
    s_nop 0
    v_readfirstlane_b32 s32, v1
    s_and_b32 s33, s2, 7
    s_lshr_b32 s3, s2, 3
    s_and_b32 s34, s3, 7
    s_lshr_b32 s3, s3, 3
    s_lshl_b32 s33, s33, 2
    s_add_u32 s33, s33, s3
    v_lshrrev_b32 v2, 4, v0
    v_bfe_u32 v3, v0, 2, 2
    v_and_b32 v4, 3, v0
    v_lshlrev_b32 v5, 4, v0
    s_waitcnt lgkmcnt(0)
    """)
    srd(a, 12, 28, WS_BYTES)
    srd(a, 20, 4, 2048 * 1280)
    srd(a, 24, 10, 2048 * 1280)
    a("""
    s_cmp_lt_u32 s32, 2
    s_cselect_b32 s16, s6, s8
    s_cselect_b32 s17, s7, s9
    s_mov_b32 s18, 1966080
    s_cselect_b32 s18, 819200, s18
    s_mov_b32 s19, 0x00020000
    s_mul_i32 s40, s32, 10
    s_sub_u32 s41, s32, 2
    s_lshl_b32 s41, s41, 3
    s_cmp_lt_u32 s32, 2
    s_cselect_b32 s41, s40, s41
    s_add_u32 s40, s41, 20
    s_cmp_lt_u32 s32, 2
    s_cselect_b32 s40, s41, s40
    s_lshl_b32 s47, s40, 10
    s_mul_i32 s48, s41, 40960
    s_mul_i32 s42, s32, 20480
    s_mul_i32 s45, s34, 160
    """)
    for mi in range(4):
        a(f"s_lshl_b32 s44, s33, 2")
        a(f"s_add_u32 s44, s44, {mi}")
        a("s_mul_i32 s44, s44, 69632")
        a("s_add_u32 s44, s44, 0x400000")
        a(f"v_add_u32 v{10+mi}, s44, v5")
    for i in range(5):
        a(f"v_add_u32 v20, {64*i}, v0")
        divsmall(a, 21, 20, 10, 44)
        a("v_mul_u32_u24 v22, 10, v21")
        a("v_sub_u32 v22, v20, v22")
        unswap23(a, 24, 21, 25, 26)
        a("v_mul_u32_u24 v24, 1280, v24")
        a("v_lshl_add_u32 v24, v22, 4, v24")
        a(f"v_add_u32 v{14+i}, s45, v24")
    a("""
    v_and_b32 v20, 1, v2
    v_lshl_add_u32 v20, v20, 2, v3
    v_lshrrev_b32 v21, 1, v2
    v_lshl_add_u32 v20, v21, 4, v20
    v_mul_u32_u24 v20, 160, v20
    v_lshl_add_u32 v20, v4, 3, v20
    v_add_u32 v19, s42, v20
    """)
    ACC = 32
    AF = 112
    WF = 176

    def issue(st):
        slot = st & 3
        for mi in range(4):
            a(f"buffer_load_dwordx4 {vr(AF+16*slot+4*mi,4)}, v{10+mi}, s[12:15], s47 offen")
        for i in range(5):
            a(f"s_add_u32 m0, s42, {slot*5120 + i*1024}")
            a("s_nop 0")
            a(f"buffer_load_dwordx4 v{14+i}, s[16:19], s48 offen lds")
        a("s_add_u32 s47, s47, 1024")
        a("s_add_u32 s48, s48, 40960")

    def body(n, tag):
        for st in range(4):
            issue(st)
        for s in range(n):
            slot = s & 3
            a(f"s_waitcnt vmcnt({9*min(3, n-1-s)})")
            for j in range(5):
                a(f"ds_read_b64_tr_b16 {vr(WF+4*j,2)}, v19 offset:{slot*5120 + 32*j}")
                a(f"ds_read_b64_tr_b16 {vr(WF+4*j+2,2)}, v19 offset:{slot*5120 + 32*j + 1280}")
            a("s_waitcnt lgkmcnt(0)")
            for j in range(5):
                for mi in range(4):
                    acc = ACC + 4 * (mi * 5 + j)
                    c = "0" if s == 0 else vr(acc, 4)
                    a(f"v_mfma_f32_16x16x32_bf16 {vr(acc,4)}, {vr(WF+4*j,4)}, {vr(AF+16*slot+4*mi,4)}, {c}")
            if s + 4 < n:
                issue(s + 4)

    a("s_cmp_lt_u32 s32, 2")
    a("s_cbranch_scc0 L_g2_h")
    body(10, "o")
    a("s_branch L_g2_red")
    a.label("L_g2_h")
    body(8, "h")
    a.label("L_g2_red")
    a("s_nop 7")
    a("s_nop 7")
    a("v_add_u32 v20, s42, v5")
    for st in range(20):
        a(f"ds_write_b128 v20, {vr(ACC+4*st,4)} offset:{st*1024}")
    a("s_waitcnt lgkmcnt(0)")
    a("s_barrier")
    a("s_mov_b32 s16, 0xffff0000")
    for r in range(3):
        if r == 2:
            a("s_cmp_ge_u32 s32, 4")
            a("s_cbranch_scc1 L_g2_done")
        a(f"s_add_u32 s40, s32, {8*r}")
        a("s_mul_i32 s41, s40, 52")
        a("s_lshr_b32 s41, s41, 8")
        a("s_mul_i32 s43, s41, 5")
        a("s_sub_u32 s43, s40, s43")
        a("""
        s_lshl_b32 s44, s33, 6
        s_lshl_b32 s41, s41, 4
        s_add_u32 s44, s44, s41
        v_and_b32 v21, 15, v0
        v_add_u32 v21, s44, v21
        v_mul_u32_u24 v21, 1280, v21
        v_lshl_add_u32 v21, v2, 3, v21
        s_lshl_b32 s43, s43, 5
        s_add_u32 s43, s43, s45
        v_add_u32 v21, s43, v21
        buffer_load_dwordx2 v[22:23], v21, s[20:23], 0 offen
        s_lshl_b32 s40, s40, 10
        v_add_u32 v20, s40, v5
        """)
        for w in range(8):
            a(f"ds_read_b128 {vr(32+4*w,4)}, v20 offset:{w*20480 if w < 4 else 0}" if w < 4 else
              f"ds_read_b128 {vr(32+4*w,4)}, v24 offset:{(w-4)*20480}")
            if w == 3:
                a("v_add_u32 v24, 81920, v20")
        a("s_waitcnt lgkmcnt(0)")
        for e in range(4):
            a(f"v_add_f32 v{32+e}, v{32+e}, v{36+e}")
            a(f"v_add_f32 v{40+e}, v{40+e}, v{44+e}")
            a(f"v_add_f32 v{48+e}, v{48+e}, v{52+e}")
            a(f"v_add_f32 v{56+e}, v{56+e}, v{60+e}")
            a(f"v_add_f32 v{40+e}, v{40+e}, v{48+e}")
            a(f"v_add_f32 v{40+e}, v{40+e}, v{56+e}")
        a("s_waitcnt vmcnt(0)")
        for p in range(2):
            a0, a1, b0, b1 = 32 + 2 * p, 33 + 2 * p, 40 + 2 * p, 41 + 2 * p
            a(f"v_cvt_pk_bf16_f32 v25, v{a0}, v{a1}")
            a(f"v_cvt_pk_bf16_f32 v26, v{b0}, v{b1}")
            a(f"v_lshlrev_b32 v{a0}, 16, v25")
            a(f"v_and_b32 v{a1}, s16, v25")
            a(f"v_lshlrev_b32 v{b0}, 16, v26")
            a(f"v_and_b32 v{b1}, s16, v26")
            a(f"v_lshlrev_b32 v25, 16, v{22+p}")
            a(f"v_and_b32 v26, s16, v{22+p}")
            a(f"v_add_f32 v{a0}, v{a0}, v25")
            a(f"v_add_f32 v{a1}, v{a1}, v26")
            a(f"v_cvt_pk_bf16_f32 v25, v{a0}, v{a1}")
            a(f"v_lshlrev_b32 v{a0}, 16, v25")
            a(f"v_and_b32 v{a1}, s16, v25")
            a(f"v_add_f32 v{a0}, v{a0}, v{b0}")
            a(f"v_add_f32 v{a1}, v{a1}, v{b1}")
            a(f"v_cvt_pk_bf16_f32 v{28+p}, v{a0}, v{a1}")
        a("buffer_store_dwordx2 v[28:29], v21, s[24:27], 0 offen")
        a("s_nop 1")
    a.label("L_g2_done")
    a("s_endpgm")


def kd(name, vgpr, sgpr=102):
    acc = (vgpr + 3) // 4 * 4
    return f""".p2align 6
.amdhsa_kernel {name}
  .amdhsa_next_free_vgpr {vgpr}
  .amdhsa_next_free_sgpr {sgpr}
  .amdhsa_accum_offset {acc}
  .amdhsa_group_segment_fixed_size 0
  .amdhsa_kernarg_size 80
  .amdhsa_user_sgpr_count 2
  .amdhsa_user_sgpr_kernarg_segment_ptr 1
  .amdhsa_system_sgpr_workgroup_id_x 1
.end_amdhsa_kernel
"""


def main(outpath):
    a = Asm()
    a.raw("; @launch kernel=ln_kernel grid=(128,1,1) block=(256,1,1) lds=0")
    a.raw("; @launch kernel=g1_kernel grid=(256,1,1) block=(512,1,1) lds=131072")
    a.raw("; @launch kernel=g2_kernel grid=(256,1,1) block=(512,1,1) lds=163840")
    a.raw('.amdgcn_target "amdgcn-amd-amdhsa--gfx950"')
    a.raw(".text")
    for k in ("ln_kernel", "g1_kernel", "g2_kernel"):
        a.raw(f".globl {k}")
        a.raw(f".type {k},@function")
    gen_ln(a)
    gen_k1(a)
    gen_k2(a)
    a.raw('.section .rodata,"a"')
    a.raw(kd("ln_kernel", 80))
    a.raw(kd("g1_kernel", 208))
    a.raw(kd("g2_kernel", 200))
    open(outpath, "w").write(a.text())


if __name__ == "__main__":
    main(sys.argv[1] if len(sys.argv) > 1 else f"cdna_kernels/{NAME}.s")
```

```python
import sys, os

NAME = "parallel_sum__sliding_local_dilated__glu_gated_glu__prompt"
A2_OFF = 0
B2_OFF = 9 << 20
WS_BYTES = 16 << 20
A2_MT = 68 * 1024
STAMP = False


class Asm:
    def __init__(self):
        self.lines = []
        self.vm = []

    def __call__(self, s):
        for ln in s.strip("\n").split("\n"):
            ln = ln.strip()
            if ln:
                self.lines.append("    " + ln)

    def label(self, l):
        self.lines.append(l + ":")

    def raw(self, s):
        self.lines.append(s)

    def text(self):
        return "\n".join(self.lines) + "\n"

    def vmem(self, s, tag, optional=False):
        self(s)
        self.vm.append((tag, optional))

    def vm_count_after(self, tag):
        idx = max([i for i, (t, o) in enumerate(self.vm) if t == tag], default=-1)
        if idx < 0:
            return None
        return sum(1 for (t, o) in self.vm[idx + 1:] if not o)

    def wait_vm(self, tag, lgkm=False):
        n = self.vm_count_after(tag)
        parts = []
        if n is not None:
            assert n < 64
            parts.append(f"vmcnt({n})")
            idx = max([i for i, (t, o) in enumerate(self.vm) if t == tag])
            self.vm = self.vm[idx + 1:]
        if lgkm:
            parts.append("lgkmcnt(0)")
        if parts:
            self("s_waitcnt " + " ".join(parts))

    def stamp(self, n, last=False):
        if not STAMP:
            return
        self("s_memtime s[88:89]")
        self("s_waitcnt lgkmcnt(0)")
        self(f"s_mov_b32 s{70+n}, s88")
        if n == 0 or last:
            self("s_memrealtime s[88:89]")
            self("s_waitcnt lgkmcnt(0)")
            self(f"s_mov_b32 s{84 if n == 0 else 85}, s88")

    def stamp_flush(self, srd_ws, kidx, swave):
        if not STAMP:
            return
        self(f"s_lshl_b32 s88, s2, 3")
        self(f"s_add_u32 s88, s88, s{swave}")
        self(f"s_lshl_b32 s88, s88, 6")
        self(f"s_add_u32 s88, s88, {(12+kidx)<<20}")
        self("v_mov_b32 v1, 0")
        for n in range(16):
            self(f"v_mov_b32 v2, s{70+n}")
            self(f"buffer_store_dword v2, v1, s[{srd_ws}:{srd_ws+3}], s88 offen offset:{4*n}")


def srd(a, d, base, nbytes):
    a(f"s_mov_b32 s{d}, s{base}")
    a(f"s_mov_b32 s{d+1}, s{base+1}")
    a(f"s_mov_b32 s{d+2}, {nbytes}")
    a(f"s_mov_b32 s{d+3}, 0x00020000")


def vr(b, n):
    return f"v[{b}:{b+n-1}]"


def unswap23(a, dst, src, t0, t1):
    a(f"v_lshrrev_b32 v{t0}, 1, v{src}")
    a(f"v_and_b32 v{t0}, 4, v{t0}")
    a(f"v_lshlrev_b32 v{t1}, 1, v{src}")
    a(f"v_and_b32 v{t1}, 8, v{t1}")
    a(f"v_and_b32 v{dst}, 0x13, v{src}")
    a(f"v_or3_b32 v{dst}, v{dst}, v{t0}, v{t1}")


def divsmall(a, q, p, d, lim=1024):
    m = (65536 + d - 1) // d
    for x in range(lim):
        assert (x * m) >> 16 == x // d, (d, x)
    a(f"v_mul_u32_u24 v{q}, {m}, v{p}")
    a(f"v_lshrrev_b32 v{q}, 16, v{q}")


def sdiv(a, q, p, d, lim):
    m = (65536 + d - 1) // d
    for x in range(lim):
        assert (x * m) >> 16 == x // d, (d, x)
    a(f"s_mul_i32 s{q}, s{p}, {m}")
    a(f"s_lshr_b32 s{q}, s{q}, 16")


def red_g(a, v, t):
    a(f"v_mov_b32 v{t}, v{v}")
    a("s_nop 1")
    a(f"v_permlane32_swap_b32 v{v}, v{t}")
    a("s_nop 1")
    a(f"v_add_f32 v{v}, v{v}, v{t}")
    a(f"v_mov_b32 v{t}, v{v}")
    a("s_nop 1")
    a(f"v_permlane16_swap_b32 v{v}, v{t}")
    a("s_nop 1")
    a(f"v_add_f32 v{v}, v{v}, v{t}")


NK = 20
STAT_LDS = 156 * 1024
SCR_LDS = 144 * 1024
VONE = 228
TMP = 20


def k1_mainloop(a, NM, NN, dma_fn, xaddr_fn, waddr_fn, ACC, FR, ncs, nrs, CS, RS, pre_fn=None):
    FS = 4 * NM + 4 * NN

    def xfrag(s, mi):
        return FR + s * FS + 4 * mi

    def wfrag(s, j):
        return FR + s * FS + 4 * NM + 4 * j

    def reads(ks):
        s = ks & 1
        out = []
        for mi in range(NM):
            v, off = xaddr_fn(mi, ks)
            out.append(f"ds_read_b128 {vr(xfrag(s,mi),4)}, v{v} offset:{off}")
        for j in range(NN):
            v, off, dt = waddr_fn(j, ks)
            out.append(f"ds_read_b64_tr_b16 {vr(wfrag(s,j),2)}, v{v} offset:{off}")
            out.append(f"ds_read_b64_tr_b16 {vr(wfrag(s,j)+2,2)}, v{v} offset:{off+dt}")
        return out

    def mfmas(ks):
        s = ks & 1
        out = []
        for j in range(NN):
            for mi in range(NM):
                acc = ACC + 4 * (mi * NN + j)
                c = "0" if ks == 0 else vr(acc, 4)
                out.append(f"v_mfma_f32_16x16x32_bf16 {vr(acc,4)}, {vr(wfrag(s,j),4)}, {vr(xfrag(s,mi),4)}, {c}")
        return out

    def stats(ks):
        s = ks & 1
        out = []
        for j in range(ncs):
            c = "0" if ks == 0 else vr(CS + 4 * j, 4)
            out.append(f"v_mfma_f32_16x16x32_bf16 {vr(CS+4*j,4)}, {vr(wfrag(s,j),4)}, {vr(VONE,4)}, {c}")
        valu = []
        for mi in range(nrs):
            S0, S1, Q0, Q1 = [RS + 4 * mi + i for i in range(4)]
            for d in range(4):
                x = xfrag(s, mi) + d
                t0, t1 = TMP + 2 * (d & 1), TMP + 2 * (d & 1) + 1
                valu.append(f"v_lshlrev_b32 v{t0}, 16, v{x}")
                valu.append(f"v_and_b32 v{t1}, s69, v{x}")
                if ks == 0 and d == 0:
                    valu.append(f"v_mov_b32 v{S0}, v{t0}")
                    valu.append(f"v_mov_b32 v{S1}, v{t1}")
                    valu.append(f"v_mul_f32 v{Q0}, v{t0}, v{t0}")
                    valu.append(f"v_mul_f32 v{Q1}, v{t1}, v{t1}")
                else:
                    valu.append(f"v_add_f32 v{S0}, v{S0}, v{t0}")
                    valu.append(f"v_add_f32 v{S1}, v{S1}, v{t1}")
                    valu.append(f"v_fmac_f32 v{Q0}, v{t0}, v{t0}")
                    valu.append(f"v_fmac_f32 v{Q1}, v{t1}, v{t1}")
        return out, valu

    a.stamp(1)
    for st in range(4):
        dma_fn(st)
    a.stamp(2)
    if pre_fn:
        pre_fn()
    a.wait_vm(("st", 0))
    a("s_barrier")
    a.stamp(3)
    for r in reads(0):
        a(r)
    for ks in range(NK):
        if ks + 1 < NK:
            a.wait_vm(("st", ks + 1), lgkm=True)
            a("s_barrier")
            if ks in (4, 10, 16):
                a.stamp({4: 4, 10: 5, 16: 6}[ks])
            if ks + 4 < NK:
                dma_fn(ks + 4)
            rd = reads(ks + 1)
        else:
            a("s_waitcnt lgkmcnt(0)")
            rd = []
        mf = mfmas(ks)
        smf, stt = stats(ks)
        mf = mf + smf
        nr = ns = 0
        L = len(mf)
        for i, m in enumerate(mf):
            a(m)
            while nr < len(rd) and nr < (i + 1) * len(rd) // max(1, L - 6):
                a(rd[nr]); nr += 1
            while ns < len(stt) and ns < (i + 1) * len(stt) // L:
                a(stt[ns]); ns += 1
        while nr < len(rd):
            a(rd[nr]); nr += 1
        while ns < len(stt):
            a(stt[ns]); ns += 1


def rowstat_math(a, S, Q, t):
    a(f"v_mul_f32 v{S}, s17, v{S}")
    a(f"v_mul_f32 v{Q}, s17, v{Q}")
    a(f"v_fma_f32 v{Q}, -v{S}, v{S}, v{Q}")
    a(f"v_max_f32 v{Q}, 0, v{Q}")
    a(f"v_cvt_pk_bf16_f32 v{t}, v{S}, v{Q}")
    a(f"v_lshlrev_b32 v{S}, 16, v{t}")
    a(f"v_and_b32 v{Q}, s16, v{t}")
    a(f"v_add_f32 v{Q}, 0x3727c5ac, v{Q}")
    a(f"v_cvt_pk_bf16_f32 v{t}, v{Q}, v{Q}")
    a(f"v_and_b32 v{Q}, s16, v{t}")
    a(f"v_sqrt_f32 v{Q}, v{Q}")
    a("s_nop 0")
    a(f"v_cvt_pk_bf16_f32 v{t}, v{Q}, v{Q}")
    a(f"v_and_b32 v{Q}, s16, v{t}")
    a(f"v_rcp_f32 v{t}, v{Q}")
    a("s_nop 0")
    a(f"v_fma_f32 v{Q}, -v{Q}, v{t}, 1.0")
    a(f"v_fma_f32 v{Q}, v{Q}, v{t}, v{t}")


def gen_k1(a):
    a.raw(".p2align 8")
    a.label("g1_kernel")
    a("""
    s_cmp_ge_u32 s2, 256
    s_cbranch_scc1 L_g1_done
    """)
    a.stamp(0)
    a("""
    s_load_dwordx4 s[4:7], s[0:1], 0
    s_load_dwordx2 s[52:53], s[0:1], 16
    s_load_dwordx4 s[8:11], s[0:1], 32
    s_load_dwordx2 s[54:55], s[0:1], 48
    s_load_dwordx2 s[56:57], s[0:1], 72
    v_lshrrev_b32 v1, 6, v0
    v_and_b32 v0, 63, v0
    s_nop 0
    v_readfirstlane_b32 s32, v1
    s_and_b32 s34, s2, 7
    s_lshr_b32 s3, s2, 3
    s_lshr_b32 s33, s3, 1
    s_and_b32 s3, s3, 1
    s_lshr_b32 s36, s32, 2
    s_and_b32 s37, s32, 3
    v_lshrrev_b32 v2, 4, v0
    v_bfe_u32 v3, v0, 2, 2
    v_and_b32 v4, 3, v0
    v_lshlrev_b32 v5, 4, v0
    v_mov_b32 v228, 0x3f803f80
    v_mov_b32 v229, 0x3f803f80
    v_mov_b32 v230, 0x3f803f80
    v_mov_b32 v231, 0x3f803f80
    s_mov_b32 s69, 0xffff0000
    v_and_b32 v6, 15, v0
    s_waitcnt lgkmcnt(0)
    """)
    srd(a, 12, 56, WS_BYTES)
    srd(a, 28, 4, 2048 * 1280)
    a("""
    v_lshrrev_b32 v20, 3, v0
    v_and_b32 v21, 7, v0
    v_xor_b32 v21, v21, v20
    v_mul_u32_u24 v7, 1280, v20
    v_lshl_add_u32 v7, v21, 4, v7
    """)
    a("""
    v_and_b32 v20, 7, v6
    v_xor_b32 v21, v2, v20
    v_lshlrev_b32 v8, 7, v20
    v_lshl_add_u32 v8, v21, 4, v8
    v_lshrrev_b32 v20, 3, v6
    v_lshl_add_u32 v8, v20, 10, v8
    """)
    a("""
    v_and_b32 v20, 1, v2
    v_lshl_add_u32 v20, v20, 2, v3
    v_lshrrev_b32 v21, 1, v2
    v_lshl_add_u32 v9, v21, 4, v20
    """)

    def b2_issue():
        a("""
        s_mul_i32 s58, s2, 3
        s_add_u32 s58, s58, s32
        s_cmp_lt_u32 s32, 3
        s_cselect_b32 s58, s58, 4095
        s_cmp_lt_u32 s58, 680
        s_cbranch_scc0 L_b2_skip1_%s
        """ % a.tag)
        sdiv(a, 59, 58, 10, 680)
        a("""
        s_mul_i32 s60, s59, 10
        s_sub_u32 s60, s58, s60
        s_cmp_lt_u32 s59, 20
        s_cselect_b32 s64, s52, s54
        s_cselect_b32 s65, s53, s55
        s_mov_b32 s66, 1966080
        s_cselect_b32 s66, 819200, s66
        s_mov_b32 s67, 0x00020000
        s_sub_u32 s61, s59, 20
        s_cmp_lt_u32 s59, 20
        s_cselect_b32 s61, s59, s61
        s_mul_i32 s61, s61, 40960
        s_lshl_b32 s62, s60, 7
        s_add_u32 s61, s61, s62
        s_lshl_b32 s62, s32, 12
        s_add_u32 s62, s62, %d
        v_lshrrev_b32 v20, 3, v0
        v_and_b32 v21, 7, v0
        """ % SCR_LDS)
        for i in range(4):
            a(f"v_add_u32 v22, {8*i}, v20")
            unswap23(a, 23, 22, 24, 25)
            a("v_mul_u32_u24 v23, 1280, v23")
            a("v_lshl_add_u32 v23, v21, 4, v23")
            a(f"s_add_u32 m0, s62, {1024*i}")
            a("s_nop 0")
            a.vmem("buffer_load_dwordx4 v23, s[64:67], s61 offen lds", "b2", optional=True)
        a.label("L_b2_skip1_%s" % a.tag)

    def b2_finish():
        a("s_cmp_lt_u32 s58, 680")
        a("s_cbranch_scc0 L_b2_skip2_%s" % a.tag)
        n = sum(1 for (t, o) in a.vm if t != "b2")
        n = sum(1 for (t, o) in a.vm if t != "b2" and not o)
        a(f"s_waitcnt vmcnt({n})")
        a("v_lshlrev_b32 v20, 7, v9")
        a("v_lshl_add_u32 v20, v4, 3, v20")
        a("v_add_u32 v20, s62, v20")
        FRb = 128
        for jj in range(4):
            a(f"ds_read_b64_tr_b16 {vr(FRb+4*jj,2)}, v20 offset:{32*jj}")
            a(f"ds_read_b64_tr_b16 {vr(FRb+4*jj+2,2)}, v20 offset:{32*jj+1024}")
        a("s_waitcnt lgkmcnt(0)")
        for jj in range(4):
            a("s_lshl_b32 s61, s60, 2")
            a(f"s_add_u32 s61, s61, {jj}")
            sdiv(a, 62, 61, 5, 40)
            a("s_mul_i32 s63, s62, 5")
            a("s_sub_u32 s63, s61, s63")
            a("s_mul_i32 s62, s62, 68")
            a("s_add_u32 s62, s62, s59")
            a("s_mul_i32 s62, s62, 5")
            a("s_add_u32 s62, s62, s63")
            a("s_lshl_b32 s62, s62, 10")
            a(f"s_add_u32 s62, s62, {B2_OFF}")
            a.vmem(f"buffer_store_dwordx4 {vr(FRb+4*jj,4)}, v5, s[12:15], s62 offen", "b2s", optional=True)
        a("s_nop 1")
        a.label("L_b2_skip2_%s" % a.tag)
        a.vm = [(t, o) for (t, o) in a.vm if t != "b2"]

    a("s_cmp_eq_u32 s3, 0")
    a("s_cbranch_scc1 L_g1_attn")

    a.tag = "g"
    a.vm = []
    AR_G = 16384
    BR_G = 49152
    BS_G = 24576
    srd(a, 16, 8, 640 * 3072)
    srd(a, 20, 10, 640 * 3072)
    a("""
    s_cmp_lt_u32 s32, 4
    s_cselect_b32 s24, s8, s10
    s_cselect_b32 s25, s9, s11
    s_mov_b32 s26, 1966080
    s_mov_b32 s27, 0x00020000
    s_mov_b32 s43, 12288
    s_cselect_b32 s43, 0, s43
    """)
    a(f"""
    s_lshl_b32 s40, s32, 10
    s_add_u32 s41, s40, {BR_G}
    s_add_u32 s42, s40, {BR_G+12288}
    s_lshl_b32 s44, s37, 10
    s_add_u32 s43, s43, s44
    s_add_u32 s43, s43, {BR_G+8192}
    """)
    a("""
    s_lshl_b32 s44, s33, 4
    s_add_u32 s44, s44, s32
    s_mul_i32 s44, s44, 10240
    v_add_u32 v10, s44, v7
    v_add_u32 v11, 81920, v10
    s_mul_i32 s45, s34, 384
    """)

    def gate_off(dst, sInstr):
        a(f"s_lshl_b32 s44, s{sInstr}, 6")
        a(f"v_add_u32 v20, s44, v0")
        divsmall(a, 21, 20, 48)
        a("v_mul_u32_u24 v22, 48, v21")
        a("v_sub_u32 v22, v20, v22")
        a("v_and_b32 v23, 7, v21")
        a("v_lshlrev_b32 v23, 1, v23")
        a("v_xor_b32 v22, v22, v23")
        a("v_cmp_le_u32 vcc, 24, v22")
        a("s_nop 1")
        a("v_cndmask_b32 v23, 0, 1, vcc")
        a("v_mul_u32_u24 v24, 24, v23")
        a("v_sub_u32 v22, v22, v24")
        a("v_lshl_add_u32 v21, v23, 4, v21")
        unswap23(a, 24, 21, 25, 26)
        a("v_mul_u32_u24 v24, 3072, v24")
        a("v_lshl_add_u32 v24, v22, 4, v24")
        a(f"v_add_u32 v{dst}, s45, v24")
    gate_off(12, 32)
    a("s_add_u32 s46, s37, 8")
    gate_off(13, 46)
    a("s_mov_b32 s47, 0")
    a("s_mov_b32 s48, 0")

    def dma_g(st):
        sb = (st & 3) * BS_G
        if st % 2 == 0:
            ab = ((st // 2) % 3) * AR_G
            a(f"s_add_u32 m0, s40, {ab}")
            a("s_nop 0")
            a.vmem("buffer_load_dwordx4 v10, s[28:31], s47 offen lds", ("st", st))
            a(f"s_add_u32 m0, s40, {ab+8192}")
            a("s_nop 0")
            a.vmem("buffer_load_dwordx4 v11, s[28:31], s47 offen lds", ("st", st))
            a("s_add_u32 s47, s47, 128")
        a(f"s_add_u32 m0, s41, {sb}")
        a("s_nop 0")
        a.vmem("buffer_load_dwordx4 v12, s[16:19], s48 offen lds", ("st", st))
        a(f"s_add_u32 m0, s42, {sb}")
        a("s_nop 0")
        a.vmem("buffer_load_dwordx4 v12, s[20:23], s48 offen lds", ("st", st))
        a(f"s_add_u32 m0, s43, {sb}")
        a("s_nop 0")
        a.vmem("buffer_load_dwordx4 v13, s[24:27], s48 offen lds", ("st", st))
        a("s_add_u32 s48, s48, 98304")

    b2_issue()
    XA = 208
    for mi in range(4):
        a(f"s_add_u32 s44, s37, {mi}")
        a("s_and_b32 s44, s44, 3")
        a("s_lshl_b32 s46, s36, 2")
        a("s_add_u32 s44, s44, s46")
        a("s_lshl_b32 s44, s44, 11")
        a(f"v_add_u32 v{XA+mi}, s44, v8")
        a(f"v_xor_b32 v{XA+4+mi}, 64, v{XA+mi}")
    WA = 216
    a(f"""
    v_and_b32 v20, 7, v9
    v_lshrrev_b32 v21, 1, v2
    v_mul_u32_u24 v21, 12, v21
    s_mul_i32 s44, s37, 3
    v_add_u32 v21, s44, v21
    v_mul_u32_u24 v22, 768, v20
    v_lshl_add_u32 v22, v4, 3, v22
    v_add_u32 v22, {BR_G}, v22
    s_mul_i32 s44, s36, 12288
    s_sub_u32 s46, 12288, s44
    """)
    for i in range(3):
        a(f"v_add_u32 v23, {i}, v21")
        a("v_xor_b32 v23, v23, v20")
        a(f"v_lshl_add_u32 v23, v23, 5, v22")
        a(f"v_add_u32 v{WA+i}, s44, v23")
        a(f"v_add_u32 v{WA+3+i}, s46, v23")
        a(f"v_add_u32 v{WA+6+i}, {2*BS_G}, v{WA+i}")
        a(f"v_add_u32 v{WA+9+i}, {2*BS_G}, v{WA+3+i}")

    def xaddr_g(mi, ks):
        return XA + 4 * (ks & 1) + mi, ((ks // 2) % 3) * AR_G

    def waddr_g(j, ks):
        slot = ks & 3
        v = WA + (6 if slot >= 2 else 0) + j
        return v, (slot & 1) * BS_G, 6144

    ACC = 32
    FR = 128
    CS, RS = 232, 24
    k1_mainloop(a, 4, 6, dma_g, xaddr_g, waddr_g, ACC, FR, 3, 1, CS, RS, pre_fn=b2_finish)
    a.stamp(7)
    a("s_mov_b32 s16, 0xffff0000")
    a("s_mov_b32 s17, 0x3acccccd")
    a("s_nop 4")
    a("v_add_f32 v18, v24, v25")
    a("v_add_f32 v19, v26, v27")
    for v in (18, 19):
        red_g(a, v, 20)
    rowstat_math(a, 18, 19, 20)
    a(f"""
    s_lshl_b32 s44, s36, 2
    s_add_u32 s44, s44, s37
    s_lshl_b32 s44, s44, 7
    s_add_u32 s44, s44, {STAT_LDS}
    v_lshl_add_u32 v20, v6, 3, s44
    ds_write_b64 v20, v[18:19]
    s_mul_i32 s44, s36, 12
    s_mul_i32 s46, s37, 3
    s_add_u32 s44, s44, s46
    s_lshl_b32 s44, s44, 6
    s_add_u32 s44, s44, {STAT_LDS+2048}
    v_lshl_add_u32 v20, v2, 4, s44
    ds_write_b128 v20, v[232:235]
    ds_write_b128 v20, v[236:239] offset:64
    ds_write_b128 v20, v[240:243] offset:128
    s_waitcnt lgkmcnt(0)
    s_barrier
    """)
    a("s_cmp_eq_u32 s36, 0")
    a("s_cbranch_scc1 L_g1_g_noswap")
    for mi in range(4):
        for i in range(3):
            for e in range(4):
                a(f"v_swap_b32 v{ACC+4*(mi*6+i)+e}, v{ACC+4*(mi*6+3+i)+e}")
    a.label("L_g1_g_noswap")
    for mi in range(4):
        a(f"s_add_u32 s44, s37, {mi}")
        a("s_and_b32 s44, s44, 3")
        a("s_lshl_b32 s46, s36, 2")
        a("s_add_u32 s44, s44, s46")
        a("s_lshl_b32 s44, s44, 7")
        a(f"s_add_u32 s44, s44, {STAT_LDS}")
        a("v_lshl_add_u32 v20, v6, 3, s44")
        a(f"ds_read_b64 {vr(128+2*mi,2)}, v20")
    a(f"""
    s_mul_i32 s44, s37, 192
    s_add_u32 s44, s44, {STAT_LDS+2048}
    v_lshl_add_u32 v20, v2, 4, s44
    """)
    for i in range(3):
        a(f"ds_read_b128 {vr(136+4*i,4)}, v20 offset:{64*i}")
        a(f"ds_read_b128 {vr(148+4*i,4)}, v20 offset:{768+64*i}")
    a("s_mov_b32 s17, 0xbfb8aa3b")
    a(f"""
    v_lshrrev_b32 v21, 1, v2
    v_lshl_add_u32 v20, v21, 4, v6
    v_lshlrev_b32 v20, 4, v20
    v_and_b32 v21, 1, v2
    v_lshl_add_u32 v20, v21, 3, v20
    s_lshl_b32 s44, s33, 3
    s_lshl_b32 s45, s36, 2
    s_add_u32 s44, s44, s45
    s_mul_i32 s44, s44, {A2_MT}
    s_add_u32 s44, s44, {A2_OFF + 20*1024}
    v_add_u32 v20, s44, v20
    s_mul_i32 s45, s34, 12
    s_mul_i32 s46, s37, 3
    s_add_u32 s45, s45, s46
    s_waitcnt lgkmcnt(0)
    """)
    for mi in range(4):
        M, R = 128 + 2 * mi, 129 + 2 * mi
        a(f"v_mul_f32 v22, s17, v{R}")
        a(f"s_add_u32 s44, s37, {mi}")
        a("s_and_b32 s44, s44, 3")
        a(f"s_mul_i32 s44, s44, {A2_MT}")
        a("v_add_u32 v21, s44, v20")
        for i in range(3):
            g = ACC + 4 * (mi * 6 + i)
            u = ACC + 4 * (mi * 6 + 3 + i)
            for e in range(4):
                a(f"v_fma_f32 v{g+e}, -v{M}, v{136+4*i+e}, v{g+e}")
                a(f"v_fma_f32 v{u+e}, -v{M}, v{148+4*i+e}, v{u+e}")
            for e in range(4):
                a(f"v_mul_f32 v{g+e}, v22, v{g+e}")
                a(f"v_mul_f32 v{u+e}, v{R}, v{u+e}")
            for e in range(4):
                a(f"v_exp_f32 v{g+e}, v{g+e}")
            a("s_nop 0")
            for e in range(4):
                a(f"v_add_f32 v{g+e}, 1.0, v{g+e}")
            for e in range(4):
                a(f"v_rcp_f32 v{g+e}, v{g+e}")
            a("s_nop 0")
            for e in range(4):
                a(f"v_mul_f32 v{g+e}, v{g+e}, v{u+e}")
            a(f"v_cvt_pk_bf16_f32 v{u}, v{g}, v{g+1}")
            a(f"v_cvt_pk_bf16_f32 v{u+1}, v{g+2}, v{g+3}")
            a(f"s_add_u32 s46, s45, {i}")
            a("s_lshl_b32 s46, s46, 9")
            a(f"buffer_store_dwordx2 {vr(u,2)}, v21, s[12:15], s46 offen")
    a.stamp(8, True)
    a.stamp_flush(12, 1, 32)
    a("s_endpgm")

    a.label("L_g1_attn")
    a.tag = "a"
    a.vm = []
    AR_A = 18432
    BR_A = 55296
    BS_A = 15360
    srd(a, 16, 6, 640 * 3840)
    a(f"""
    s_lshl_b32 s42, s32, 10
    s_add_u32 s40, s42, {BR_A}
    s_add_u32 s41, s42, {BR_A+8192}
    s_mul_i32 s45, s34, 160
    """)

    def qkv_off(dst, sInstr):
        a(f"s_lshl_b32 s44, s{sInstr}, 6")
        a(f"v_add_u32 v20, s44, v0")
        divsmall(a, 21, 20, 30)
        a("v_mul_u32_u24 v22, 30, v21")
        a("v_sub_u32 v22, v20, v22")
        divsmall(a, 23, 22, 10)
        a("v_mul_u32_u24 v24, 10, v23")
        a("v_sub_u32 v22, v22, v24")
        a("v_and_b32 v21, 31, v21")
        unswap23(a, 24, 21, 25, 26)
        a("v_mul_u32_u24 v24, 3840, v24")
        a("v_mul_u32_u24 v23, 1280, v23")
        a("v_add_u32 v24, v24, v23")
        a("v_lshl_add_u32 v24, v22, 4, v24")
        a(f"v_add_u32 v{dst}, s45, v24")

    def ajob_off(dst, sJob):
        a("s_lshl_b32 s44, s33, 4")
        a(f"s_add_u32 s44, s44, s{sJob}")
        a("s_max_u32 s44, s44, 2")
        a("s_sub_u32 s44, s44, 2")
        a("s_mul_i32 s44, s44, 10240")
        a(f"v_add_u32 v{dst}, s44, v7")
    qkv_off(12, 32)
    a("s_add_u32 s46, s32, 8")
    a("s_min_u32 s46, s46, 14")
    qkv_off(13, 46)
    ajob_off(10, 32)
    a("s_add_u32 s46, s32, 8")
    ajob_off(11, 46)
    a("s_and_b32 s46, s32, 1")
    a("s_add_u32 s46, s46, 16")
    ajob_off(19, 46)
    a("""
    s_mov_b32 s47, 0
    s_mov_b32 s48, 0
    """)

    def dma_a(st):
        sb = (st & 3) * BS_A
        a(f"s_add_u32 m0, s40, {sb}")
        a("s_nop 0")
        a.vmem("buffer_load_dwordx4 v12, s[16:19], s48 offen lds", ("st", st))
        a("s_cmp_eq_u32 s32, 7")
        lab = f"L_a_s1_{st}"
        a(f"s_cbranch_scc1 {lab}")
        a(f"s_add_u32 m0, s41, {sb}")
        a("s_nop 0")
        a.vmem("buffer_load_dwordx4 v13, s[16:19], s48 offen lds", ("st", st), optional=True)
        a.label(lab)
        a("s_add_u32 s48, s48, 122880")
        if st % 2 == 0:
            ab = ((st // 2) % 3) * AR_A
            a("s_cmp_lt_u32 s32, 6")
            lab = f"L_a_s4_{st}"
            a(f"s_cbranch_scc1 {lab}")
            a(f"s_add_u32 m0, s42, {ab + 10*1024}")
            a("s_nop 0")
            a.vmem("buffer_load_dwordx4 v19, s[28:31], s47 offen lds", ("st", st), optional=True)
            a.label(lab)
            a(f"s_add_u32 m0, s42, {ab}")
            a("s_nop 0")
            a.vmem("buffer_load_dwordx4 v10, s[28:31], s47 offen lds", ("st", st))
            a(f"s_add_u32 m0, s42, {ab+8192}")
            a("s_nop 0")
            a.vmem("buffer_load_dwordx4 v11, s[28:31], s47 offen lds", ("st", st))
            a("s_add_u32 s47, s47, 128")

    b2_issue()
    for mi in range(5):
        a(f"s_add_u32 s44, s37, {mi}")
        a("s_sub_u32 s46, s44, 5")
        a("s_cmp_ge_u32 s44, 5")
        a("s_cselect_b32 s44, s46, s44")
        a("s_lshl_b32 s46, s36, 2")
        a("s_add_u32 s44, s44, s46")
        a("s_lshl_b32 s44, s44, 11")
        a(f"v_add_u32 v{XA+mi}, s44, v8")
        a(f"v_xor_b32 v{XA+5+mi}, 64, v{XA+mi}")
    WAa = 220
    a(f"""
    v_mul_u32_u24 v20, 480, v9
    v_lshl_add_u32 v20, v4, 3, v20
    v_add_u32 v20, {BR_A}, v20
    """)
    for j in range(4):
        a("s_lshl_b32 s44, s36, 1")
        a(f"s_add_u32 s44, s44, {j}")
        a("s_and_b32 s44, s44, 3")
        a("s_lshl_b32 s46, s37, 2")
        a("s_add_u32 s44, s44, s46")
        a("s_lshl_b32 s44, s44, 5")
        a(f"v_add_u32 v{WAa+j}, s44, v20")

    def xaddr_a(mi, ks):
        return XA + 5 * (ks & 1) + mi, ((ks // 2) % 3) * AR_A

    def waddr_a(j, ks):
        return WAa + j, (ks & 3) * BS_A, 3840

    CSa, RSa = 232, 24
    k1_mainloop(a, 5, 4, dma_a, xaddr_a, waddr_a, ACC, FR, 2, 2, CSa, RSa, pre_fn=b2_finish)
    a.stamp(7)
    a("s_mov_b32 s16, 0xffff0000")
    a("s_mov_b32 s17, 0x3acccccd")
    a("s_nop 4")
    a("v_add_f32 v24, v24, v25")
    a("v_add_f32 v25, v26, v27")
    a("v_add_f32 v26, v28, v29")
    a("v_add_f32 v27, v30, v31")
    for v in (24, 25, 26, 27):
        red_g(a, v, 20)
    rowstat_math(a, 24, 25, 20)
    rowstat_math(a, 26, 27, 20)
    a(f"""
    s_lshl_b32 s44, s36, 2
    s_add_u32 s44, s44, s37
    s_lshl_b32 s44, s44, 7
    s_add_u32 s44, s44, {STAT_LDS}
    v_lshl_add_u32 v20, v6, 3, s44
    ds_write_b64 v20, v[24:25]
    ds_write_b64 v20, v[26:27] offset:128
    s_lshl_b32 s44, s37, 2
    s_lshl_b32 s46, s36, 1
    s_add_u32 s44, s44, s46
    s_lshl_b32 s44, s44, 6
    s_add_u32 s44, s44, {STAT_LDS+2048}
    v_lshl_add_u32 v20, v2, 4, s44
    ds_write_b128 v20, v[232:235]
    ds_write_b128 v20, v[236:239] offset:64
    s_waitcnt lgkmcnt(0)
    s_barrier
    """)
    for mi in range(5):
        a(f"s_add_u32 s44, s37, {mi}")
        a("s_sub_u32 s46, s44, 5")
        a("s_cmp_ge_u32 s44, 5")
        a("s_cselect_b32 s44, s46, s44")
        a("s_lshl_b32 s46, s36, 2")
        a("s_add_u32 s44, s44, s46")
        a(f"s_mov_b32 s{58+mi}, s44")
        a("s_lshl_b32 s44, s44, 7")
        a(f"s_add_u32 s44, s44, {STAT_LDS}")
        a("v_lshl_add_u32 v20, v6, 3, s44")
        a(f"ds_read_b64 {vr(128+2*mi,2)}, v20")
    for j in range(4):
        a("s_lshl_b32 s44, s36, 1")
        a(f"s_add_u32 s44, s44, {j}")
        a("s_and_b32 s44, s44, 3")
        a("s_lshl_b32 s46, s37, 2")
        a("s_add_u32 s44, s44, s46")
        a(f"s_mov_b32 s{63+j}, s44")
        a("s_lshl_b32 s44, s44, 6")
        a(f"s_add_u32 s44, s44, {STAT_LDS+2048}")
        a("v_lshl_add_u32 v20, v2, 4, s44")
        a(f"ds_read_b128 {vr(140+4*j,4)}, v20")
    a("""
    v_mul_u32_u24 v20, 488, v6
    v_lshl_add_u32 v20, v2, 3, v20
    s_waitcnt lgkmcnt(0)
    """)
    for j in range(4):
        a(f"s_cmp_eq_u32 s{63+j}, 15")
        a(f"s_cbranch_scc1 L_g1_a_skip{j}")
        for mi in range(5):
            M, R = 128 + 2 * mi, 129 + 2 * mi
            acc = ACC + 4 * (mi * 4 + j)
            for e in range(4):
                a(f"v_fma_f32 v{acc+e}, -v{M}, v{140+4*j+e}, v{acc+e}")
            for e in range(4):
                a(f"v_mul_f32 v{acc+e}, v{R}, v{acc+e}")
            a(f"v_cvt_pk_bf16_f32 v22, v{acc}, v{acc+1}")
            a(f"v_cvt_pk_bf16_f32 v23, v{acc+2}, v{acc+3}")
            a(f"s_mul_i32 s44, s{58+mi}, {16*488}")
            a(f"s_lshl_b32 s46, s{63+j}, 5")
            a("s_add_u32 s44, s44, s46")
            a("v_add_u32 v21, s44, v20")
            a("ds_write_b64 v21, v[22:23]")
        a.label(f"L_g1_a_skip{j}")
    a("s_waitcnt lgkmcnt(0)")
    a("s_barrier")
    Q, KR, VR = 32, 48, 128
    a("""
    s_lshl_b32 s44, s36, 6
    v_add_u32 v20, s44, v0
    v_add_u32 v21, 2, v20
    v_mul_u32_u24 v21, 488, v21
    s_mul_i32 s44, s37, 40
    v_add_u32 v21, s44, v21
    """)
    for m in range(5):
        a(f"ds_read_b64 {vr(Q+2*m,2)}, v21 offset:{14*488 + 8*m}")
    for wi in range(8):
        for m in range(5):
            a(f"ds_read_b64 {vr(KR+10*wi+2*m,2)}, v21 offset:{(14-2*wi)*488 + 160 + 8*m}")
    for wi in range(8):
        for m in range(5):
            a(f"ds_read_b64 {vr(VR+10*wi+2*m,2)}, v21 offset:{(14-2*wi)*488 + 320 + 8*m}")
    a("""
    s_lshl_b32 s44, s33, 7
    v_add_u32 v22, s44, v20
    s_mov_b32 s17, 0x3e64f92e
    s_mov_b32 s18, 0xce6e0000
    s_mov_b32 s19, 0x3fb8aa3b
    s_mov_b32 s20, 0x07060302
    s_mov_b32 s21, 0x05040100
    s_waitcnt lgkmcnt(15)
    """)
    a("s_waitcnt lgkmcnt(0)")
    L = 24
    for m in range(10):
        for wi in range(8):
            c = "0" if m == 0 else f"v{L+wi}"
            a(f"v_dot2_f32_bf16 v{L+wi}, v{Q+m}, v{KR+10*wi+m}, {c}")
    a("s_nop 4")
    for p in range(4):
        l0, l1 = L + 2 * p, L + 2 * p + 1
        a(f"v_cvt_pk_bf16_f32 v23, v{l0}, v{l1}")
        a(f"v_lshlrev_b32 v{l0}, 16, v23")
        a(f"v_and_b32 v{l1}, s16, v23")
        a(f"v_mul_f32 v{l0}, s17, v{l0}")
        a(f"v_mul_f32 v{l1}, s17, v{l1}")
        a(f"v_cvt_pk_bf16_f32 v23, v{l0}, v{l1}")
        a(f"v_lshlrev_b32 v{l0}, 16, v23")
        a(f"v_and_b32 v{l1}, s16, v23")
    a("v_mov_b32 v23, s18")
    for wi in range(1, 8):
        a(f"v_cmp_le_u32 vcc, {2*wi}, v22")
        a("s_nop 1")
        a(f"v_cndmask_b32 v{L+wi}, v23, v{L+wi}, vcc")
    a(f"v_max3_f32 v23, v{L}, v{L+1}, v{L+2}")
    a(f"v_max3_f32 v23, v23, v{L+3}, v{L+4}")
    a(f"v_max3_f32 v23, v23, v{L+5}, v{L+6}")
    a(f"v_max_f32 v23, v23, v{L+7}")
    for wi in range(8):
        a(f"v_sub_f32 v{L+wi}, v{L+wi}, v23")
        a(f"v_mul_f32 v{L+wi}, s19, v{L+wi}")
        a(f"v_exp_f32 v{L+wi}, v{L+wi}")
    a("s_nop 0")
    a(f"v_add_f32 v23, v{L}, v{L+1}")
    for wi in range(2, 8):
        a(f"v_add_f32 v23, v23, v{L+wi}")
    a("v_rcp_f32 v23, v23")
    a("s_nop 0")
    for p in range(4):
        l0, l1 = L + 2 * p, L + 2 * p + 1
        a(f"v_mul_f32 v{l0}, v{l0}, v23")
        a(f"v_mul_f32 v{l1}, v{l1}, v23")
        a(f"v_cvt_pk_bf16_f32 v{32+p}, v{l0}, v{l1}")
    O = 48
    for p in range(4):
        for m in range(10):
            va, vb = VR + 10 * (2 * p) + m, VR + 10 * (2 * p + 1) + m
            a(f"v_perm_b32 v{68+2*(m&1)}, v{vb}, v{va}, s21")
            a(f"v_perm_b32 v{69+2*(m&1)}, v{vb}, v{va}, s20")
            c0 = "0" if p == 0 else f"v{O+2*m}"
            c1 = "0" if p == 0 else f"v{O+2*m+1}"
            a(f"v_dot2_f32_bf16 v{O+2*m}, v{68+2*(m&1)}, v{32+p}, {c0}")
            a(f"v_dot2_f32_bf16 v{O+2*m+1}, v{69+2*(m&1)}, v{32+p}, {c1}")
    a("s_nop 4")
    for m in range(10):
        a(f"v_cvt_pk_bf16_f32 v{72+m}, v{O+2*m}, v{O+2*m+1}")
    a(f"""
    v_lshrrev_b32 v23, 4, v22
    v_mul_u32_u24 v23, {A2_MT}, v23
    v_and_b32 v21, 15, v22
    v_lshl_add_u32 v23, v21, 4, v23
    s_mul_i32 s44, s34, 80
    s_mul_i32 s45, s37, 20
    s_add_u32 s44, s44, s45
    """)
    for m in range(5):
        a(f"s_add_u32 s45, s44, {4*m}")
        a("s_lshr_b32 s46, s45, 3")
        a("s_lshl_b32 s46, s46, 8")
        a("s_and_b32 s45, s45, 4")
        a("s_lshl_b32 s45, s45, 1")
        a("s_add_u32 s46, s46, s45")
        if A2_OFF:
            a(f"s_add_u32 s46, s46, {A2_OFF}")
        a(f"buffer_store_dwordx2 {vr(72+2*m,2)}, v23, s[12:15], s46 offen")
    a.stamp(8, True)
    a.stamp_flush(12, 1, 32)
    a.label("L_g1_done")
    a("s_endpgm")


def gen_k2(a):
    a.raw(".p2align 8")
    a.label("g2_kernel")
    a.vm = []
    a("""
    s_cmp_ge_u32 s2, 256
    s_cbranch_scc1 L_g2_done
    """)
    a.stamp(0)
    a("""
    s_load_dwordx2 s[4:5], s[0:1], 0
    s_load_dwordx2 s[10:11], s[0:1], 56
    s_load_dwordx2 s[28:29], s[0:1], 72
    v_lshrrev_b32 v1, 6, v0
    v_and_b32 v0, 63, v0
    s_nop 0
    v_readfirstlane_b32 s32, v1
    s_and_b32 s33, s2, 7
    s_lshr_b32 s3, s2, 3
    s_and_b32 s34, s3, 7
    s_lshr_b32 s3, s3, 3
    s_lshl_b32 s33, s33, 2
    s_add_u32 s33, s33, s3
    v_lshrrev_b32 v2, 4, v0
    v_lshlrev_b32 v5, 4, v0
    """)
    a(f"""
    s_mul_i32 s40, s32, 10
    s_lshl_b32 s41, s32, 3
    s_add_u32 s41, s41, 4
    s_cmp_lt_u32 s32, 2
    s_cselect_b32 s40, s40, s41
    s_lshl_b32 s47, s40, 10
    s_mul_i32 s48, s34, 68
    s_add_u32 s48, s48, s40
    s_mul_i32 s48, s48, 5120
    s_add_u32 s48, s48, {B2_OFF}
    s_mul_i32 s42, s32, 20480
    s_mul_i32 s45, s34, 160
    """)
    for mi in range(4):
        a(f"s_lshl_b32 s44, s33, 2")
        a(f"s_add_u32 s44, s44, {mi}")
        a(f"s_mul_i32 s44, s44, {A2_MT}")
        if A2_OFF:
            a(f"s_add_u32 s44, s44, {A2_OFF}")
        a(f"v_add_u32 v{10+mi}, s44, v5")
    a("v_add_u32 v14, 4096, v5")
    a("s_waitcnt lgkmcnt(0)")
    srd(a, 12, 28, WS_BYTES)
    srd(a, 20, 4, 2048 * 1280)
    srd(a, 24, 10, 2048 * 1280)
    ACC = 32
    ST = 112

    def issue(st):
        b = ST + 36 * (st & 3)
        for mi in range(4):
            a.vmem(f"buffer_load_dwordx4 {vr(b+4*mi,4)}, v{10+mi}, s[12:15], s47 offen", ("st", st))
        for j in range(4):
            a.vmem(f"buffer_load_dwordx4 {vr(b+16+4*j,4)}, v5, s[12:15], s48 offen offset:{1024*j}", ("st", st))
        a.vmem(f"buffer_load_dwordx4 {vr(b+32,4)}, v14, s[12:15], s48 offen", ("st", st))
        a("s_add_u32 s47, s47, 1024")
        a("s_add_u32 s48, s48, 5120")

    def body(n):
        a.vm = []
        a.stamp(1)
        for st in range(4):
            issue(st)
        a.stamp(2)
        for s in range(n):
            b = ST + 36 * (s & 3)
            a.wait_vm(("st", s))
            if s in (0, 3, 7):
                a.stamp({0: 3, 3: 4, 7: 5}[s])
            for j in range(5):
                for mi in range(4):
                    acc = ACC + 4 * (mi * 5 + j)
                    c = "0" if s == 0 else vr(acc, 4)
                    a(f"v_mfma_f32_16x16x32_bf16 {vr(acc,4)}, {vr(b+16+4*j,4)}, {vr(b+4*mi,4)}, {c}")
            if s + 4 < n:
                issue(s + 4)

    a("s_cmp_lt_u32 s32, 2")
    a("s_cbranch_scc0 L_g2_h")
    body(10)
    a("s_branch L_g2_red")
    a.label("L_g2_h")
    body(8)
    a.label("L_g2_red")
    a.stamp(6)
    a("s_nop 7")
    a("s_nop 7")
    a("v_add_u32 v20, s42, v5")
    for st in range(20):
        a(f"ds_write_b128 v20, {vr(ACC+4*st,4)} offset:{st*1024}")
    a("s_waitcnt lgkmcnt(0)")
    a("s_barrier")
    a.stamp(7, True)
    a.stamp_flush(12, 2, 32)
    a("s_mov_b32 s16, 0xffff0000")
    for r in range(3):
        if r == 2:
            a("s_cmp_ge_u32 s32, 4")
            a("s_cbranch_scc1 L_g2_done")
        a(f"s_add_u32 s40, s32, {8*r}")
        a("s_mul_i32 s41, s40, 52")
        a("s_lshr_b32 s41, s41, 8")
        a("s_mul_i32 s43, s41, 5")
        a("s_sub_u32 s43, s40, s43")
        a("""
        s_lshl_b32 s44, s33, 6
        s_lshl_b32 s41, s41, 4
        s_add_u32 s44, s44, s41
        v_and_b32 v21, 15, v0
        v_add_u32 v21, s44, v21
        v_mul_u32_u24 v21, 1280, v21
        v_lshl_add_u32 v21, v2, 3, v21
        s_lshl_b32 s43, s43, 5
        s_add_u32 s43, s43, s45
        v_add_u32 v21, s43, v21
        buffer_load_dwordx2 v[22:23], v21, s[20:23], 0 offen
        s_lshl_b32 s40, s40, 10
        v_add_u32 v20, s40, v5
        v_add_u32 v24, 81920, v20
        """)
        for w in range(8):
            if w < 4:
                a(f"ds_read_b128 {vr(32+4*w,4)}, v20 offset:{w*20480}")
            else:
                a(f"ds_read_b128 {vr(32+4*w,4)}, v24 offset:{(w-4)*20480}")
        a("s_waitcnt lgkmcnt(0)")
        for e in range(4):
            a(f"v_add_f32 v{32+e}, v{32+e}, v{36+e}")
            a(f"v_add_f32 v{40+e}, v{40+e}, v{44+e}")
            a(f"v_add_f32 v{48+e}, v{48+e}, v{52+e}")
            a(f"v_add_f32 v{56+e}, v{56+e}, v{60+e}")
            a(f"v_add_f32 v{40+e}, v{40+e}, v{48+e}")
            a(f"v_add_f32 v{40+e}, v{40+e}, v{56+e}")
        a("s_waitcnt vmcnt(0)")
        for p in range(2):
            a0, a1, b0, b1 = 32 + 2 * p, 33 + 2 * p, 40 + 2 * p, 41 + 2 * p
            a(f"v_cvt_pk_bf16_f32 v25, v{a0}, v{a1}")
            a(f"v_cvt_pk_bf16_f32 v26, v{b0}, v{b1}")
            a(f"v_lshlrev_b32 v{a0}, 16, v25")
            a(f"v_and_b32 v{a1}, s16, v25")
            a(f"v_lshlrev_b32 v{b0}, 16, v26")
            a(f"v_and_b32 v{b1}, s16, v26")
            a(f"v_lshlrev_b32 v25, 16, v{22+p}")
            a(f"v_and_b32 v26, s16, v{22+p}")
            a(f"v_add_f32 v{a0}, v{a0}, v25")
            a(f"v_add_f32 v{a1}, v{a1}, v26")
            a(f"v_cvt_pk_bf16_f32 v25, v{a0}, v{a1}")
            a(f"v_lshlrev_b32 v{a0}, 16, v25")
            a(f"v_and_b32 v{a1}, s16, v25")
            a(f"v_add_f32 v{a0}, v{a0}, v{b0}")
            a(f"v_add_f32 v{a1}, v{a1}, v{b1}")
            a(f"v_cvt_pk_bf16_f32 v{28+p}, v{a0}, v{a1}")
        a("buffer_store_dwordx2 v[28:29], v21, s[24:27], 0 offen")
        a("s_nop 1")
    a.label("L_g2_done")
    a("s_endpgm")


def kd(name, vgpr, sgpr=102):
    acc = (vgpr + 3) // 4 * 4
    return f""".p2align 6
.amdhsa_kernel {name}
  .amdhsa_next_free_vgpr {vgpr}
  .amdhsa_next_free_sgpr {sgpr}
  .amdhsa_accum_offset {acc}
  .amdhsa_group_segment_fixed_size 0
  .amdhsa_kernarg_size 80
  .amdhsa_user_sgpr_count 2
  .amdhsa_user_sgpr_kernarg_segment_ptr 1
  .amdhsa_system_sgpr_workgroup_id_x 1
.end_amdhsa_kernel
"""


def main(outpath):
    a = Asm()
    a.raw("; @launch kernel=g1_kernel grid=(256,1,1) block=(512,1,1) lds=163840")
    a.raw("; @launch kernel=g2_kernel grid=(256,1,1) block=(512,1,1) lds=163840")
    a.raw('.amdgcn_target "amdgcn-amd-amdhsa--gfx950"')
    a.raw(".text")
    for k in ("g1_kernel", "g2_kernel"):
        a.raw(f".globl {k}")
        a.raw(f".type {k},@function")
    gen_k1(a)
    gen_k2(a)
    a.raw('.section .rodata,"a"')
    a.raw(kd("g1_kernel", 244))
    a.raw(kd("g2_kernel", 256))
    open(outpath, "w").write(a.text())


if __name__ == "__main__":
    if len(sys.argv) > 2 and sys.argv[2] == "stamp":
        STAMP = True
    main(sys.argv[1] if len(sys.argv) > 1 else f"cdna_kernels/{NAME}.s")
```

```python
import sys, os

NAME = "parallel_sum__sliding_local_dilated__glu_gated_glu__prompt"
A2_OFF = 0
B2_OFF = 9 << 20
WS_BYTES = 16 << 20
A2_MT = 68 * 1024
STAMP = False
ST_FLAGS = os.environ.get("STF", "")
PFD = int(os.environ.get("PFD", "0"))
XP = os.environ.get("XP", "")
TLBPF = int(os.environ.get("TLBPF", "3"))
TLBAT = int(os.environ.get("TLBAT", "0"))
B2AT = int(os.environ.get("B2AT", "9"))
PFSCHED = eval(os.environ.get("PFSCHED", "[(0,4,6),(3,10,5),(6,15,5)]"))


class Asm:
    def __init__(self):
        self.lines = []
        self.vm = []
        self.ool = []

    def __call__(self, s):
        for ln in s.strip("\n").split("\n"):
            ln = ln.strip()
            if ln:
                self.lines.append("    " + ln)

    def label(self, l):
        self.lines.append(l + ":")

    def raw(self, s):
        self.lines.append(s)

    def text(self):
        return "\n".join(l for l in self.lines if l.strip() != "#CHUNK") + "\n"

    def capture(self, fn, *args):
        save = self.lines
        self.lines = []
        fn(*args)
        got = self.lines
        self.lines = save
        chunks, cur = [], []
        for ln in got:
            if ln.strip() == "#CHUNK":
                if cur:
                    chunks.append(cur)
                cur = []
            else:
                cur.append(ln)
        if cur:
            chunks.append(cur)
        return chunks

    def chunk(self):
        self.lines.append("#CHUNK")

    def vmem(self, s, tag, optional=False):
        self(s)
        self.vm.append((tag, optional))
        if not optional:
            self.chunk()

    def vm_count_after(self, tag):
        idx = max([i for i, (t, o) in enumerate(self.vm) if t == tag], default=-1)
        if idx < 0:
            return None
        return sum(1 for (t, o) in self.vm[idx + 1:] if not o)

    def wait_vm(self, tag, lgkm=False):
        n = self.vm_count_after(tag)
        parts = []
        if n is not None:
            assert n < 64
            parts.append(f"vmcnt({n})")
            idx = max([i for i, (t, o) in enumerate(self.vm) if t == tag])
            self.vm = self.vm[idx + 1:]
        if lgkm:
            parts.append("lgkmcnt(0)")
        if parts:
            self("s_waitcnt " + " ".join(parts))

    def stamp(self, n, last=False):
        if not STAMP:
            return
        self("s_memtime s[88:89]")
        self("s_waitcnt lgkmcnt(0)")
        self(f"s_mov_b32 s{70+n}, s88")
        if n == 0 or last:
            self("s_memrealtime s[88:89]")
            self("s_waitcnt lgkmcnt(0)")
            self(f"s_mov_b32 s{84 if n == 0 else 85}, s88")

    def stamp_flush(self, srd_ws, kidx, swave):
        if not STAMP:
            return
        self(f"s_lshl_b32 s88, s2, 3")
        self(f"s_add_u32 s88, s88, s{swave}")
        self(f"s_lshl_b32 s88, s88, 6")
        self(f"s_add_u32 s88, s88, {(12+kidx)<<20}")
        self("v_mov_b32 v1, 0")
        for n in range(16):
            self(f"v_mov_b32 v2, s{70+n}")
            self(f"buffer_store_dword v2, v1, s[{srd_ws}:{srd_ws+3}], s88 offen offset:{4*n}")


def srd(a, d, base, nbytes):
    a(f"s_mov_b32 s{d}, s{base}")
    a(f"s_mov_b32 s{d+1}, s{base+1}")
    a(f"s_mov_b32 s{d+2}, {nbytes}")
    a(f"s_mov_b32 s{d+3}, 0x00020000")


def vr(b, n):
    return f"v[{b}:{b+n-1}]"


def unswap23(a, dst, src, t0, t1):
    a(f"v_lshrrev_b32 v{t0}, 1, v{src}")
    a(f"v_and_b32 v{t0}, 4, v{t0}")
    a(f"v_lshlrev_b32 v{t1}, 1, v{src}")
    a(f"v_and_b32 v{t1}, 8, v{t1}")
    a(f"v_and_b32 v{dst}, 0x13, v{src}")
    a(f"v_or3_b32 v{dst}, v{dst}, v{t0}, v{t1}")


def divsmall(a, q, p, d, lim=1024):
    m = (65536 + d - 1) // d
    for x in range(lim):
        assert (x * m) >> 16 == x // d, (d, x)
    a(f"v_mul_u32_u24 v{q}, {m}, v{p}")
    a(f"v_lshrrev_b32 v{q}, 16, v{q}")


def sdiv(a, q, p, d, lim):
    m = (65536 + d - 1) // d
    for x in range(lim):
        assert (x * m) >> 16 == x // d, (d, x)
    a(f"s_mul_i32 s{q}, s{p}, {m}")
    a(f"s_lshr_b32 s{q}, s{q}, 16")


def red_g(a, v, t):
    a(f"v_mov_b32 v{t}, v{v}")
    a("s_nop 1")
    a(f"v_permlane32_swap_b32 v{v}, v{t}")
    a("s_nop 1")
    a(f"v_add_f32 v{v}, v{v}, v{t}")
    a(f"v_mov_b32 v{t}, v{v}")
    a("s_nop 1")
    a(f"v_permlane16_swap_b32 v{v}, v{t}")
    a("s_nop 1")
    a(f"v_add_f32 v{v}, v{v}, v{t}")


NK = 20
STAT_LDS = 156 * 1024
CS_LDS = STAT_LDS + 2560
SCR_LDS = 144 * 1024
VONE = 228
TMP = 20


def k1_mainloop(a, NM, NN, dma_fn, xaddr_fn, waddr_fn, ACC, FR, ncs, nrs, CS, RS, hooks=None, mstat=None, skipj=None):
    FS = 4 * NM + 4 * NN

    def xfrag(s, mi):
        return FR + s * FS + 4 * mi

    def wfrag(s, j):
        return FR + s * FS + 4 * NM + 4 * j

    def reads(ks):
        s = ks & 1
        out = []
        for mi in range(NM):
            v, off = xaddr_fn(mi, ks)
            out.append(f"ds_read_b128 {vr(xfrag(s,mi),4)}, v{v} offset:{off}")
        for j in range(NN):
            v, off, dt = waddr_fn(j, ks)
            out.append(f"ds_read_b64_tr_b16 {vr(wfrag(s,j),2)}, v{v} offset:{off}")
            out.append(f"ds_read_b64_tr_b16 {vr(wfrag(s,j)+2,2)}, v{v} offset:{off+dt}")
        return out

    def mfmas(ks):
        s = ks & 1
        out = []
        for j in range(NN):
            grp = []
            for mi in range(NM):
                acc = ACC + 4 * (mi * NN + j)
                c = "0" if ks == 0 else vr(acc, 4)
                grp.append(f"v_mfma_f32_16x16x32_bf16 {vr(acc,4)}, {vr(wfrag(s,j),4)}, {vr(xfrag(s,mi),4)}, {c}")
            if skipj and j in skipj and "noskip" not in XP:
                lab = f"L_skj_{a.tag}_{ks}_{j}"
                out.append(f"s_cmp_eq_u32 s{skipj[j]}, 15\ns_cbranch_scc1 {lab}\n" + "\n".join(grp) + f"\n{lab}:")
            else:
                out.extend(grp)
        return out

    def stats(ks):
        s = ks & 1
        out = []
        for j in range(ncs):
            c = "0" if ks == 0 else vr(CS + 4 * j, 4)
            out.append(f"v_mfma_f32_16x16x32_bf16 {vr(CS+4*j,4)}, {vr(wfrag(s,j),4)}, {vr(VONE,4)}, {c}")
        valu = []
        if mstat is not None:
            for mi in range(2):
                R0, Q0 = mstat + 8 * mi, mstat + 8 * mi + 4
                c0 = "0" if ks == 0 else vr(R0, 4)
                c1 = "0" if ks == 0 else vr(Q0, 4)
                m0 = f"v_mfma_f32_16x16x32_bf16 {vr(R0,4)}, {vr(VONE,4)}, {vr(xfrag(s,mi),4)}, {c0}"
                m1 = f"v_mfma_f32_16x16x32_bf16 {vr(Q0,4)}, {vr(xfrag(s,mi),4)}, {vr(xfrag(s,mi),4)}, {c1}"
                if "noms" in XP:
                    continue
                if mi == 0:
                    out.extend([m0, m1] if "nosq" not in XP else [m0])
                else:
                    lab = f"L_ms_{a.tag}_{ks}"
                    out.append(f"s_cmp_eq_u32 s37, 3\ns_cbranch_scc1 {lab}_o\n{lab}:")
                    a.ool.append(f"{lab}_o:\n{m0}\n{m1}\ns_branch {lab}")
            return out, valu
        for mi in range(nrs):
            S0, S1, Q0, Q1 = [RS + 4 * mi + i for i in range(4)]
            for d in range(4):
                x = xfrag(s, mi) + d
                t0, t1 = TMP + 2 * (d & 1), TMP + 2 * (d & 1) + 1
                valu.append(f"v_lshlrev_b32 v{t0}, 16, v{x}")
                valu.append(f"v_and_b32 v{t1}, s69, v{x}")
                if ks == 0 and d == 0:
                    valu.append(f"v_mov_b32 v{S0}, v{t0}")
                    valu.append(f"v_mov_b32 v{S1}, v{t1}")
                    valu.append(f"v_mul_f32 v{Q0}, v{t0}, v{t0}")
                    valu.append(f"v_mul_f32 v{Q1}, v{t1}, v{t1}")
                else:
                    valu.append(f"v_add_f32 v{S0}, v{S0}, v{t0}")
                    valu.append(f"v_add_f32 v{S1}, v{S1}, v{t1}")
                    valu.append(f"v_fmac_f32 v{Q0}, v{t0}, v{t0}")
                    valu.append(f"v_fmac_f32 v{Q1}, v{t1}, v{t1}")
        if "novalu" in XP: valu = []
        if "nocs" in XP: out = []
        return out, valu

    a.stamp(2)
    a.wait_vm(("st", 0))
    a("s_barrier")
    a.stamp(3)
    for r in reads(0):
        a(r)
    for ks in range(NK):
        if ks + 1 < NK:
            a.wait_vm(("st", ks + 1), lgkm=True)
            a("s_barrier")
            if ks in (4, 10, 16):
                a.stamp({4: 4, 10: 5, 16: 6}[ks])
            if hooks and ks in hooks:
                hooks[ks]()
            dm = a.capture(dma_fn, ks + 4) if ks + 4 < NK else []
            if "nodma" in XP:
                dm = []; a.vm = []
            rd = reads(ks + 1)
            if "nolds" in XP: rd = []
        else:
            a("s_waitcnt lgkmcnt(0)")
            rd = []
            dm = []
        mf = mfmas(ks)
        smf, stt = stats(ks)
        mf = mf + smf
        nr = ns = nd = 0
        L = len(mf)
        for i, m in enumerate(mf):
            a(m)
            while nd < len(dm) and nd < 1 + i * len(dm) // (L - 2):
                a.lines.extend(dm[nd]); nd += 1
            while nr < len(rd) and nr < (i + 1) * len(rd) // max(1, L - 6):
                a(rd[nr]); nr += 1
            while ns < len(stt) and ns < (i + 1) * len(stt) // L:
                a(stt[ns]); ns += 1
        while nd < len(dm):
            a.lines.extend(dm[nd]); nd += 1
        while nr < len(rd):
            a(rd[nr]); nr += 1
        while ns < len(stt):
            a(stt[ns]); ns += 1


def rowstat_math(a, S, t):
    Q = S + 1
    a(f"v_mul_f32 v{S}, s17, v{S}")
    a(f"v_mul_f32 v{Q}, s17, v{Q}")
    a(f"v_fma_f32 v{Q}, -v{S}, v{S}, v{Q}")
    a(f"v_max_f32 v{Q}, 0, v{Q}")
    a(f"v_cvt_pk_bf16_f32 v{t}, v{S}, v{Q}")
    a(f"v_lshlrev_b32 v{S}, 16, v{t}")
    a(f"v_and_b32 v{Q}, s16, v{t}")
    a(f"v_add_f32 v{Q}, 0x3727c5ac, v{Q}")
    a(f"v_cvt_pk_bf16_f32 v{t}, v{Q}, v{Q}")
    a(f"v_and_b32 v{Q}, s16, v{t}")
    a(f"v_sqrt_f32 v{Q}, v{Q}")
    a("s_nop 0")
    a(f"v_cvt_pk_bf16_f32 v{t}, v{Q}, v{Q}")
    a(f"v_and_b32 v{S+3}, s16, v{t}")
    a(f"v_rcp_f32 v{t}, v{S+3}")
    a("s_nop 0")
    a(f"v_fma_f32 v{Q}, -v{S+3}, v{t}, 1.0")
    a(f"v_fma_f32 v{Q}, v{Q}, v{t}, v{t}")
    a(f"v_mul_f32 v{S+2}, 0xbfb8aa3b, v{Q}")


def gen_k1(a):
    a.raw(".p2align 8")
    a.label("g1_kernel")
    a("""
    s_cmp_ge_u32 s2, 256
    s_cbranch_scc1 L_g1_done
    """)
    a.stamp(0)
    a("""
    s_load_dwordx4 s[4:7], s[0:1], 0
    s_load_dwordx2 s[52:53], s[0:1], 16
    s_load_dwordx4 s[8:11], s[0:1], 32
    s_load_dwordx2 s[54:55], s[0:1], 48
    s_load_dwordx2 s[56:57], s[0:1], 72
    v_lshrrev_b32 v1, 6, v0
    v_and_b32 v0, 63, v0
    s_nop 0
    v_readfirstlane_b32 s32, v1
    s_and_b32 s34, s2, 7
    s_lshr_b32 s3, s2, 3
    s_lshr_b32 s33, s3, 1
    s_and_b32 s3, s3, 1
    s_lshr_b32 s36, s32, 2
    s_and_b32 s37, s32, 3
    v_lshrrev_b32 v2, 4, v0
    v_bfe_u32 v3, v0, 2, 2
    v_and_b32 v4, 3, v0
    v_lshlrev_b32 v5, 4, v0
    v_mov_b32 v228, 0x3f803f80
    v_mov_b32 v229, 0x3f803f80
    v_mov_b32 v230, 0x3f803f80
    v_mov_b32 v231, 0x3f803f80
    s_mov_b32 s69, 0xffff0000
    v_and_b32 v6, 15, v0
    s_waitcnt lgkmcnt(0)
    """)
    srd(a, 12, 56, WS_BYTES)
    srd(a, 28, 4, 2048 * 1280)
    a("""
    v_lshrrev_b32 v20, 3, v0
    v_and_b32 v21, 7, v0
    v_xor_b32 v21, v21, v20
    v_mul_u32_u24 v7, 1280, v20
    v_lshl_add_u32 v7, v21, 4, v7
    """)
    a("""
    v_and_b32 v20, 7, v6
    v_xor_b32 v21, v2, v20
    v_lshlrev_b32 v8, 7, v20
    v_lshl_add_u32 v8, v21, 4, v8
    v_lshrrev_b32 v20, 3, v6
    v_lshl_add_u32 v8, v20, 10, v8
    """)
    a("""
    v_and_b32 v20, 1, v2
    v_lshl_add_u32 v20, v20, 2, v3
    v_lshrrev_b32 v21, 1, v2
    v_lshl_add_u32 v9, v21, 4, v20
    """)

    def b2_issue():
        a("""
        s_mul_i32 s58, s2, 3
        s_add_u32 s58, s58, s32
        s_cmp_lt_u32 s32, 3
        s_cselect_b32 s58, s58, 4095
        s_cmp_lt_u32 s58, 680
        s_cbranch_scc0 L_b2_skip1_%s
        """ % a.tag)
        sdiv(a, 59, 58, 10, 680)
        a("""
        s_mul_i32 s60, s59, 10
        s_sub_u32 s60, s58, s60
        s_cmp_lt_u32 s59, 20
        s_cselect_b32 s64, s52, s54
        s_cselect_b32 s65, s53, s55
        s_mov_b32 s66, 1966080
        s_cselect_b32 s66, 819200, s66
        s_mov_b32 s67, 0x00020000
        s_sub_u32 s61, s59, 20
        s_cmp_lt_u32 s59, 20
        s_cselect_b32 s61, s59, s61
        s_mul_i32 s61, s61, 40960
        s_lshl_b32 s62, s60, 7
        s_add_u32 s61, s61, s62
        s_lshl_b32 s62, s32, 12
        s_add_u32 s62, s62, %d
        v_lshrrev_b32 v20, 3, v0
        v_and_b32 v21, 7, v0
        """ % SCR_LDS)
        for i in range(4):
            a(f"v_add_u32 v22, {8*i}, v20")
            unswap23(a, 23, 22, 246, 247)
            a("v_mul_u32_u24 v23, 1280, v23")
            a("v_lshl_add_u32 v23, v21, 4, v23")
            a(f"s_add_u32 m0, s62, {1024*i}")
            a("s_nop 0")
            a.vmem("buffer_load_dwordx4 v23, s[64:67], s61 offen lds", "b2", optional=True)
        a.label("L_b2_skip1_%s" % a.tag)

    def b2_finish():
        a("s_cmp_lt_u32 s58, 680")
        a("s_cbranch_scc0 L_b2_skip2_%s" % a.tag)
        a("v_lshlrev_b32 v1, 7, v9")
        a("v_lshl_add_u32 v1, v4, 3, v1")
        a("v_add_u32 v1, s62, v1")
        regs = [244, 248, 252, 20]
        for jj in range(4):
            a(f"ds_read_b64_tr_b16 {vr(regs[jj],2)}, v1 offset:{32*jj}")
            a(f"ds_read_b64_tr_b16 {vr(regs[jj]+2,2)}, v1 offset:{32*jj+1024}")
        a("s_waitcnt lgkmcnt(0)")
        for jj in range(4):
            a("s_lshl_b32 s61, s60, 2")
            a(f"s_add_u32 s61, s61, {jj}")
            sdiv(a, 62, 61, 5, 40)
            a("s_mul_i32 s63, s62, 5")
            a("s_sub_u32 s63, s61, s63")
            a("s_mul_i32 s62, s62, 68")
            a("s_add_u32 s62, s62, s59")
            a("s_mul_i32 s62, s62, 5")
            a("s_add_u32 s62, s62, s63")
            a("s_lshl_b32 s62, s62, 10")
            a(f"s_add_u32 s62, s62, {B2_OFF}")
            a.vmem(f"buffer_store_dwordx4 {vr(regs[jj],4)}, v5, s[12:15], s62 offen", "b2s", optional=True)
        a("s_nop 4")
        a.label("L_b2_skip2_%s" % a.tag)

    a("s_cmp_eq_u32 s3, 0")
    a("s_cbranch_scc1 L_g1_attn")

    a.tag = "g"
    a.vm = []
    AR_G = 16384
    BR_G = 49152
    BS_G = 24576
    srd(a, 16, 8, 640 * 3072)
    srd(a, 20, 10, 640 * 3072)
    a("""
    s_cmp_lt_u32 s32, 4
    s_cselect_b32 s24, s8, s10
    s_cselect_b32 s25, s9, s11
    s_mov_b32 s26, 1966080
    s_mov_b32 s27, 0x00020000
    s_mov_b32 s43, 12288
    s_cselect_b32 s43, 0, s43
    """)
    a(f"""
    s_lshl_b32 s40, s32, 10
    s_add_u32 s41, s40, {BR_G}
    s_add_u32 s42, s40, {BR_G+12288}
    s_lshl_b32 s44, s37, 10
    s_add_u32 s43, s43, s44
    s_add_u32 s43, s43, {BR_G+8192}
    """)
    a("""
    s_lshl_b32 s44, s33, 4
    s_add_u32 s44, s44, s32
    s_mul_i32 s44, s44, 10240
    v_add_u32 v10, s44, v7
    v_add_u32 v11, 81920, v10
    s_mul_i32 s45, s34, 384
    """)

    def gate_off(dst, sInstr):
        a(f"s_lshl_b32 s44, s{sInstr}, 6")
        a(f"v_add_u32 v20, s44, v0")
        divsmall(a, 21, 20, 48)
        a("v_mul_u32_u24 v22, 48, v21")
        a("v_sub_u32 v22, v20, v22")
        a("v_and_b32 v23, 7, v21")
        a("v_lshlrev_b32 v23, 1, v23")
        a("v_xor_b32 v22, v22, v23")
        a("v_cmp_le_u32 vcc, 24, v22")
        a("s_nop 1")
        a("v_cndmask_b32 v23, 0, 1, vcc")
        a("v_mul_u32_u24 v24, 24, v23")
        a("v_sub_u32 v22, v22, v24")
        a("v_lshl_add_u32 v21, v23, 4, v21")
        unswap23(a, 24, 21, 25, 26)
        a("v_mul_u32_u24 v24, 3072, v24")
        a("v_lshl_add_u32 v24, v22, 4, v24")
        a(f"v_add_u32 v{dst}, s45, v24")
    gate_off(12, 32)
    a("s_add_u32 s46, s37, 8")
    gate_off(13, 46)
    a("s_mov_b32 s47, 0")
    a("s_mov_b32 s48, 0")

    def dma_g(st):
        sb = (st & 3) * BS_G
        if st % 2 == 0:
            ab = ((st // 2) % 3) * AR_G
            a(f"s_add_u32 m0, s40, {ab}")
            a("s_nop 0")
            a.vmem("buffer_load_dwordx4 v10, s[28:31], s47 offen lds", ("st", st))
            a(f"s_add_u32 m0, s40, {ab+8192}")
            a("s_nop 0")
            a.vmem("buffer_load_dwordx4 v11, s[28:31], s47 offen lds", ("st", st))
            a("s_add_u32 s47, s47, 128")
        a(f"s_add_u32 m0, s41, {sb}")
        a("s_nop 0")
        a.vmem("buffer_load_dwordx4 v12, s[16:19], s48 offen lds", ("st", st))
        a(f"s_add_u32 m0, s42, {sb}")
        a("s_nop 0")
        a.vmem("buffer_load_dwordx4 v12, s[20:23], s48 offen lds", ("st", st))
        a(f"s_add_u32 m0, s43, {sb}")
        a("s_nop 0")
        a.vmem("buffer_load_dwordx4 v13, s[24:27], s48 offen lds", ("st", st))
        a("s_add_u32 s48, s48, 98304")

    a.stamp(1)
    for st in range(4):
        dma_g(st)
    def tlb_g(k0=4, nk=16, tg=0):
        a(f"""
        s_mul_i32 s44, s33, {2*nk}
        s_add_u32 s44, s44, {32*k0}
        v_min_u32 v20, {2*nk-1}, v0
        v_add_u32 v20, s44, v20
        v_mul_u32_u24 v20, 3072, v20
        v_add_u32 v20, s45, v20
        """)
        offs = {1: [0], 2: [0, 256], 3: [0, 128, 256]}[TLBPF]
        for li, off in enumerate(offs):
            for mtx, sr in enumerate((16, 20)):
                wv = 2 * li + mtx
                a(f"s_cmp_eq_u32 s32, {wv}")
                a(f"s_cbranch_scc0 L_tlb_g{wv}_{tg}")
                a.vmem(f"buffer_load_dword v244, v20, s[{sr}:{sr+3}], 0 offen offset:{off}", "pf", optional=True)
                a.label(f"L_tlb_g{wv}_{tg}")
    if TLBPF and TLBAT < 0:
        tlb_g()

    def pf_w_g():
        a("""
        s_and_b32 s44, s32, 1
        s_cmp_eq_u32 s44, 0
        s_cselect_b32 s64, s8, s10
        s_cselect_b32 s65, s9, s11
        s_mov_b32 s66, 1966080
        s_mov_b32 s67, 0x00020000
        s_add_u32 s44, s33, 4
        s_lshl_b32 s44, s44, 5
        s_bfe_u32 s46, s32, 0x10001
        s_lshl_b32 s46, s46, 4
        s_add_u32 s44, s44, s46
        v_lshrrev_b32 v20, 2, v0
        v_add_u32 v20, s44, v20
        v_mul_u32_u24 v20, 3072, v20
        v_min_u32 v21, 2, v4
        v_lshl_add_u32 v20, v21, 7, v20
        v_add_u32 v20, s45, v20
        """)
        a.vmem("buffer_load_dword v244, v20, s[64:67], 0 offen", "pf")

    def pf_x_g():
        a("""
        s_lshl_b32 s44, s33, 4
        s_add_u32 s44, s44, s32
        s_lshl_b32 s44, s44, 3
        v_lshrrev_b32 v20, 3, v0
        v_add_u32 v20, s44, v20
        v_mul_u32_u24 v20, 1280, v20
        v_and_b32 v21, 7, v0
        v_lshl_add_u32 v20, v21, 7, v20
        """)
        a.vmem("buffer_load_dword v245, v20, s[28:31], 0 offen offset:256", "pf")

    XA = 208
    for mi in range(4):
        a(f"s_add_u32 s44, s37, {mi}")
        a("s_and_b32 s44, s44, 3")
        a("s_lshl_b32 s46, s36, 2")
        a("s_add_u32 s44, s44, s46")
        a("s_lshl_b32 s44, s44, 11")
        a(f"v_add_u32 v{XA+mi}, s44, v8")
        a(f"v_xor_b32 v{XA+4+mi}, 64, v{XA+mi}")
    WA = 216
    a(f"""
    v_and_b32 v20, 7, v9
    v_lshrrev_b32 v21, 1, v2
    v_mul_u32_u24 v21, 12, v21
    s_mul_i32 s44, s37, 3
    v_add_u32 v21, s44, v21
    v_mul_u32_u24 v22, 768, v20
    v_lshl_add_u32 v22, v4, 3, v22
    v_add_u32 v22, {BR_G}, v22
    s_mul_i32 s44, s36, 12288
    s_sub_u32 s46, 12288, s44
    """)
    for i in range(3):
        a(f"v_add_u32 v23, {i}, v21")
        a("v_xor_b32 v23, v23, v20")
        a(f"v_lshl_add_u32 v23, v23, 5, v22")
        a(f"v_add_u32 v{WA+i}, s44, v23")
        a(f"v_add_u32 v{WA+3+i}, s46, v23")
        a(f"v_add_u32 v{WA+6+i}, {2*BS_G}, v{WA+i}")
        a(f"v_add_u32 v{WA+9+i}, {2*BS_G}, v{WA+3+i}")

    def xaddr_g(mi, ks):
        return XA + 4 * (ks & 1) + mi, ((ks // 2) % 3) * AR_G

    def waddr_g(j, ks):
        slot = ks & 3
        v = WA + (6 if slot >= 2 else 0) + j
        return v, (slot & 1) * BS_G, 6144

    ACC = 32
    FR = 128
    CS, RS = 232, 24
    a("""
    s_lshl_b32 s44, s33, 1
    v_and_b32 v14, 1, v0
    v_add_u32 v14, s44, v14
    v_mul_u32_u24 v14, 3072, v14
    v_bfe_u32 v20, v0, 1, 2
    v_min_u32 v20, 2, v20
    v_lshl_add_u32 v14, v20, 7, v14
    v_add_u32 v14, s45, v14
    s_lshl_b32 s44, s33, 7
    v_add_u32 v15, s44, v0
    v_mul_u32_u24 v15, 1280, v15
    """)

    def mk_roll(ks, wsrds, wstride, extra=None):
        def f():
            if extra:
                extra()
            if PFD and ks + PFD < NK:
                lab = f"L_pf_{a.tag}_{ks}"
                a(f"s_cmp_eq_u32 s32, {ks & 7}")
                a(f"s_cbranch_scc0 {lab}")
                a(f"s_mov_b32 s44, {(ks+PFD)*wstride}")
                for sr in wsrds:
                    a.vmem(f"buffer_load_dword v244, v14, s[{sr}:{sr+3}], s44 offen", "pf", optional=True)
                a.label(lab)
            if PFD and ks % 2 == 0 and (ks + PFD) // 2 + 1 < 10:
                lab = f"L_pfx_{a.tag}_{ks}"
                a(f"s_cmp_eq_u32 s32, {(ks + 1) & 7}")
                a(f"s_cbranch_scc0 {lab}")
                a(f"s_mov_b32 s44, {((ks+PFD)//2+1)*128}")
                a.vmem(f"buffer_load_dword v245, v15, s[28:31], s44 offen", "pf", optional=True)
                a.label(lab)
        return f
    hx = {B2AT: b2_issue, B2AT + 6: b2_finish}
    for bi, (at, k0, nk) in enumerate(PFSCHED):
        hx[at] = (lambda k0=k0, nk=nk, bi=bi: tlb_g(k0, nk, bi))
    hk = {ks: mk_roll(ks, (16, 20), 98304, hx.get(ks)) for ks in range(NK - 1)}
    k1_mainloop(a, 4, 6, dma_g, xaddr_g, waddr_g, ACC, FR, 3, 1, CS, RS, hooks=hk)
    a.stamp(7)
    a("s_mov_b32 s16, 0xffff0000")
    a("s_mov_b32 s17, 0x3acccccd")
    a("v_add_f32 v16, v24, v25")
    a("v_add_f32 v17, v26, v27")
    for v in (16, 17):
        red_g(a, v, 20)
    rowstat_math(a, 16, 20)
    a(f"""
    s_lshl_b32 s44, s36, 2
    s_add_u32 s44, s44, s37
    s_lshl_b32 s44, s44, 8
    s_add_u32 s44, s44, {STAT_LDS}
    v_lshl_add_u32 v20, v6, 4, s44
    ds_write_b128 v20, v[16:19]
    s_mul_i32 s44, s36, 12
    s_mul_i32 s46, s37, 3
    s_add_u32 s44, s44, s46
    s_lshl_b32 s44, s44, 6
    s_add_u32 s44, s44, {CS_LDS}
    v_lshl_add_u32 v20, v2, 4, s44
    ds_write_b128 v20, v[232:235]
    ds_write_b128 v20, v[236:239] offset:64
    ds_write_b128 v20, v[240:243] offset:128
    s_waitcnt lgkmcnt(0)
    s_barrier
    """)
    for mi in range(4):
        a(f"s_add_u32 s44, s37, {mi}")
        a("s_and_b32 s44, s44, 3")
        a("s_lshl_b32 s46, s36, 2")
        a("s_add_u32 s44, s44, s46")
        a("s_lshl_b32 s44, s44, 8")
        a(f"s_add_u32 s44, s44, {STAT_LDS}")
        a("v_lshl_add_u32 v20, v6, 4, s44")
        a(f"ds_read_b128 {vr(128+4*mi,4)}, v20")
    a(f"""
    s_mul_i32 s44, s37, 192
    s_add_u32 s44, s44, {CS_LDS}
    v_lshl_add_u32 v20, v2, 4, s44
    """)
    for i in range(3):
        a(f"ds_read_b128 {vr(144+4*i,4)}, v20 offset:{64*i}")
        a(f"ds_read_b128 {vr(156+4*i,4)}, v20 offset:{768+64*i}")
    a(f"""
    v_lshrrev_b32 v21, 1, v2
    v_lshl_add_u32 v20, v21, 4, v6
    v_lshlrev_b32 v20, 4, v20
    v_and_b32 v21, 1, v2
    v_lshl_add_u32 v20, v21, 3, v20
    s_lshl_b32 s44, s33, 3
    s_lshl_b32 s45, s36, 2
    s_add_u32 s44, s44, s45
    s_mul_i32 s44, s44, {A2_MT}
    s_add_u32 s44, s44, {A2_OFF + 20*1024}
    v_add_u32 v20, s44, v20
    s_mul_i32 s45, s34, 12
    s_mul_i32 s46, s37, 3
    s_add_u32 s45, s45, s46
    s_lshl_b32 s45, s45, 9
    s_add_u32 s46, s45, 512
    s_add_u32 s47, s45, 1024
    """)
    for mi in range(4):
        a(f"s_add_u32 s44, s37, {mi}")
        a("s_and_b32 s44, s44, 3")
        a(f"s_mul_i32 s44, s44, {A2_MT}")
        a(f"v_add_u32 v{24+mi}, s44, v20")
    a("s_waitcnt lgkmcnt(0)")

    def g_epi(swapped):
        for mi in range(4):
            P = 128 + 4 * mi
            for i in range(3):
                g = ACC + 4 * (mi * 6 + (3 + i if swapped else i))
                u = ACC + 4 * (mi * 6 + (i if swapped else 3 + i))
                for h in (0, 2):
                    a(f"v_pk_fma_f32 {vr(g+h,2)}, {vr(144+4*i+h,2)}, {vr(P,2)}, {vr(g+h,2)} op_sel_hi:[1,0,1] neg_lo:[0,1,0] neg_hi:[0,1,0]")
                for h in (0, 2):
                    a(f"v_pk_mul_f32 {vr(g+h,2)}, {vr(g+h,2)}, {vr(P+2,2)} op_sel_hi:[1,0]")
                for e in range(4):
                    a(f"v_exp_f32 v{g+e}, v{g+e}")
                for h in (0, 2):
                    a(f"v_pk_fma_f32 {vr(u+h,2)}, {vr(156+4*i+h,2)}, {vr(P,2)}, {vr(u+h,2)} op_sel_hi:[1,0,1] neg_lo:[0,1,0] neg_hi:[0,1,0]")
                for h in (0, 2):
                    a(f"v_pk_fma_f32 {vr(g+h,2)}, {vr(g+h,2)}, {vr(P+2,2)}, {vr(P+2,2)} op_sel:[0,1,1] op_sel_hi:[1,1,1]")
                for e in range(4):
                    a(f"v_rcp_f32 v{g+e}, v{g+e}")
                a("s_nop 0")
                for h in (0, 2):
                    a(f"v_pk_mul_f32 {vr(g+h,2)}, {vr(g+h,2)}, {vr(u+h,2)}")
                a(f"v_cvt_pk_bf16_f32 v{u}, v{g}, v{g+1}")
                a(f"v_cvt_pk_bf16_f32 v{u+1}, v{g+2}, v{g+3}")
                a(f"buffer_store_dwordx2 {vr(u,2)}, v{24+mi}, s[12:15], s{45+i} offen{ST_FLAGS}")
    a("s_cmp_eq_u32 s36, 0")
    a("s_cbranch_scc0 L_g1_g_sw")
    g_epi(False)
    a("s_branch L_g1_g_end")
    a.label("L_g1_g_sw")
    g_epi(True)
    a.label("L_g1_g_end")
    a.stamp(8, True)
    a.stamp_flush(12, 1, 32)
    a("s_endpgm")

    a.label("L_g1_attn")
    a.tag = "a"
    a.vm = []
    AR_A = 18432
    BR_A = 55296
    BS_A = 15360
    srd(a, 16, 6, 640 * 3840)
    a(f"""
    s_lshl_b32 s42, s32, 10
    s_add_u32 s40, s42, {BR_A}
    s_add_u32 s41, s42, {BR_A+8192}
    s_mul_i32 s45, s34, 160
    """)

    def qkv_off(dst, sInstr):
        a(f"s_lshl_b32 s44, s{sInstr}, 6")
        a(f"v_add_u32 v20, s44, v0")
        divsmall(a, 21, 20, 30)
        a("v_mul_u32_u24 v22, 30, v21")
        a("v_sub_u32 v22, v20, v22")
        divsmall(a, 23, 22, 10)
        a("v_mul_u32_u24 v24, 10, v23")
        a("v_sub_u32 v22, v22, v24")
        a("v_and_b32 v21, 31, v21")
        unswap23(a, 24, 21, 25, 26)
        a("v_mul_u32_u24 v24, 3840, v24")
        a("v_mul_u32_u24 v23, 1280, v23")
        a("v_add_u32 v24, v24, v23")
        a("v_lshl_add_u32 v24, v22, 4, v24")
        a(f"v_add_u32 v{dst}, s45, v24")

    def ajob_off(dst, sJob):
        a("s_lshl_b32 s44, s33, 4")
        a(f"s_add_u32 s44, s44, s{sJob}")
        a("s_max_u32 s44, s44, 2")
        a("s_sub_u32 s44, s44, 2")
        a("s_mul_i32 s44, s44, 10240")
        a(f"v_add_u32 v{dst}, s44, v7")
    qkv_off(12, 32)
    a("s_add_u32 s46, s32, 8")
    a("s_min_u32 s46, s46, 14")
    qkv_off(13, 46)
    ajob_off(10, 32)
    a("s_add_u32 s46, s32, 8")
    ajob_off(11, 46)
    a("s_and_b32 s46, s32, 1")
    a("s_add_u32 s46, s46, 16")
    ajob_off(19, 46)
    a("""
    s_mov_b32 s47, 0
    s_mov_b32 s48, 0
    """)

    def dma_a(st):
        sb = (st & 3) * BS_A
        a(f"s_add_u32 m0, s40, {sb}")
        a("s_nop 0")
        a.vmem("buffer_load_dwordx4 v12, s[16:19], s48 offen lds", ("st", st))
        a("s_cmp_eq_u32 s32, 7")
        lab = f"L_a_s1_{st}"
        a(f"s_cbranch_scc1 {lab}")
        a(f"s_add_u32 m0, s41, {sb}")
        a("s_nop 0")
        a.vmem("buffer_load_dwordx4 v13, s[16:19], s48 offen lds", ("st", st), optional=True)
        a.label(lab)
        a("s_add_u32 s48, s48, 122880")
        if st % 2 == 0:
            ab = ((st // 2) % 3) * AR_A
            lab = f"L_a_s4_{st}"
            a("s_cmp_ge_u32 s32, 6")
            a(f"s_cbranch_scc1 {lab}_o")
            a.label(lab)
            a.vm.append((("st", st), True))
            a.ool.append(f"{lab}_o:\ns_add_u32 m0, s42, {ab + 10*1024}\ns_nop 0\nbuffer_load_dwordx4 v19, s[28:31], s47 offen lds\ns_branch {lab}")
            a(f"s_add_u32 m0, s42, {ab}")
            a("s_nop 0")
            a.vmem("buffer_load_dwordx4 v10, s[28:31], s47 offen lds", ("st", st))
            a(f"s_add_u32 m0, s42, {ab+8192}")
            a("s_nop 0")
            a.vmem("buffer_load_dwordx4 v11, s[28:31], s47 offen lds", ("st", st))
            a("s_add_u32 s47, s47, 128")

    a.stamp(1)
    for st in range(4):
        dma_a(st)
    def tlb_a(k0=4, nk=16, tg=0):
        a(f"""
        s_mul_i32 s44, s33, {2*nk}
        s_add_u32 s44, s44, {32*k0}
        v_min_u32 v20, {2*nk-1}, v0
        v_add_u32 v20, s44, v20
        v_mul_u32_u24 v20, 3840, v20
        v_add_u32 v20, s45, v20
        s_mul_i32 s44, s32, 1280
        s_cmp_lt_u32 s32, 3
        s_cbranch_scc0 L_tlb_a0_{tg}
        """)
        a.vmem("buffer_load_dword v244, v20, s[16:19], s44 offen", "pf", optional=True)
        a.label(f"L_tlb_a0_{tg}")
        if TLBPF >= 3:
            a(f"""
            s_sub_u32 s44, s32, 3
            s_cmp_lt_u32 s44, 3
            s_cbranch_scc0 L_tlb_a1_{tg}
            s_mul_i32 s44, s44, 1280
            """)
            a.vmem("buffer_load_dword v244, v20, s[16:19], s44 offen offset:128", "pf", optional=True)
            a.label(f"L_tlb_a1_{tg}")
    if TLBPF and TLBAT < 0:
        tlb_a()

    def pf_w_a():
        a("""
        s_add_u32 s44, s33, 4
        s_lshl_b32 s44, s44, 5
        s_lshl_b32 s46, s37, 3
        s_add_u32 s44, s44, s46
        v_lshrrev_b32 v20, 3, v0
        v_add_u32 v20, s44, v20
        v_mul_u32_u24 v20, 3840, v20
        v_and_b32 v21, 7, v0
        v_min_u32 v21, 5, v21
        v_lshrrev_b32 v22, 1, v21
        v_mul_u32_u24 v22, 1280, v22
        v_and_b32 v21, 1, v21
        v_lshl_add_u32 v22, v21, 7, v22
        v_add3_u32 v20, v20, v22, s45
        """)
        a.vmem("buffer_load_dword v244, v20, s[16:19], 0 offen", "pf")

    def pf_x_a():
        a("""
        s_lshl_b32 s44, s33, 4
        s_add_u32 s44, s44, s32
        s_add_u32 s44, s44, 8
        s_lshl_b32 s44, s44, 3
        v_lshrrev_b32 v20, 3, v0
        v_add_u32 v20, s44, v20
        v_mul_u32_u24 v20, 1280, v20
        v_and_b32 v21, 7, v0
        v_lshl_add_u32 v20, v21, 7, v20
        """)
        a.vmem("buffer_load_dword v245, v20, s[28:31], 0 offen offset:256", "pf")

    for mi in range(5):
        a(f"s_add_u32 s44, s37, {mi}")
        a("s_sub_u32 s46, s44, 5")
        a("s_cmp_ge_u32 s44, 5")
        a("s_cselect_b32 s44, s46, s44")
        a("s_lshl_b32 s46, s36, 2")
        a("s_add_u32 s44, s44, s46")
        a("s_lshl_b32 s44, s44, 11")
        a(f"v_add_u32 v{XA+mi}, s44, v8")
        a(f"v_xor_b32 v{XA+5+mi}, 64, v{XA+mi}")
    WAa = 220
    a(f"""
    v_mul_u32_u24 v20, 480, v9
    v_lshl_add_u32 v20, v4, 3, v20
    v_add_u32 v20, {BR_A}, v20
    """)
    for j in range(4):
        a("s_lshl_b32 s44, s36, 1")
        a(f"s_add_u32 s44, s44, {j}")
        a("s_and_b32 s44, s44, 3")
        a("s_lshl_b32 s46, s37, 2")
        a("s_add_u32 s44, s44, s46")
        if j in (1, 3):
            a(f"s_mov_b32 s{50 if j == 1 else 51}, s44")
        a("s_lshl_b32 s44, s44, 5")
        a(f"v_add_u32 v{WAa+j}, s44, v20")

    def xaddr_a(mi, ks):
        return XA + 5 * (ks & 1) + mi, ((ks // 2) % 3) * AR_A

    def waddr_a(j, ks):
        return WAa + j, (ks & 3) * BS_A, 3840

    CSa, RSa = 232, 24
    a("""
    s_lshl_b32 s44, s33, 1
    v_and_b32 v14, 1, v0
    v_add_u32 v14, s44, v14
    v_mul_u32_u24 v14, 3840, v14
    v_bfe_u32 v20, v0, 1, 3
    v_min_u32 v20, 5, v20
    v_lshrrev_b32 v21, 1, v20
    v_mul_u32_u24 v21, 1280, v21
    v_and_b32 v20, 1, v20
    v_lshl_add_u32 v21, v20, 7, v21
    v_add3_u32 v14, v14, v21, s45
    s_lshl_b32 s44, s33, 7
    s_add_u32 s44, s44, 64
    v_add_u32 v15, s44, v0
    v_mul_u32_u24 v15, 1280, v15
    """)
    hx = {B2AT: b2_issue, B2AT + 6: b2_finish}
    for bi, (at, k0, nk) in enumerate(PFSCHED):
        hx[at] = (lambda k0=k0, nk=nk, bi=bi: tlb_a(k0, nk, bi))
    hk = {ks: mk_roll(ks, (16,), 122880, hx.get(ks)) for ks in range(NK - 1)}
    k1_mainloop(a, 5, 4, dma_a, xaddr_a, waddr_a, ACC, FR, 2, 2, CSa, RSa, hooks=hk, mstat=112, skipj={1: 50, 3: 51})
    a.stamp(7)
    a("s_mov_b32 s16, 0xffff0000")
    a("s_mov_b32 s17, 0x3acccccd")
    a("""
    s_nop 7
    v_lshrrev_b32 v21, 2, v6
    v_cmp_eq_u32 s[40:41], v21, v2
    v_and_b32 v21, 3, v6
    v_cmp_eq_u32 s[42:43], 1, v21
    v_cmp_eq_u32 s[44:45], 2, v21
    v_cmp_eq_u32 s[46:47], 3, v21
    s_nop 1
    """)
    for mi, S in ((0, 12), (1, 16)):
        R0, Q0 = 112 + 8 * mi, 116 + 8 * mi
        a(f"v_mov_b32 v{S}, v{R0}")
        a(f"v_cndmask_b32 v{S+1}, v{Q0}, v{Q0+1}, s[42:43]")
        a(f"v_cndmask_b32 v{S+1}, v{S+1}, v{Q0+2}, s[44:45]")
        a(f"v_cndmask_b32 v{S+1}, v{S+1}, v{Q0+3}, s[46:47]")
        a(f"v_cndmask_b32 v{S+1}, 0, v{S+1}, s[40:41]")
        red_g(a, S + 1, 20)
    rowstat_math(a, 12, 20)
    rowstat_math(a, 16, 20)
    a(f"""
    s_lshl_b32 s44, s36, 2
    s_add_u32 s44, s44, s37
    s_lshl_b32 s44, s44, 8
    s_add_u32 s44, s44, {STAT_LDS}
    v_lshl_add_u32 v20, v6, 4, s44
    ds_write_b128 v20, v[12:15]
    s_cmp_eq_u32 s37, 3
    s_cbranch_scc0 L_a_nos1
    ds_write_b128 v20, v[16:19] offset:256
    L_a_nos1:
    s_lshl_b32 s44, s37, 2
    s_lshl_b32 s46, s36, 1
    s_add_u32 s44, s44, s46
    s_lshl_b32 s44, s44, 6
    s_add_u32 s44, s44, {CS_LDS}
    v_lshl_add_u32 v20, v2, 4, s44
    ds_write_b128 v20, v[232:235]
    ds_write_b128 v20, v[236:239] offset:64
    s_waitcnt lgkmcnt(0)
    s_barrier
    """)
    a.stamp(9)
    for mi in range(5):
        a(f"s_add_u32 s44, s37, {mi}")
        a("s_sub_u32 s46, s44, 5")
        a("s_cmp_ge_u32 s44, 5")
        a("s_cselect_b32 s44, s46, s44")
        a("s_lshl_b32 s46, s36, 2")
        a("s_add_u32 s44, s44, s46")
        a(f"s_mul_i32 s{58+mi}, s44, {16*488}")
        a("s_lshl_b32 s44, s44, 8")
        a(f"s_add_u32 s44, s44, {STAT_LDS}")
        a("v_lshl_add_u32 v20, v6, 4, s44")
        a(f"ds_read_b64 {vr(128+2*mi,2)}, v20")
    a("""
    v_mul_u32_u24 v21, 488, v6
    v_lshl_add_u32 v21, v2, 3, v21
    """)
    for j in range(4):
        a("s_lshl_b32 s44, s36, 1")
        a(f"s_add_u32 s44, s44, {j}")
        a("s_and_b32 s44, s44, 3")
        a("s_lshl_b32 s46, s37, 2")
        a("s_add_u32 s44, s44, s46")
        a(f"s_mov_b32 s{63+j}, s44")
        a("s_lshl_b32 s46, s44, 5")
        a(f"v_add_u32 v{24+j}, s46, v21")
        a("s_lshl_b32 s44, s44, 6")
        a(f"s_add_u32 s44, s44, {CS_LDS}")
        a("v_lshl_add_u32 v20, v2, 4, s44")
        a(f"ds_read_b128 {vr(140+4*j,4)}, v20")
    a("s_waitcnt lgkmcnt(0)")
    for j in range(4):
        a(f"s_cmp_eq_u32 s{63+j}, 15")
        a(f"s_cbranch_scc1 L_g1_a_skip{j}")
        for mi in range(5):
            P = 128 + 2 * mi
            acc = ACC + 4 * (mi * 4 + j)
            for h in (0, 2):
                a(f"v_pk_fma_f32 {vr(acc+h,2)}, {vr(140+4*j+h,2)}, {vr(P,2)}, {vr(acc+h,2)} op_sel_hi:[1,0,1] neg_lo:[0,1,0] neg_hi:[0,1,0]")
            for h in (0, 2):
                a(f"v_pk_mul_f32 {vr(acc+h,2)}, {vr(acc+h,2)}, {vr(P,2)} op_sel:[0,1] op_sel_hi:[1,1]")
            a(f"v_cvt_pk_bf16_f32 v{acc}, v{acc}, v{acc+1}")
            a(f"v_cvt_pk_bf16_f32 v{acc+1}, v{acc+2}, v{acc+3}")
            a(f"v_add_u32 v{acc+2}, s{58+mi}, v{24+j}")
            a(f"ds_write_b64 v{acc+2}, {vr(acc,2)}")
        a.label(f"L_g1_a_skip{j}")
    a("s_waitcnt lgkmcnt(0)")
    a("s_barrier")
    a.stamp(10)
    KF, VT0, VT1, QF, SS, PP, OO = 32, 52, 62, 72, 88, 120, 136
    T32 = 32 * 488
    a(f"""
    v_lshl_add_u32 v20, v6, 1, s36
    v_add_u32 v21, 16, v20
    v_subrev_u32 v22, 16, v20
    v_max_i32 v22, 0, v22
    s_mul_i32 s44, s37, 40
    v_mul_u32_u24 v21, 488, v21
    v_mul_u32_u24 v22, 488, v22
    v_lshl_add_u32 v23, v2, 4, s44
    v_add_u32 v21, v21, v23
    v_add_u32 v22, v22, v23
    v_lshl_add_u32 v24, v2, 2, v3
    v_lshl_add_u32 v24, v24, 1, s36
    v_add_u32 v25, 16, v24
    v_subrev_u32 v26, 16, v24
    v_max_i32 v26, 0, v26
    v_mul_u32_u24 v25, 488, v25
    v_mul_u32_u24 v26, 488, v26
    v_lshl_add_u32 v27, v4, 3, s44
    v_add_u32 v25, v25, v27
    v_add_u32 v26, v26, v27
    """)
    for qb in range(4):
        a(f"ds_read_b64 {vr(QF+4*qb,2)}, v21 offset:{qb*T32}")
        a(f"ds_read_b64 {vr(QF+4*qb+2,2)}, v21 offset:{qb*T32+8}")
    a(f"ds_read_b64 {vr(KF,2)}, v22 offset:160")
    a(f"ds_read_b64 {vr(KF+2,2)}, v22 offset:168")
    for t in range(4):
        a(f"ds_read_b64 {vr(KF+4+4*t,2)}, v21 offset:{t*T32+160}")
        a(f"ds_read_b64 {vr(KF+4+4*t+2,2)}, v21 offset:{t*T32+168}")
    a(f"ds_read_b64_tr_b16 {vr(VT0,2)}, v26 offset:320")
    a(f"ds_read_b64_tr_b16 {vr(VT1,2)}, v26 offset:352")
    for t in range(4):
        a(f"ds_read_b64_tr_b16 {vr(VT0+2+2*t,2)}, v25 offset:{t*T32+320}")
        a(f"ds_read_b64_tr_b16 {vr(VT1+2+2*t,2)}, v25 offset:{t*T32+352}")
    a(f"""
    s_mul_i32 s44, s34, 80
    s_mul_i32 s45, s37, 20
    s_add_u32 s44, s44, s45
    v_lshl_add_u32 v23, v2, 2, s44
    v_lshrrev_b32 v27, 3, v23
    v_lshlrev_b32 v27, 8, v27
    v_and_b32 v23, 4, v23
    v_lshl_add_u32 v27, v23, 1, v27
    v_lshrrev_b32 v23, 3, v6
    s_lshl_b32 s45, s33, 3
    v_add_u32 v23, s45, v23
    v_mul_u32_u24 v23, {A2_MT}, v23
    v_and_b32 v30, 7, v6
    v_lshl_add_u32 v30, v30, 1, s36
    v_lshl_add_u32 v23, v30, 4, v23
    v_add_u32 v22, v23, v27
    s_add_u32 s44, s44, 16
    s_lshr_b32 s45, s44, 3
    s_lshl_b32 s45, s45, 8
    s_and_b32 s44, s44, 4
    s_lshl_b32 s44, s44, 1
    s_add_u32 s45, s45, s44
    v_add_u32 v21, s45, v23
    """)
    a("v_lshlrev_b32 v28, 2, v2")
    a("v_add_u32 v29, 9, v6")
    for r in range(4):
        a(f"v_add_u32 v30, {r}, v28")
        a(f"v_cmp_ge_u32 s[{40+2*r}:{41+2*r}], v30, v29")
        a(f"v_cmp_le_u32 s[{48+2*r}:{49+2*r}], v30, v6")
        a(f"v_add_u32 v30, 7, v30")
        a(f"v_cmp_ge_u32 s[56:57], v30, v6")
        a("s_nop 1")
        a(f"s_and_b64 s[{48+2*r}:{49+2*r}], s[{48+2*r}:{49+2*r}], s[56:57]")
    a("v_cmp_gt_u32 s[56:57], 3, v2")
    a("v_cmp_gt_u32 s[58:59], 2, v2")
    a("s_cmp_eq_u32 s33, 0")
    for r in range(4):
        a(f"s_cselect_b64 s[{60+2*r}:{61+2*r}], 0, s[{40+2*r}:{41+2*r}]")
    a("""
    s_mov_b32 s18, 0x3ea52b5c
    s_mov_b32 s19, 0x3ea52b5c
    v_mov_b32 v29, 0xff800000
    """)
    a("s_waitcnt lgkmcnt(0)")
    a.stamp(11)
    for qb in range(4):
        q = QF + 4 * qb
        a(f"v_cndmask_b32 v{q}, 0, v{q}, s[56:57]")
        a(f"v_cndmask_b32 v{q+1}, 0, v{q+1}, s[56:57]")
        a(f"v_cndmask_b32 v{q+2}, 0, v{q+2}, s[58:59]")
        a(f"v_cndmask_b32 v{q+3}, 0, v{q+3}, s[58:59]")
    a("s_nop 1")
    for qb in range(4):
        a(f"v_mfma_f32_16x16x32_bf16 {vr(SS+8*qb,4)}, {vr(KF+4*qb,4)}, {vr(QF+4*qb,4)}, 0")
        a(f"v_mfma_f32_16x16x32_bf16 {vr(SS+8*qb+4,4)}, {vr(KF+4*qb+4,4)}, {vr(QF+4*qb,4)}, 0")
    a("s_nop 7")
    for qb in range(4):
        S = SS + 8 * qb
        mb = 60 if qb == 0 else 40
        for r in range(4):
            a(f"v_cndmask_b32 v{S+r}, v29, v{S+r}, s[{mb+2*r}:{mb+1+2*r}]")
            a(f"v_cndmask_b32 v{S+4+r}, v29, v{S+4+r}, s[{48+2*r}:{49+2*r}]")
        mx, t = 24 + (qb & 1) * 2, 25 + (qb & 1) * 2
        a(f"v_max3_f32 v{mx}, v{S}, v{S+1}, v{S+2}")
        a(f"v_max3_f32 v{mx}, v{mx}, v{S+3}, v{S+4}")
        a(f"v_max3_f32 v{mx}, v{mx}, v{S+5}, v{S+6}")
        a(f"v_max_f32 v{mx}, v{mx}, v{S+7}")
        a(f"v_mov_b32 v{t}, v{mx}")
        a("s_nop 1")
        a(f"v_permlane32_swap_b32 v{mx}, v{t}")
        a("s_nop 1")
        a(f"v_max_f32 v{mx}, v{mx}, v{t}")
        a(f"v_mov_b32 v{t}, v{mx}")
        a("s_nop 1")
        a(f"v_permlane16_swap_b32 v{mx}, v{t}")
        a("s_nop 1")
        a(f"v_max_f32 v{mx}, v{mx}, v{t}")
        a(f"v_mul_f32 v{mx}, s18, v{mx}")
        for h in range(0, 8, 2):
            a(f"v_pk_fma_f32 {vr(S+h,2)}, {vr(S+h,2)}, s[18:19], {vr(mx,2)} op_sel_hi:[1,1,0] neg_lo:[0,0,1] neg_hi:[0,0,1]")
        for e in range(8):
            a(f"v_exp_f32 v{S+e}, v{S+e}")
        a("s_nop 0")
        a(f"v_pk_add_f32 {vr(mx,2)}, {vr(S,2)}, {vr(S+2,2)}")
        a(f"v_pk_add_f32 {vr(30,2)}, {vr(S+4,2)}, {vr(S+6,2)}")
        a(f"v_pk_add_f32 {vr(mx,2)}, {vr(mx,2)}, {vr(30,2)}")
        a(f"v_add_f32 v{mx}, v{mx}, v{t}")
        red_g(a, mx, t)
        a(f"v_rcp_f32 v{mx}, v{mx}")
        a("s_nop 0")
        for h in range(0, 8, 2):
            a(f"v_pk_mul_f32 {vr(S+h,2)}, {vr(S+h,2)}, {vr(mx,2)} op_sel_hi:[1,0]")
        for h in range(4):
            a(f"v_cvt_pk_bf16_f32 v{PP+4*qb+h}, v{S+2*h}, v{S+2*h+1}")
    a.stamp(12)
    a("s_nop 1")
    for qb in range(4):
        a(f"v_mfma_f32_16x16x32_bf16 {vr(OO+8*qb,4)}, {vr(VT0+2*qb,4)}, {vr(PP+4*qb,4)}, 0")
        a(f"v_mfma_f32_16x16x32_bf16 {vr(OO+8*qb+4,4)}, {vr(VT1+2*qb,4)}, {vr(PP+4*qb,4)}, 0")
    a("s_nop 7")
    for qb in range(4):
        O = OO + 8 * qb
        a(f"v_cvt_pk_bf16_f32 v{O}, v{O}, v{O+1}")
        a(f"v_cvt_pk_bf16_f32 v{O+1}, v{O+2}, v{O+3}")
        a(f"v_cvt_pk_bf16_f32 v{O+4}, v{O+4}, v{O+5}")
        a(f"v_cvt_pk_bf16_f32 v{O+5}, v{O+6}, v{O+7}")
        a(f"s_mov_b32 s44, {A2_OFF + qb*2*A2_MT}")
        a(f"buffer_store_dwordx2 {vr(O,2)}, v22, s[12:15], s44 offen{ST_FLAGS}")
    a("s_mov_b64 exec, 0xffff")
    for qb in range(4):
        O = OO + 8 * qb
        a(f"s_mov_b32 s44, {A2_OFF + qb*2*A2_MT}")
        a(f"buffer_store_dwordx2 {vr(O+4,2)}, v21, s[12:15], s44 offen{ST_FLAGS}")
    a("s_mov_b64 exec, -1")
    a.stamp(8, True)
    a.stamp_flush(12, 1, 32)
    a.label("L_g1_done")
    a("s_endpgm")
    for blk in a.ool:
        a(blk)
    a.ool = []


def gen_k2(a):
    a.raw(".p2align 8")
    a.label("g2_kernel")
    a.vm = []
    a("""
    s_cmp_ge_u32 s2, 256
    s_cbranch_scc1 L_g2_done
    """)
    a.stamp(0)
    a("""
    s_load_dwordx2 s[4:5], s[0:1], 0
    s_load_dwordx2 s[10:11], s[0:1], 56
    s_load_dwordx2 s[28:29], s[0:1], 72
    v_lshrrev_b32 v1, 6, v0
    v_and_b32 v0, 63, v0
    s_nop 0
    v_readfirstlane_b32 s32, v1
    s_and_b32 s33, s2, 7
    s_lshr_b32 s3, s2, 3
    s_and_b32 s34, s3, 7
    s_lshr_b32 s3, s3, 3
    s_lshl_b32 s33, s33, 2
    s_add_u32 s33, s33, s3
    v_lshrrev_b32 v2, 4, v0
    v_lshlrev_b32 v5, 4, v0
    """)
    a(f"""
    s_mul_i32 s40, s32, 10
    s_lshl_b32 s41, s32, 3
    s_add_u32 s41, s41, 4
    s_cmp_lt_u32 s32, 2
    s_cselect_b32 s40, s40, s41
    s_lshl_b32 s47, s40, 10
    s_mul_i32 s48, s34, 68
    s_add_u32 s48, s48, s40
    s_mul_i32 s48, s48, 5120
    s_add_u32 s48, s48, {B2_OFF}
    s_mul_i32 s42, s32, 20480
    s_mul_i32 s45, s34, 160
    """)
    for mi in range(4):
        a(f"s_lshl_b32 s44, s33, 2")
        a(f"s_add_u32 s44, s44, {mi}")
        a(f"s_mul_i32 s44, s44, {A2_MT}")
        if A2_OFF:
            a(f"s_add_u32 s44, s44, {A2_OFF}")
        a(f"v_add_u32 v{10+mi}, s44, v5")
    a("v_add_u32 v14, 4096, v5")
    a("s_waitcnt lgkmcnt(0)")
    srd(a, 12, 28, WS_BYTES)
    srd(a, 20, 4, 2048 * 1280)
    srd(a, 24, 10, 2048 * 1280)
    ACC = 32
    ST = 112

    def issue(st):
        b = ST + 36 * (st & 3)
        for mi in range(4):
            a.vmem(f"buffer_load_dwordx4 {vr(b+4*mi,4)}, v{10+mi}, s[12:15], s47 offen", ("st", st))
        for j in range(4):
            a.vmem(f"buffer_load_dwordx4 {vr(b+16+4*j,4)}, v5, s[12:15], s48 offen offset:{1024*j}", ("st", st))
        a.vmem(f"buffer_load_dwordx4 {vr(b+32,4)}, v14, s[12:15], s48 offen", ("st", st))
        a("s_add_u32 s47, s47, 1024")
        a("s_add_u32 s48, s48, 5120")

    def body(n):
        a.vm = []
        a.stamp(1)
        for st in range(4):
            issue(st)
        a.stamp(2)
        for s in range(n):
            b = ST + 36 * (s & 3)
            a.wait_vm(("st", s))
            if s in (0, 3, 7):
                a.stamp({0: 3, 3: 4, 7: 5}[s])
            for j in range(5):
                for mi in range(4):
                    acc = ACC + 4 * (mi * 5 + j)
                    c = "0" if s == 0 else vr(acc, 4)
                    a(f"v_mfma_f32_16x16x32_bf16 {vr(acc,4)}, {vr(b+16+4*j,4)}, {vr(b+4*mi,4)}, {c}")
            if s + 4 < n:
                issue(s + 4)

    a("s_cmp_lt_u32 s32, 2")
    a("s_cbranch_scc0 L_g2_h")
    body(10)
    a("s_branch L_g2_red")
    a.label("L_g2_h")
    body(8)
    a.label("L_g2_red")
    a.stamp(6)
    a("s_nop 7")
    a("s_nop 7")
    a("v_add_u32 v20, s42, v5")
    for st in range(20):
        a(f"ds_write_b128 v20, {vr(ACC+4*st,4)} offset:{st*1024}")
    a("s_waitcnt lgkmcnt(0)")
    a("s_barrier")
    a.stamp(7, True)
    a.stamp_flush(12, 2, 32)
    a("s_mov_b32 s16, 0xffff0000")
    for r in range(3):
        if r == 2:
            a("s_cmp_ge_u32 s32, 4")
            a("s_cbranch_scc1 L_g2_done")
        a(f"s_add_u32 s40, s32, {8*r}")
        a("s_mul_i32 s41, s40, 52")
        a("s_lshr_b32 s41, s41, 8")
        a("s_mul_i32 s43, s41, 5")
        a("s_sub_u32 s43, s40, s43")
        a("""
        s_lshl_b32 s44, s33, 6
        s_lshl_b32 s41, s41, 4
        s_add_u32 s44, s44, s41
        v_and_b32 v21, 15, v0
        v_add_u32 v21, s44, v21
        v_mul_u32_u24 v21, 1280, v21
        v_lshl_add_u32 v21, v2, 3, v21
        s_lshl_b32 s43, s43, 5
        s_add_u32 s43, s43, s45
        v_add_u32 v21, s43, v21
        buffer_load_dwordx2 v[22:23], v21, s[20:23], 0 offen
        s_lshl_b32 s40, s40, 10
        v_add_u32 v20, s40, v5
        v_add_u32 v24, 81920, v20
        """)
        for w in range(8):
            if w < 4:
                a(f"ds_read_b128 {vr(32+4*w,4)}, v20 offset:{w*20480}")
            else:
                a(f"ds_read_b128 {vr(32+4*w,4)}, v24 offset:{(w-4)*20480}")
        a("s_waitcnt lgkmcnt(0)")
        for e in range(4):
            a(f"v_add_f32 v{32+e}, v{32+e}, v{36+e}")
            a(f"v_add_f32 v{40+e}, v{40+e}, v{44+e}")
            a(f"v_add_f32 v{48+e}, v{48+e}, v{52+e}")
            a(f"v_add_f32 v{56+e}, v{56+e}, v{60+e}")
            a(f"v_add_f32 v{40+e}, v{40+e}, v{48+e}")
            a(f"v_add_f32 v{40+e}, v{40+e}, v{56+e}")
        a("s_waitcnt vmcnt(0)")
        for p in range(2):
            a0, a1, b0, b1 = 32 + 2 * p, 33 + 2 * p, 40 + 2 * p, 41 + 2 * p
            a(f"v_cvt_pk_bf16_f32 v25, v{a0}, v{a1}")
            a(f"v_cvt_pk_bf16_f32 v26, v{b0}, v{b1}")
            a(f"v_lshlrev_b32 v{a0}, 16, v25")
            a(f"v_and_b32 v{a1}, s16, v25")
            a(f"v_lshlrev_b32 v{b0}, 16, v26")
            a(f"v_and_b32 v{b1}, s16, v26")
            a(f"v_lshlrev_b32 v25, 16, v{22+p}")
            a(f"v_and_b32 v26, s16, v{22+p}")
            a(f"v_add_f32 v{a0}, v{a0}, v25")
            a(f"v_add_f32 v{a1}, v{a1}, v26")
            a(f"v_cvt_pk_bf16_f32 v25, v{a0}, v{a1}")
            a(f"v_lshlrev_b32 v{a0}, 16, v25")
            a(f"v_and_b32 v{a1}, s16, v25")
            a(f"v_add_f32 v{a0}, v{a0}, v{b0}")
            a(f"v_add_f32 v{a1}, v{a1}, v{b1}")
            a(f"v_cvt_pk_bf16_f32 v{28+p}, v{a0}, v{a1}")
        a("buffer_store_dwordx2 v[28:29], v21, s[24:27], 0 offen")
        a("s_nop 1")
    a.label("L_g2_done")
    a("s_endpgm")


def kd(name, vgpr, sgpr=102):
    acc = (vgpr + 3) // 4 * 4
    return f""".p2align 6
.amdhsa_kernel {name}
  .amdhsa_next_free_vgpr {vgpr}
  .amdhsa_next_free_sgpr {sgpr}
  .amdhsa_accum_offset {acc}
  .amdhsa_group_segment_fixed_size 0
  .amdhsa_kernarg_size 80
  .amdhsa_user_sgpr_count 2
  .amdhsa_user_sgpr_kernarg_segment_ptr 1
  .amdhsa_system_sgpr_workgroup_id_x 1
.end_amdhsa_kernel
"""


def main(outpath):
    a = Asm()
    a.raw("; @launch kernel=g1_kernel grid=(256,1,1) block=(512,1,1) lds=163840")
    a.raw("; @launch kernel=g2_kernel grid=(256,1,1) block=(512,1,1) lds=163840")
    a.raw('.amdgcn_target "amdgcn-amd-amdhsa--gfx950"')
    a.raw(".text")
    for k in ("g1_kernel", "g2_kernel"):
        a.raw(f".globl {k}")
        a.raw(f".type {k},@function")
    gen_k1(a)
    gen_k2(a)
    a.raw('.section .rodata,"a"')
    a.raw(kd("g1_kernel", 256))
    a.raw(kd("g2_kernel", 256))
    open(outpath, "w").write(a.text())


if __name__ == "__main__":
    if len(sys.argv) > 2 and sys.argv[2] == "stamp":
        STAMP = True
    main(sys.argv[1] if len(sys.argv) > 1 else f"cdna_kernels/{NAME}.s")
```

```python
import sys, os

NAME = "parallel_sum__sliding_local_dilated__glu_gated_glu__prompt"
A2_OFF = 0
B2_OFF = 9 << 20
WS_BYTES = 16 << 20
A2_MT = 68 * 1024
STAMP = False
DBGSTAMP = os.environ.get("DBGSTAMP", "") == "1"
ST_FLAGS = os.environ.get("STF", "")
PFD = int(os.environ.get("PFD", "0"))
XP = os.environ.get("XP", "")
TLBPF = int(os.environ.get("TLBPF", "3"))
TLBAT = int(os.environ.get("TLBAT", "0"))
B2AT = int(os.environ.get("B2AT", "9"))
PFSCHED = eval(os.environ.get("PFSCHED", "[(0,4,6),(3,10,5),(6,15,5)]"))


class Asm:
    def __init__(self):
        self.lines = []
        self.vm = []
        self.ool = []

    def __call__(self, s):
        for ln in s.strip("\n").split("\n"):
            ln = ln.strip()
            if ln:
                self.lines.append("    " + ln)

    def label(self, l):
        self.lines.append(l + ":")

    def raw(self, s):
        self.lines.append(s)

    def text(self):
        return "\n".join(l for l in self.lines if l.strip() != "#CHUNK") + "\n"

    def capture(self, fn, *args):
        save = self.lines
        self.lines = []
        fn(*args)
        got = self.lines
        self.lines = save
        chunks, cur = [], []
        for ln in got:
            if ln.strip() == "#CHUNK":
                if cur:
                    chunks.append(cur)
                cur = []
            else:
                cur.append(ln)
        if cur:
            chunks.append(cur)
        return chunks

    def chunk(self):
        self.lines.append("#CHUNK")

    def vmem(self, s, tag, optional=False):
        self(s)
        self.vm.append((tag, optional))
        if not optional:
            self.chunk()

    def vm_count_after(self, tag):
        idx = max([i for i, (t, o) in enumerate(self.vm) if t == tag], default=-1)
        if idx < 0:
            return None
        return sum(1 for (t, o) in self.vm[idx + 1:] if not o)

    def wait_vm(self, tag, lgkm=False):
        n = self.vm_count_after(tag)
        parts = []
        if n is not None:
            assert n < 64
            parts.append(f"vmcnt({n})")
            idx = max([i for i, (t, o) in enumerate(self.vm) if t == tag])
            self.vm = self.vm[idx + 1:]
        if lgkm:
            parts.append("lgkmcnt(0)")
        if parts:
            self("s_waitcnt " + " ".join(parts))

    def stamp(self, n, last=False):
        if not STAMP:
            return
        self("s_memtime s[88:89]")
        self("s_waitcnt lgkmcnt(0)")
        self(f"s_mov_b32 s{70+n}, s88")
        if n == 0 or last:
            self("s_memrealtime s[88:89]")
            self("s_waitcnt lgkmcnt(0)")
            self(f"s_mov_b32 s{84 if n == 0 else 85}, s88")

    def stamp_flush(self, srd_ws, kidx, swave):
        if not STAMP:
            return
        if DBGSTAMP:
            if kidx != 1:
                return
            lab = f"L_dbg_{len(self.lines)}"
            self("s_cmp_eq_u32 s2, 0")
            self(f"s_cbranch_scc0 {lab}")
            self(f"s_cmp_eq_u32 s{swave}, 0")
            self(f"s_cbranch_scc0 {lab}")
            self("s_load_dwordx2 s[92:93], s[0:1], 64")
            self("s_waitcnt lgkmcnt(0)")
            self("s_mov_b32 s94, 256")
            self("s_mov_b32 s95, 0x00020000")
            self("v_mov_b32 v1, 0")
            for n in range(1, 14):
                self(f"s_sub_u32 s88, s{70+n}, s70")
                self(f"v_mov_b32 v2, s88")
                self(f"buffer_store_dword v2, v1, s[92:95], 0 offen offset:{4*n}")
            self("s_sub_u32 s88, s85, s84")
            self("v_mov_b32 v2, s88")
            self("buffer_store_dword v2, v1, s[92:95], 0 offen offset:0")
            self.label(lab)
            return
        self(f"s_lshl_b32 s88, s2, 3")
        self(f"s_add_u32 s88, s88, s{swave}")
        self(f"s_lshl_b32 s88, s88, 6")
        self(f"s_add_u32 s88, s88, {(12+kidx)<<20}")
        self("v_mov_b32 v1, 0")
        for n in range(16):
            self(f"v_mov_b32 v2, s{70+n}")
            self(f"buffer_store_dword v2, v1, s[{srd_ws}:{srd_ws+3}], s88 offen offset:{4*n}")


def srd(a, d, base, nbytes):
    a(f"s_mov_b32 s{d}, s{base}")
    a(f"s_mov_b32 s{d+1}, s{base+1}")
    a(f"s_mov_b32 s{d+2}, {nbytes}")
    a(f"s_mov_b32 s{d+3}, 0x00020000")


def vr(b, n):
    return f"v[{b}:{b+n-1}]"


def unswap23(a, dst, src, t0, t1):
    a(f"v_lshrrev_b32 v{t0}, 1, v{src}")
    a(f"v_and_b32 v{t0}, 4, v{t0}")
    a(f"v_lshlrev_b32 v{t1}, 1, v{src}")
    a(f"v_and_b32 v{t1}, 8, v{t1}")
    a(f"v_and_b32 v{dst}, 0x13, v{src}")
    a(f"v_or3_b32 v{dst}, v{dst}, v{t0}, v{t1}")


def divsmall(a, q, p, d, lim=1024):
    m = (65536 + d - 1) // d
    for x in range(lim):
        assert (x * m) >> 16 == x // d, (d, x)
    a(f"v_mul_u32_u24 v{q}, {m}, v{p}")
    a(f"v_lshrrev_b32 v{q}, 16, v{q}")


def sdiv(a, q, p, d, lim):
    m = (65536 + d - 1) // d
    for x in range(lim):
        assert (x * m) >> 16 == x // d, (d, x)
    a(f"s_mul_i32 s{q}, s{p}, {m}")
    a(f"s_lshr_b32 s{q}, s{q}, 16")


def red_g(a, v, t):
    a(f"v_mov_b32 v{t}, v{v}")
    a("s_nop 1")
    a(f"v_permlane32_swap_b32 v{v}, v{t}")
    a("s_nop 1")
    a(f"v_add_f32 v{v}, v{v}, v{t}")
    a(f"v_mov_b32 v{t}, v{v}")
    a("s_nop 1")
    a(f"v_permlane16_swap_b32 v{v}, v{t}")
    a("s_nop 1")
    a(f"v_add_f32 v{v}, v{v}, v{t}")


NK = 20
STAT_LDS = 156 * 1024
CS_LDS = STAT_LDS + 2560
SCR_LDS = 144 * 1024
VONE = 228
TMP = 20


def k1_mainloop(a, NM, NN, dma_fn, xaddr_fn, waddr_fn, ACC, FR, ncs, nrs, CS, RS, hooks=None, mstat=None, skipj=None):
    FS = 4 * NM + 4 * NN

    def xfrag(s, mi):
        return FR + s * FS + 4 * mi

    def wfrag(s, j):
        return FR + s * FS + 4 * NM + 4 * j

    def reads(ks):
        s = ks & 1
        out = []
        for mi in range(NM):
            v, off = xaddr_fn(mi, ks)
            out.append(f"ds_read_b128 {vr(xfrag(s,mi),4)}, v{v} offset:{off}")
        for j in range(NN):
            v, off, dt = waddr_fn(j, ks)
            out.append(f"ds_read_b64_tr_b16 {vr(wfrag(s,j),2)}, v{v} offset:{off}")
            out.append(f"ds_read_b64_tr_b16 {vr(wfrag(s,j)+2,2)}, v{v} offset:{off+dt}")
        return out

    def mfmas(ks):
        s = ks & 1
        out = []
        for j in range(NN):
            grp = []
            for mi in range(NM):
                acc = ACC + 4 * (mi * NN + j)
                c = "0" if ks == 0 else vr(acc, 4)
                grp.append(f"v_mfma_f32_16x16x32_bf16 {vr(acc,4)}, {vr(wfrag(s,j),4)}, {vr(xfrag(s,mi),4)}, {c}")
            if skipj and j in skipj and "noskip" not in XP:
                lab = f"L_skj_{a.tag}_{ks}_{j}"
                out.append(f"s_cmp_eq_u32 s{skipj[j]}, 15\ns_cbranch_scc1 {lab}\n" + "\n".join(grp) + f"\n{lab}:")
            else:
                out.extend(grp)
        return out

    def stats(ks):
        s = ks & 1
        out = []
        for j in range(ncs):
            c = "0" if ks == 0 else vr(CS + 4 * j, 4)
            out.append(f"v_mfma_f32_16x16x32_bf16 {vr(CS+4*j,4)}, {vr(wfrag(s,j),4)}, {vr(VONE,4)}, {c}")
        valu = []
        if mstat is not None:
            for mi in range(2):
                R0, Q0 = mstat + 8 * mi, mstat + 8 * mi + 4
                c0 = "0" if ks == 0 else vr(R0, 4)
                c1 = "0" if ks == 0 else vr(Q0, 4)
                m0 = f"v_mfma_f32_16x16x32_bf16 {vr(R0,4)}, {vr(VONE,4)}, {vr(xfrag(s,mi),4)}, {c0}"
                m1 = f"v_mfma_f32_16x16x32_bf16 {vr(Q0,4)}, {vr(xfrag(s,mi),4)}, {vr(xfrag(s,mi),4)}, {c1}"
                if "noms" in XP:
                    continue
                if mi == 0:
                    out.extend([m0, m1] if "nosq" not in XP else [m0])
                else:
                    lab = f"L_ms_{a.tag}_{ks}"
                    out.append(f"s_cmp_eq_u32 s37, 3\ns_cbranch_scc1 {lab}_o\n{lab}:")
                    a.ool.append(f"{lab}_o:\n{m0}\n{m1}\ns_branch {lab}")
            return out, valu
        for mi in range(nrs):
            S0, S1, Q0, Q1 = [RS + 4 * mi + i for i in range(4)]
            for d in range(4):
                x = xfrag(s, mi) + d
                t0, t1 = TMP + 2 * (d & 1), TMP + 2 * (d & 1) + 1
                valu.append(f"v_lshlrev_b32 v{t0}, 16, v{x}")
                valu.append(f"v_and_b32 v{t1}, s69, v{x}")
                if ks == 0 and d == 0:
                    valu.append(f"v_mov_b32 v{S0}, v{t0}")
                    valu.append(f"v_mov_b32 v{S1}, v{t1}")
                    valu.append(f"v_mul_f32 v{Q0}, v{t0}, v{t0}")
                    valu.append(f"v_mul_f32 v{Q1}, v{t1}, v{t1}")
                else:
                    valu.append(f"v_add_f32 v{S0}, v{S0}, v{t0}")
                    valu.append(f"v_add_f32 v{S1}, v{S1}, v{t1}")
                    valu.append(f"v_fmac_f32 v{Q0}, v{t0}, v{t0}")
                    valu.append(f"v_fmac_f32 v{Q1}, v{t1}, v{t1}")
        if "novalu" in XP: valu = []
        if "nocs" in XP: out = []
        return out, valu

    a.stamp(2)
    a.wait_vm(("st", 0))
    a("s_barrier")
    a.stamp(3)
    for r in reads(0):
        a(r)
    for ks in range(NK):
        if ks + 1 < NK:
            a.wait_vm(("st", ks + 1), lgkm=True)
            a("s_barrier")
            if ks in (4, 10, 16):
                a.stamp({4: 4, 10: 5, 16: 6}[ks])
            if hooks and ks in hooks:
                hooks[ks]()
            dm = a.capture(dma_fn, ks + 4) if ks + 4 < NK else []
            if "nodma" in XP:
                dm = []; a.vm = []
            rd = reads(ks + 1)
            if "nolds" in XP: rd = []
        else:
            a("s_waitcnt lgkmcnt(0)")
            rd = []
            dm = []
        mf = mfmas(ks)
        smf, stt = stats(ks)
        mf = mf + smf
        nr = ns = nd = 0
        L = len(mf)
        for i, m in enumerate(mf):
            a(m)
            while nd < len(dm) and nd < 1 + i * len(dm) // (L - 2):
                a.lines.extend(dm[nd]); nd += 1
            while nr < len(rd) and nr < (i + 1) * len(rd) // max(1, L - 6):
                a(rd[nr]); nr += 1
            while ns < len(stt) and ns < (i + 1) * len(stt) // L:
                a(stt[ns]); ns += 1
        while nd < len(dm):
            a.lines.extend(dm[nd]); nd += 1
        while nr < len(rd):
            a(rd[nr]); nr += 1
        while ns < len(stt):
            a(stt[ns]); ns += 1


def rowstat_math(a, S, t):
    Q = S + 1
    a(f"v_mul_f32 v{S}, s17, v{S}")
    a(f"v_mul_f32 v{Q}, s17, v{Q}")
    a(f"v_fma_f32 v{Q}, -v{S}, v{S}, v{Q}")
    a(f"v_max_f32 v{Q}, 0, v{Q}")
    a(f"v_cvt_pk_bf16_f32 v{t}, v{S}, v{Q}")
    a(f"v_lshlrev_b32 v{S}, 16, v{t}")
    a(f"v_and_b32 v{Q}, s16, v{t}")
    a(f"v_add_f32 v{Q}, 0x3727c5ac, v{Q}")
    a(f"v_cvt_pk_bf16_f32 v{t}, v{Q}, v{Q}")
    a(f"v_and_b32 v{Q}, s16, v{t}")
    a(f"v_sqrt_f32 v{Q}, v{Q}")
    a("s_nop 0")
    a(f"v_cvt_pk_bf16_f32 v{t}, v{Q}, v{Q}")
    a(f"v_and_b32 v{S+3}, s16, v{t}")
    a(f"v_rcp_f32 v{t}, v{S+3}")
    a("s_nop 0")
    a(f"v_fma_f32 v{Q}, -v{S+3}, v{t}, 1.0")
    a(f"v_fma_f32 v{Q}, v{Q}, v{t}, v{t}")
    a(f"v_mul_f32 v{S+2}, 0xbfb8aa3b, v{Q}")


def gen_k1(a):
    a.raw(".p2align 8")
    a.label("g1_kernel")
    a("""
    s_cmp_ge_u32 s2, 256
    s_cbranch_scc1 L_g1_done
    """)
    a.stamp(0)
    a("""
    s_load_dwordx4 s[4:7], s[0:1], 0
    s_load_dwordx2 s[52:53], s[0:1], 16
    s_load_dwordx4 s[8:11], s[0:1], 32
    s_load_dwordx2 s[54:55], s[0:1], 48
    s_load_dwordx2 s[56:57], s[0:1], 72
    v_lshrrev_b32 v1, 6, v0
    v_and_b32 v0, 63, v0
    s_nop 0
    v_readfirstlane_b32 s32, v1
    s_and_b32 s34, s2, 7
    s_lshr_b32 s3, s2, 3
    s_lshr_b32 s33, s3, 1
    s_and_b32 s3, s3, 1
    s_lshr_b32 s36, s32, 2
    s_and_b32 s37, s32, 3
    v_lshrrev_b32 v2, 4, v0
    v_bfe_u32 v3, v0, 2, 2
    v_and_b32 v4, 3, v0
    v_lshlrev_b32 v5, 4, v0
    v_mov_b32 v228, 0x3f803f80
    v_mov_b32 v229, 0x3f803f80
    v_mov_b32 v230, 0x3f803f80
    v_mov_b32 v231, 0x3f803f80
    s_mov_b32 s69, 0xffff0000
    v_and_b32 v6, 15, v0
    s_waitcnt lgkmcnt(0)
    """)
    srd(a, 12, 56, WS_BYTES)
    srd(a, 28, 4, 2048 * 1280)
    a("""
    v_lshrrev_b32 v20, 3, v0
    v_and_b32 v21, 7, v0
    v_xor_b32 v21, v21, v20
    v_mul_u32_u24 v7, 1280, v20
    v_lshl_add_u32 v7, v21, 4, v7
    """)
    a("""
    v_and_b32 v20, 7, v6
    v_xor_b32 v21, v2, v20
    v_lshlrev_b32 v8, 7, v20
    v_lshl_add_u32 v8, v21, 4, v8
    v_lshrrev_b32 v20, 3, v6
    v_lshl_add_u32 v8, v20, 10, v8
    """)
    a("""
    v_and_b32 v20, 1, v2
    v_lshl_add_u32 v20, v20, 2, v3
    v_lshrrev_b32 v21, 1, v2
    v_lshl_add_u32 v9, v21, 4, v20
    """)

    def b2_issue():
        a("""
        s_mul_i32 s58, s2, 3
        s_add_u32 s58, s58, s32
        s_cmp_lt_u32 s32, 3
        s_cselect_b32 s58, s58, 4095
        s_cmp_lt_u32 s58, 680
        s_cbranch_scc0 L_b2_skip1_%s
        """ % a.tag)
        sdiv(a, 59, 58, 10, 680)
        a("""
        s_mul_i32 s60, s59, 10
        s_sub_u32 s60, s58, s60
        s_cmp_lt_u32 s59, 20
        s_cselect_b32 s64, s52, s54
        s_cselect_b32 s65, s53, s55
        s_mov_b32 s66, 1966080
        s_cselect_b32 s66, 819200, s66
        s_mov_b32 s67, 0x00020000
        s_sub_u32 s61, s59, 20
        s_cmp_lt_u32 s59, 20
        s_cselect_b32 s61, s59, s61
        s_mul_i32 s61, s61, 40960
        s_lshl_b32 s62, s60, 7
        s_add_u32 s61, s61, s62
        s_lshl_b32 s62, s32, 12
        s_add_u32 s62, s62, %d
        v_lshrrev_b32 v20, 3, v0
        v_and_b32 v21, 7, v0
        """ % SCR_LDS)
        for i in range(4):
            a(f"v_add_u32 v22, {8*i}, v20")
            unswap23(a, 23, 22, 246, 247)
            a("v_mul_u32_u24 v23, 1280, v23")
            a("v_lshl_add_u32 v23, v21, 4, v23")
            a(f"s_add_u32 m0, s62, {1024*i}")
            a("s_nop 0")
            a.vmem("buffer_load_dwordx4 v23, s[64:67], s61 offen lds", "b2", optional=True)
        a.label("L_b2_skip1_%s" % a.tag)

    def b2_finish():
        a("s_cmp_lt_u32 s58, 680")
        a("s_cbranch_scc0 L_b2_skip2_%s" % a.tag)
        a("v_lshlrev_b32 v1, 7, v9")
        a("v_lshl_add_u32 v1, v4, 3, v1")
        a("v_add_u32 v1, s62, v1")
        regs = [244, 248, 252, 20]
        for jj in range(4):
            a(f"ds_read_b64_tr_b16 {vr(regs[jj],2)}, v1 offset:{32*jj}")
            a(f"ds_read_b64_tr_b16 {vr(regs[jj]+2,2)}, v1 offset:{32*jj+1024}")
        a("s_waitcnt lgkmcnt(0)")
        for jj in range(4):
            a("s_lshl_b32 s61, s60, 2")
            a(f"s_add_u32 s61, s61, {jj}")
            sdiv(a, 62, 61, 5, 40)
            a("s_mul_i32 s63, s62, 5")
            a("s_sub_u32 s63, s61, s63")
            a("s_mul_i32 s62, s62, 68")
            a("s_add_u32 s62, s62, s59")
            a("s_mul_i32 s62, s62, 5")
            a("s_add_u32 s62, s62, s63")
            a("s_lshl_b32 s62, s62, 10")
            a(f"s_add_u32 s62, s62, {B2_OFF}")
            a.vmem(f"buffer_store_dwordx4 {vr(regs[jj],4)}, v5, s[12:15], s62 offen", "b2s", optional=True)
        a("s_nop 4")
        a.label("L_b2_skip2_%s" % a.tag)

    a("s_cmp_eq_u32 s3, 0")
    a("s_cbranch_scc1 L_g1_attn")

    a.tag = "g"
    a.vm = []
    AR_G = 16384
    BR_G = 49152
    BS_G = 24576
    srd(a, 16, 8, 640 * 3072)
    srd(a, 20, 10, 640 * 3072)
    a("""
    s_cmp_lt_u32 s32, 4
    s_cselect_b32 s24, s8, s10
    s_cselect_b32 s25, s9, s11
    s_mov_b32 s26, 1966080
    s_mov_b32 s27, 0x00020000
    s_mov_b32 s43, 12288
    s_cselect_b32 s43, 0, s43
    """)
    a(f"""
    s_lshl_b32 s40, s32, 10
    s_add_u32 s41, s40, {BR_G}
    s_add_u32 s42, s40, {BR_G+12288}
    s_lshl_b32 s44, s37, 10
    s_add_u32 s43, s43, s44
    s_add_u32 s43, s43, {BR_G+8192}
    """)
    a("""
    s_lshl_b32 s44, s33, 4
    s_add_u32 s44, s44, s32
    s_mul_i32 s44, s44, 10240
    v_add_u32 v10, s44, v7
    v_add_u32 v11, 81920, v10
    s_mul_i32 s45, s34, 384
    """)

    def gate_off(dst, sInstr):
        a(f"s_lshl_b32 s44, s{sInstr}, 6")
        a(f"v_add_u32 v20, s44, v0")
        divsmall(a, 21, 20, 48)
        a("v_mul_u32_u24 v22, 48, v21")
        a("v_sub_u32 v22, v20, v22")
        a("v_and_b32 v23, 7, v21")
        a("v_lshlrev_b32 v23, 1, v23")
        a("v_xor_b32 v22, v22, v23")
        a("v_cmp_le_u32 vcc, 24, v22")
        a("s_nop 1")
        a("v_cndmask_b32 v23, 0, 1, vcc")
        a("v_mul_u32_u24 v24, 24, v23")
        a("v_sub_u32 v22, v22, v24")
        a("v_lshl_add_u32 v21, v23, 4, v21")
        unswap23(a, 24, 21, 25, 26)
        a("v_mul_u32_u24 v24, 3072, v24")
        a("v_lshl_add_u32 v24, v22, 4, v24")
        a(f"v_add_u32 v{dst}, s45, v24")
    gate_off(12, 32)
    a("s_add_u32 s46, s37, 8")
    gate_off(13, 46)
    a("s_mov_b32 s47, 0")
    a("s_mov_b32 s48, 0")

    def dma_g(st):
        sb = (st & 3) * BS_G
        if st % 2 == 0:
            ab = ((st // 2) % 3) * AR_G
            a(f"s_add_u32 m0, s40, {ab}")
            a("s_nop 0")
            a.vmem("buffer_load_dwordx4 v10, s[28:31], s47 offen lds", ("st", st))
            a(f"s_add_u32 m0, s40, {ab+8192}")
            a("s_nop 0")
            a.vmem("buffer_load_dwordx4 v11, s[28:31], s47 offen lds", ("st", st))
            a("s_add_u32 s47, s47, 128")
        a(f"s_add_u32 m0, s41, {sb}")
        a("s_nop 0")
        a.vmem("buffer_load_dwordx4 v12, s[16:19], s48 offen lds", ("st", st))
        a(f"s_add_u32 m0, s42, {sb}")
        a("s_nop 0")
        a.vmem("buffer_load_dwordx4 v12, s[20:23], s48 offen lds", ("st", st))
        a(f"s_add_u32 m0, s43, {sb}")
        a("s_nop 0")
        a.vmem("buffer_load_dwordx4 v13, s[24:27], s48 offen lds", ("st", st))
        a("s_add_u32 s48, s48, 98304")

    a.stamp(1)
    for st in range(4):
        dma_g(st)
    def tlb_g(k0=4, nk=16, tg=0):
        a(f"""
        s_mul_i32 s44, s33, {2*nk}
        s_add_u32 s44, s44, {32*k0}
        v_min_u32 v20, {2*nk-1}, v0
        v_add_u32 v20, s44, v20
        v_mul_u32_u24 v20, 3072, v20
        v_add_u32 v20, s45, v20
        """)
        offs = {1: [0], 2: [0, 256], 3: [0, 128, 256]}[TLBPF]
        for li, off in enumerate(offs):
            for mtx, sr in enumerate((16, 20)):
                wv = 2 * li + mtx
                a(f"s_cmp_eq_u32 s32, {wv}")
                a(f"s_cbranch_scc0 L_tlb_g{wv}_{tg}")
                a.vmem(f"buffer_load_dword v244, v20, s[{sr}:{sr+3}], 0 offen offset:{off}", "pf", optional=True)
                a.label(f"L_tlb_g{wv}_{tg}")
    if TLBPF and TLBAT < 0:
        tlb_g()

    def pf_w_g():
        a("""
        s_and_b32 s44, s32, 1
        s_cmp_eq_u32 s44, 0
        s_cselect_b32 s64, s8, s10
        s_cselect_b32 s65, s9, s11
        s_mov_b32 s66, 1966080
        s_mov_b32 s67, 0x00020000
        s_add_u32 s44, s33, 4
        s_lshl_b32 s44, s44, 5
        s_bfe_u32 s46, s32, 0x10001
        s_lshl_b32 s46, s46, 4
        s_add_u32 s44, s44, s46
        v_lshrrev_b32 v20, 2, v0
        v_add_u32 v20, s44, v20
        v_mul_u32_u24 v20, 3072, v20
        v_min_u32 v21, 2, v4
        v_lshl_add_u32 v20, v21, 7, v20
        v_add_u32 v20, s45, v20
        """)
        a.vmem("buffer_load_dword v244, v20, s[64:67], 0 offen", "pf")

    def pf_x_g():
        a("""
        s_lshl_b32 s44, s33, 4
        s_add_u32 s44, s44, s32
        s_lshl_b32 s44, s44, 3
        v_lshrrev_b32 v20, 3, v0
        v_add_u32 v20, s44, v20
        v_mul_u32_u24 v20, 1280, v20
        v_and_b32 v21, 7, v0
        v_lshl_add_u32 v20, v21, 7, v20
        """)
        a.vmem("buffer_load_dword v245, v20, s[28:31], 0 offen offset:256", "pf")

    XA = 208
    for mi in range(4):
        a(f"s_add_u32 s44, s37, {mi}")
        a("s_and_b32 s44, s44, 3")
        a("s_lshl_b32 s46, s36, 2")
        a("s_add_u32 s44, s44, s46")
        a("s_lshl_b32 s44, s44, 11")
        a(f"v_add_u32 v{XA+mi}, s44, v8")
        a(f"v_xor_b32 v{XA+4+mi}, 64, v{XA+mi}")
    WA = 216
    a(f"""
    v_and_b32 v20, 7, v9
    v_lshrrev_b32 v21, 1, v2
    v_mul_u32_u24 v21, 12, v21
    s_mul_i32 s44, s37, 3
    v_add_u32 v21, s44, v21
    v_mul_u32_u24 v22, 768, v20
    v_lshl_add_u32 v22, v4, 3, v22
    v_add_u32 v22, {BR_G}, v22
    s_mul_i32 s44, s36, 12288
    s_sub_u32 s46, 12288, s44
    """)
    for i in range(3):
        a(f"v_add_u32 v23, {i}, v21")
        a("v_xor_b32 v23, v23, v20")
        a(f"v_lshl_add_u32 v23, v23, 5, v22")
        a(f"v_add_u32 v{WA+i}, s44, v23")
        a(f"v_add_u32 v{WA+3+i}, s46, v23")
        a(f"v_add_u32 v{WA+6+i}, {2*BS_G}, v{WA+i}")
        a(f"v_add_u32 v{WA+9+i}, {2*BS_G}, v{WA+3+i}")

    def xaddr_g(mi, ks):
        return XA + 4 * (ks & 1) + mi, ((ks // 2) % 3) * AR_G

    def waddr_g(j, ks):
        slot = ks & 3
        v = WA + (6 if slot >= 2 else 0) + j
        return v, (slot & 1) * BS_G, 6144

    ACC = 32
    FR = 128
    CS, RS = 232, 24
    a("""
    s_lshl_b32 s44, s33, 1
    v_and_b32 v14, 1, v0
    v_add_u32 v14, s44, v14
    v_mul_u32_u24 v14, 3072, v14
    v_bfe_u32 v20, v0, 1, 2
    v_min_u32 v20, 2, v20
    v_lshl_add_u32 v14, v20, 7, v14
    v_add_u32 v14, s45, v14
    s_lshl_b32 s44, s33, 7
    v_add_u32 v15, s44, v0
    v_mul_u32_u24 v15, 1280, v15
    """)

    def mk_roll(ks, wsrds, wstride, extra=None):
        def f():
            if extra:
                extra()
            if PFD and ks + PFD < NK:
                lab = f"L_pf_{a.tag}_{ks}"
                a(f"s_cmp_eq_u32 s32, {ks & 7}")
                a(f"s_cbranch_scc0 {lab}")
                a(f"s_mov_b32 s44, {(ks+PFD)*wstride}")
                for sr in wsrds:
                    a.vmem(f"buffer_load_dword v244, v14, s[{sr}:{sr+3}], s44 offen", "pf", optional=True)
                a.label(lab)
            if PFD and ks % 2 == 0 and (ks + PFD) // 2 + 1 < 10:
                lab = f"L_pfx_{a.tag}_{ks}"
                a(f"s_cmp_eq_u32 s32, {(ks + 1) & 7}")
                a(f"s_cbranch_scc0 {lab}")
                a(f"s_mov_b32 s44, {((ks+PFD)//2+1)*128}")
                a.vmem(f"buffer_load_dword v245, v15, s[28:31], s44 offen", "pf", optional=True)
                a.label(lab)
        return f
    hx = {B2AT: b2_issue, B2AT + 6: b2_finish}
    for bi, (at, k0, nk) in enumerate(PFSCHED):
        hx[at] = (lambda k0=k0, nk=nk, bi=bi: tlb_g(k0, nk, bi))
    hk = {ks: mk_roll(ks, (16, 20), 98304, hx.get(ks)) for ks in range(NK - 1)}
    k1_mainloop(a, 4, 6, dma_g, xaddr_g, waddr_g, ACC, FR, 3, 1, CS, RS, hooks=hk)
    a.stamp(7)
    a("s_mov_b32 s16, 0xffff0000")
    a("s_mov_b32 s17, 0x3acccccd")
    a("v_add_f32 v16, v24, v25")
    a("v_add_f32 v17, v26, v27")
    for v in (16, 17):
        red_g(a, v, 20)
    rowstat_math(a, 16, 20)
    a(f"""
    s_lshl_b32 s44, s36, 2
    s_add_u32 s44, s44, s37
    s_lshl_b32 s44, s44, 8
    s_add_u32 s44, s44, {STAT_LDS}
    v_lshl_add_u32 v20, v6, 4, s44
    ds_write_b128 v20, v[16:19]
    s_mul_i32 s44, s36, 12
    s_mul_i32 s46, s37, 3
    s_add_u32 s44, s44, s46
    s_lshl_b32 s44, s44, 6
    s_add_u32 s44, s44, {CS_LDS}
    v_lshl_add_u32 v20, v2, 4, s44
    ds_write_b128 v20, v[232:235]
    ds_write_b128 v20, v[236:239] offset:64
    ds_write_b128 v20, v[240:243] offset:128
    s_waitcnt lgkmcnt(0)
    s_barrier
    """)
    for mi in range(4):
        a(f"s_add_u32 s44, s37, {mi}")
        a("s_and_b32 s44, s44, 3")
        a("s_lshl_b32 s46, s36, 2")
        a("s_add_u32 s44, s44, s46")
        a("s_lshl_b32 s44, s44, 8")
        a(f"s_add_u32 s44, s44, {STAT_LDS}")
        a("v_lshl_add_u32 v20, v6, 4, s44")
        a(f"ds_read_b128 {vr(128+4*mi,4)}, v20")
    a(f"""
    s_mul_i32 s44, s37, 192
    s_add_u32 s44, s44, {CS_LDS}
    v_lshl_add_u32 v20, v2, 4, s44
    """)
    for i in range(3):
        a(f"ds_read_b128 {vr(144+4*i,4)}, v20 offset:{64*i}")
        a(f"ds_read_b128 {vr(156+4*i,4)}, v20 offset:{768+64*i}")
    a(f"""
    v_lshrrev_b32 v21, 1, v2
    v_lshl_add_u32 v20, v21, 4, v6
    v_lshlrev_b32 v20, 4, v20
    v_and_b32 v21, 1, v2
    v_lshl_add_u32 v20, v21, 3, v20
    s_lshl_b32 s44, s33, 3
    s_lshl_b32 s45, s36, 2
    s_add_u32 s44, s44, s45
    s_mul_i32 s44, s44, {A2_MT}
    s_add_u32 s44, s44, {A2_OFF + 20*1024}
    v_add_u32 v20, s44, v20
    s_mul_i32 s45, s34, 12
    s_mul_i32 s46, s37, 3
    s_add_u32 s45, s45, s46
    s_lshl_b32 s45, s45, 9
    s_add_u32 s46, s45, 512
    s_add_u32 s47, s45, 1024
    """)
    for mi in range(4):
        a(f"s_add_u32 s44, s37, {mi}")
        a("s_and_b32 s44, s44, 3")
        a(f"s_mul_i32 s44, s44, {A2_MT}")
        a(f"v_add_u32 v{24+mi}, s44, v20")
    a("s_waitcnt lgkmcnt(0)")

    def g_epi(swapped):
        for mi in range(4):
            P = 128 + 4 * mi
            for i in range(3):
                g = ACC + 4 * (mi * 6 + (3 + i if swapped else i))
                u = ACC + 4 * (mi * 6 + (i if swapped else 3 + i))
                for h in (0, 2):
                    a(f"v_pk_fma_f32 {vr(g+h,2)}, {vr(144+4*i+h,2)}, {vr(P,2)}, {vr(g+h,2)} op_sel_hi:[1,0,1] neg_lo:[0,1,0] neg_hi:[0,1,0]")
                for h in (0, 2):
                    a(f"v_pk_mul_f32 {vr(g+h,2)}, {vr(g+h,2)}, {vr(P+2,2)} op_sel_hi:[1,0]")
                for e in range(4):
                    a(f"v_exp_f32 v{g+e}, v{g+e}")
                for h in (0, 2):
                    a(f"v_pk_fma_f32 {vr(u+h,2)}, {vr(156+4*i+h,2)}, {vr(P,2)}, {vr(u+h,2)} op_sel_hi:[1,0,1] neg_lo:[0,1,0] neg_hi:[0,1,0]")
                for h in (0, 2):
                    a(f"v_pk_fma_f32 {vr(g+h,2)}, {vr(g+h,2)}, {vr(P+2,2)}, {vr(P+2,2)} op_sel:[0,1,1] op_sel_hi:[1,1,1]")
                for e in range(4):
                    a(f"v_rcp_f32 v{g+e}, v{g+e}")
                a("s_nop 0")
                for h in (0, 2):
                    a(f"v_pk_mul_f32 {vr(g+h,2)}, {vr(g+h,2)}, {vr(u+h,2)}")
                a(f"v_cvt_pk_bf16_f32 v{u}, v{g}, v{g+1}")
                a(f"v_cvt_pk_bf16_f32 v{u+1}, v{g+2}, v{g+3}")
                a(f"buffer_store_dwordx2 {vr(u,2)}, v{24+mi}, s[12:15], s{45+i} offen{ST_FLAGS}")
    a("s_cmp_eq_u32 s36, 0")
    a("s_cbranch_scc0 L_g1_g_sw")
    g_epi(False)
    a("s_branch L_g1_g_end")
    a.label("L_g1_g_sw")
    g_epi(True)
    a.label("L_g1_g_end")
    a.stamp(8, True)
    a.stamp_flush(12, 1, 32)
    a("s_endpgm")

    a.label("L_g1_attn")
    a.tag = "a"
    a.vm = []
    AR_A = 18432
    BR_A = 55296
    BS_A = 15360
    srd(a, 16, 6, 640 * 3840)
    a(f"""
    s_lshl_b32 s42, s32, 10
    s_add_u32 s40, s42, {BR_A}
    s_add_u32 s41, s42, {BR_A+8192}
    s_mul_i32 s45, s34, 160
    """)

    def qkv_off(dst, sInstr):
        a(f"s_lshl_b32 s44, s{sInstr}, 6")
        a(f"v_add_u32 v20, s44, v0")
        divsmall(a, 21, 20, 30)
        a("v_mul_u32_u24 v22, 30, v21")
        a("v_sub_u32 v22, v20, v22")
        divsmall(a, 23, 22, 10)
        a("v_mul_u32_u24 v24, 10, v23")
        a("v_sub_u32 v22, v22, v24")
        a("v_and_b32 v21, 31, v21")
        unswap23(a, 24, 21, 25, 26)
        a("v_mul_u32_u24 v24, 3840, v24")
        a("v_mul_u32_u24 v23, 1280, v23")
        a("v_add_u32 v24, v24, v23")
        a("v_lshl_add_u32 v24, v22, 4, v24")
        a(f"v_add_u32 v{dst}, s45, v24")

    def ajob_off(dst, sJob):
        a("s_lshl_b32 s44, s33, 4")
        a(f"s_add_u32 s44, s44, s{sJob}")
        a("s_max_u32 s44, s44, 2")
        a("s_sub_u32 s44, s44, 2")
        a("s_mul_i32 s44, s44, 10240")
        a(f"v_add_u32 v{dst}, s44, v7")
    qkv_off(12, 32)
    a("s_add_u32 s46, s32, 8")
    a("s_min_u32 s46, s46, 14")
    qkv_off(13, 46)
    ajob_off(10, 32)
    a("s_add_u32 s46, s32, 8")
    ajob_off(11, 46)
    a("s_and_b32 s46, s32, 1")
    a("s_add_u32 s46, s46, 16")
    ajob_off(19, 46)
    a("""
    s_mov_b32 s47, 0
    s_mov_b32 s48, 0
    """)

    def dma_a(st):
        sb = (st & 3) * BS_A
        a(f"s_add_u32 m0, s40, {sb}")
        a("s_nop 0")
        a.vmem("buffer_load_dwordx4 v12, s[16:19], s48 offen lds", ("st", st))
        a("s_cmp_eq_u32 s32, 7")
        lab = f"L_a_s1_{st}"
        a(f"s_cbranch_scc1 {lab}")
        a(f"s_add_u32 m0, s41, {sb}")
        a("s_nop 0")
        a.vmem("buffer_load_dwordx4 v13, s[16:19], s48 offen lds", ("st", st), optional=True)
        a.label(lab)
        a("s_add_u32 s48, s48, 122880")
        if st % 2 == 0:
            ab = ((st // 2) % 3) * AR_A
            lab = f"L_a_s4_{st}"
            a("s_cmp_ge_u32 s32, 6")
            a(f"s_cbranch_scc1 {lab}_o")
            a.label(lab)
            a.vm.append((("st", st), True))
            a.ool.append(f"{lab}_o:\ns_add_u32 m0, s42, {ab + 10*1024}\ns_nop 0\nbuffer_load_dwordx4 v19, s[28:31], s47 offen lds\ns_branch {lab}")
            a(f"s_add_u32 m0, s42, {ab}")
            a("s_nop 0")
            a.vmem("buffer_load_dwordx4 v10, s[28:31], s47 offen lds", ("st", st))
            a(f"s_add_u32 m0, s42, {ab+8192}")
            a("s_nop 0")
            a.vmem("buffer_load_dwordx4 v11, s[28:31], s47 offen lds", ("st", st))
            a("s_add_u32 s47, s47, 128")

    a.stamp(1)
    for st in range(4):
        dma_a(st)
    def tlb_a(k0=4, nk=16, tg=0):
        a(f"""
        s_mul_i32 s44, s33, {2*nk}
        s_add_u32 s44, s44, {32*k0}
        v_min_u32 v20, {2*nk-1}, v0
        v_add_u32 v20, s44, v20
        v_mul_u32_u24 v20, 3840, v20
        v_add_u32 v20, s45, v20
        s_mul_i32 s44, s32, 1280
        s_cmp_lt_u32 s32, 3
        s_cbranch_scc0 L_tlb_a0_{tg}
        """)
        a.vmem("buffer_load_dword v244, v20, s[16:19], s44 offen", "pf", optional=True)
        a.label(f"L_tlb_a0_{tg}")
        if TLBPF >= 3:
            a(f"""
            s_sub_u32 s44, s32, 3
            s_cmp_lt_u32 s44, 3
            s_cbranch_scc0 L_tlb_a1_{tg}
            s_mul_i32 s44, s44, 1280
            """)
            a.vmem("buffer_load_dword v244, v20, s[16:19], s44 offen offset:128", "pf", optional=True)
            a.label(f"L_tlb_a1_{tg}")
    if TLBPF and TLBAT < 0:
        tlb_a()

    def pf_w_a():
        a("""
        s_add_u32 s44, s33, 4
        s_lshl_b32 s44, s44, 5
        s_lshl_b32 s46, s37, 3
        s_add_u32 s44, s44, s46
        v_lshrrev_b32 v20, 3, v0
        v_add_u32 v20, s44, v20
        v_mul_u32_u24 v20, 3840, v20
        v_and_b32 v21, 7, v0
        v_min_u32 v21, 5, v21
        v_lshrrev_b32 v22, 1, v21
        v_mul_u32_u24 v22, 1280, v22
        v_and_b32 v21, 1, v21
        v_lshl_add_u32 v22, v21, 7, v22
        v_add3_u32 v20, v20, v22, s45
        """)
        a.vmem("buffer_load_dword v244, v20, s[16:19], 0 offen", "pf")

    def pf_x_a():
        a("""
        s_lshl_b32 s44, s33, 4
        s_add_u32 s44, s44, s32
        s_add_u32 s44, s44, 8
        s_lshl_b32 s44, s44, 3
        v_lshrrev_b32 v20, 3, v0
        v_add_u32 v20, s44, v20
        v_mul_u32_u24 v20, 1280, v20
        v_and_b32 v21, 7, v0
        v_lshl_add_u32 v20, v21, 7, v20
        """)
        a.vmem("buffer_load_dword v245, v20, s[28:31], 0 offen offset:256", "pf")

    for mi in range(5):
        a(f"s_add_u32 s44, s37, {mi}")
        a("s_sub_u32 s46, s44, 5")
        a("s_cmp_ge_u32 s44, 5")
        a("s_cselect_b32 s44, s46, s44")
        a("s_lshl_b32 s46, s36, 2")
        a("s_add_u32 s44, s44, s46")
        a("s_lshl_b32 s44, s44, 11")
        a(f"v_add_u32 v{XA+mi}, s44, v8")
        a(f"v_xor_b32 v{XA+5+mi}, 64, v{XA+mi}")
    WAa = 220
    a(f"""
    v_mul_u32_u24 v20, 480, v9
    v_lshl_add_u32 v20, v4, 3, v20
    v_add_u32 v20, {BR_A}, v20
    """)
    for j in range(4):
        a("s_lshl_b32 s44, s36, 1")
        a(f"s_add_u32 s44, s44, {j}")
        a("s_and_b32 s44, s44, 3")
        a("s_lshl_b32 s46, s37, 2")
        a("s_add_u32 s44, s44, s46")
        if j in (1, 3):
            a(f"s_mov_b32 s{50 if j == 1 else 51}, s44")
        a("s_lshl_b32 s44, s44, 5")
        a(f"v_add_u32 v{WAa+j}, s44, v20")

    def xaddr_a(mi, ks):
        return XA + 5 * (ks & 1) + mi, ((ks // 2) % 3) * AR_A

    def waddr_a(j, ks):
        return WAa + j, (ks & 3) * BS_A, 3840

    CSa, RSa = 232, 24
    a("""
    s_lshl_b32 s44, s33, 1
    v_and_b32 v14, 1, v0
    v_add_u32 v14, s44, v14
    v_mul_u32_u24 v14, 3840, v14
    v_bfe_u32 v20, v0, 1, 3
    v_min_u32 v20, 5, v20
    v_lshrrev_b32 v21, 1, v20
    v_mul_u32_u24 v21, 1280, v21
    v_and_b32 v20, 1, v20
    v_lshl_add_u32 v21, v20, 7, v21
    v_add3_u32 v14, v14, v21, s45
    s_lshl_b32 s44, s33, 7
    s_add_u32 s44, s44, 64
    v_add_u32 v15, s44, v0
    v_mul_u32_u24 v15, 1280, v15
    """)
    hx = {B2AT: b2_issue, B2AT + 6: b2_finish}
    for bi, (at, k0, nk) in enumerate(PFSCHED):
        hx[at] = (lambda k0=k0, nk=nk, bi=bi: tlb_a(k0, nk, bi))
    hk = {ks: mk_roll(ks, (16,), 122880, hx.get(ks)) for ks in range(NK - 1)}
    k1_mainloop(a, 5, 4, dma_a, xaddr_a, waddr_a, ACC, FR, 2, 2, CSa, RSa, hooks=hk, mstat=112, skipj={1: 50, 3: 51})
    a.stamp(7)
    a("s_mov_b32 s16, 0xffff0000")
    a("s_mov_b32 s17, 0x3acccccd")
    a("""
    s_nop 7
    v_lshrrev_b32 v21, 2, v6
    v_cmp_eq_u32 s[40:41], v21, v2
    v_and_b32 v21, 3, v6
    v_cmp_eq_u32 s[42:43], 1, v21
    v_cmp_eq_u32 s[44:45], 2, v21
    v_cmp_eq_u32 s[46:47], 3, v21
    s_nop 1
    """)
    for mi, S in ((0, 12), (1, 16)):
        R0, Q0 = 112 + 8 * mi, 116 + 8 * mi
        a(f"v_mov_b32 v{S}, v{R0}")
        a(f"v_cndmask_b32 v{S+1}, v{Q0}, v{Q0+1}, s[42:43]")
        a(f"v_cndmask_b32 v{S+1}, v{S+1}, v{Q0+2}, s[44:45]")
        a(f"v_cndmask_b32 v{S+1}, v{S+1}, v{Q0+3}, s[46:47]")
        a(f"v_cndmask_b32 v{S+1}, 0, v{S+1}, s[40:41]")
        red_g(a, S + 1, 20)
    rowstat_math(a, 12, 20)
    rowstat_math(a, 16, 20)
    a(f"""
    s_lshl_b32 s44, s36, 2
    s_add_u32 s44, s44, s37
    s_lshl_b32 s44, s44, 8
    s_add_u32 s44, s44, {STAT_LDS}
    v_lshl_add_u32 v20, v6, 4, s44
    ds_write_b128 v20, v[12:15]
    s_cmp_eq_u32 s37, 3
    s_cbranch_scc0 L_a_nos1
    ds_write_b128 v20, v[16:19] offset:256
    L_a_nos1:
    s_lshl_b32 s44, s37, 2
    s_lshl_b32 s46, s36, 1
    s_add_u32 s44, s44, s46
    s_lshl_b32 s44, s44, 6
    s_add_u32 s44, s44, {CS_LDS}
    v_lshl_add_u32 v20, v2, 4, s44
    ds_write_b128 v20, v[232:235]
    ds_write_b128 v20, v[236:239] offset:64
    s_waitcnt lgkmcnt(0)
    s_barrier
    """)
    a.stamp(9)
    for mi in range(5):
        a(f"s_add_u32 s44, s37, {mi}")
        a("s_sub_u32 s46, s44, 5")
        a("s_cmp_ge_u32 s44, 5")
        a("s_cselect_b32 s44, s46, s44")
        a("s_lshl_b32 s46, s36, 2")
        a("s_add_u32 s44, s44, s46")
        a(f"s_mul_i32 s{58+mi}, s44, {16*488}")
        a("s_lshl_b32 s44, s44, 8")
        a(f"s_add_u32 s44, s44, {STAT_LDS}")
        a("v_lshl_add_u32 v20, v6, 4, s44")
        a(f"ds_read_b64 {vr(128+2*mi,2)}, v20")
    a("""
    v_mul_u32_u24 v21, 488, v6
    v_lshl_add_u32 v21, v2, 3, v21
    """)
    for j in range(4):
        a("s_lshl_b32 s44, s36, 1")
        a(f"s_add_u32 s44, s44, {j}")
        a("s_and_b32 s44, s44, 3")
        a("s_lshl_b32 s46, s37, 2")
        a("s_add_u32 s44, s44, s46")
        a(f"s_mov_b32 s{63+j}, s44")
        a("s_lshl_b32 s46, s44, 5")
        a(f"v_add_u32 v{24+j}, s46, v21")
        a("s_lshl_b32 s44, s44, 6")
        a(f"s_add_u32 s44, s44, {CS_LDS}")
        a("v_lshl_add_u32 v20, v2, 4, s44")
        a(f"ds_read_b128 {vr(140+4*j,4)}, v20")
    a("s_waitcnt lgkmcnt(0)")
    for j in range(4):
        a(f"s_cmp_eq_u32 s{63+j}, 15")
        a(f"s_cbranch_scc1 L_g1_a_skip{j}")
        for mi in range(5):
            P = 128 + 2 * mi
            acc = ACC + 4 * (mi * 4 + j)
            for h in (0, 2):
                a(f"v_pk_fma_f32 {vr(acc+h,2)}, {vr(140+4*j+h,2)}, {vr(P,2)}, {vr(acc+h,2)} op_sel_hi:[1,0,1] neg_lo:[0,1,0] neg_hi:[0,1,0]")
            for h in (0, 2):
                a(f"v_pk_mul_f32 {vr(acc+h,2)}, {vr(acc+h,2)}, {vr(P,2)} op_sel:[0,1] op_sel_hi:[1,1]")
            a(f"v_cvt_pk_bf16_f32 v{acc}, v{acc}, v{acc+1}")
            a(f"v_cvt_pk_bf16_f32 v{acc+1}, v{acc+2}, v{acc+3}")
            a(f"v_add_u32 v{acc+2}, s{58+mi}, v{24+j}")
            a(f"ds_write_b64 v{acc+2}, {vr(acc,2)}")
        a.label(f"L_g1_a_skip{j}")
    a("s_waitcnt lgkmcnt(0)")
    a("s_barrier")
    a.stamp(10)
    KF, VT0, VT1, QF, SS, PP, OO = 32, 52, 62, 72, 88, 120, 136
    T32 = 32 * 488
    a(f"""
    v_lshl_add_u32 v20, v6, 1, s36
    v_add_u32 v21, 16, v20
    v_subrev_u32 v22, 16, v20
    v_max_i32 v22, 0, v22
    s_mul_i32 s44, s37, 40
    v_mul_u32_u24 v21, 488, v21
    v_mul_u32_u24 v22, 488, v22
    v_lshl_add_u32 v23, v2, 4, s44
    v_add_u32 v21, v21, v23
    v_add_u32 v22, v22, v23
    v_lshl_add_u32 v24, v2, 2, v3
    v_lshl_add_u32 v24, v24, 1, s36
    v_add_u32 v25, 16, v24
    v_subrev_u32 v26, 16, v24
    v_max_i32 v26, 0, v26
    v_mul_u32_u24 v25, 488, v25
    v_mul_u32_u24 v26, 488, v26
    v_lshl_add_u32 v27, v4, 3, s44
    v_add_u32 v25, v25, v27
    v_add_u32 v26, v26, v27
    """)
    for qb in range(4):
        a(f"ds_read_b64 {vr(QF+4*qb,2)}, v21 offset:{qb*T32}")
        a(f"ds_read_b64 {vr(QF+4*qb+2,2)}, v21 offset:{qb*T32+8}")
    a(f"ds_read_b64 {vr(KF,2)}, v22 offset:160")
    a(f"ds_read_b64 {vr(KF+2,2)}, v22 offset:168")
    for t in range(4):
        a(f"ds_read_b64 {vr(KF+4+4*t,2)}, v21 offset:{t*T32+160}")
        a(f"ds_read_b64 {vr(KF+4+4*t+2,2)}, v21 offset:{t*T32+168}")
    a(f"ds_read_b64_tr_b16 {vr(VT0,2)}, v26 offset:320")
    a(f"ds_read_b64_tr_b16 {vr(VT1,2)}, v26 offset:352")
    for t in range(4):
        a(f"ds_read_b64_tr_b16 {vr(VT0+2+2*t,2)}, v25 offset:{t*T32+320}")
        a(f"ds_read_b64_tr_b16 {vr(VT1+2+2*t,2)}, v25 offset:{t*T32+352}")
    a(f"""
    s_mul_i32 s44, s34, 80
    s_mul_i32 s45, s37, 20
    s_add_u32 s44, s44, s45
    v_lshl_add_u32 v23, v2, 2, s44
    v_lshrrev_b32 v27, 3, v23
    v_lshlrev_b32 v27, 8, v27
    v_and_b32 v23, 4, v23
    v_lshl_add_u32 v27, v23, 1, v27
    v_lshrrev_b32 v23, 3, v6
    s_lshl_b32 s45, s33, 3
    v_add_u32 v23, s45, v23
    v_mul_u32_u24 v23, {A2_MT}, v23
    v_and_b32 v30, 7, v6
    v_lshl_add_u32 v30, v30, 1, s36
    v_lshl_add_u32 v23, v30, 4, v23
    v_add_u32 v22, v23, v27
    s_add_u32 s44, s44, 16
    s_lshr_b32 s45, s44, 3
    s_lshl_b32 s45, s45, 8
    s_and_b32 s44, s44, 4
    s_lshl_b32 s44, s44, 1
    s_add_u32 s45, s45, s44
    v_add_u32 v21, s45, v23
    """)
    a("v_lshlrev_b32 v28, 2, v2")
    a("v_add_u32 v29, 9, v6")
    for r in range(4):
        a(f"v_add_u32 v30, {r}, v28")
        a(f"v_cmp_ge_u32 s[{40+2*r}:{41+2*r}], v30, v29")
        a(f"v_cmp_le_u32 s[{48+2*r}:{49+2*r}], v30, v6")
        a(f"v_add_u32 v30, 7, v30")
        a(f"v_cmp_ge_u32 s[56:57], v30, v6")
        a("s_nop 1")
        a(f"s_and_b64 s[{48+2*r}:{49+2*r}], s[{48+2*r}:{49+2*r}], s[56:57]")
    a("v_cmp_gt_u32 s[56:57], 3, v2")
    a("v_cmp_gt_u32 s[58:59], 2, v2")
    a("s_cmp_eq_u32 s33, 0")
    for r in range(4):
        a(f"s_cselect_b64 s[{60+2*r}:{61+2*r}], 0, s[{40+2*r}:{41+2*r}]")
    a("""
    s_mov_b32 s18, 0x3ea52b5c
    s_mov_b32 s19, 0x3ea52b5c
    v_mov_b32 v29, 0xff800000
    """)
    a("s_waitcnt lgkmcnt(0)")
    a.stamp(11)
    for qb in range(4):
        q = QF + 4 * qb
        a(f"v_cndmask_b32 v{q}, 0, v{q}, s[56:57]")
        a(f"v_cndmask_b32 v{q+1}, 0, v{q+1}, s[56:57]")
        a(f"v_cndmask_b32 v{q+2}, 0, v{q+2}, s[58:59]")
        a(f"v_cndmask_b32 v{q+3}, 0, v{q+3}, s[58:59]")
    a("s_nop 1")
    for qb in range(4):
        a(f"v_mfma_f32_16x16x32_bf16 {vr(SS+8*qb,4)}, {vr(KF+4*qb,4)}, {vr(QF+4*qb,4)}, 0")
        a(f"v_mfma_f32_16x16x32_bf16 {vr(SS+8*qb+4,4)}, {vr(KF+4*qb+4,4)}, {vr(QF+4*qb,4)}, 0")
    a("s_nop 7")
    for qb in range(4):
        S = SS + 8 * qb
        mb = 60 if qb == 0 else 40
        for r in range(4):
            a(f"v_cndmask_b32 v{S+r}, v29, v{S+r}, s[{mb+2*r}:{mb+1+2*r}]")
            a(f"v_cndmask_b32 v{S+4+r}, v29, v{S+4+r}, s[{48+2*r}:{49+2*r}]")
        mx, t = 24 + (qb & 1) * 2, 25 + (qb & 1) * 2
        a(f"v_max3_f32 v{mx}, v{S}, v{S+1}, v{S+2}")
        a(f"v_max3_f32 v{mx}, v{mx}, v{S+3}, v{S+4}")
        a(f"v_max3_f32 v{mx}, v{mx}, v{S+5}, v{S+6}")
        a(f"v_max_f32 v{mx}, v{mx}, v{S+7}")
        a(f"v_mov_b32 v{t}, v{mx}")
        a("s_nop 1")
        a(f"v_permlane32_swap_b32 v{mx}, v{t}")
        a("s_nop 1")
        a(f"v_max_f32 v{mx}, v{mx}, v{t}")
        a(f"v_mov_b32 v{t}, v{mx}")
        a("s_nop 1")
        a(f"v_permlane16_swap_b32 v{mx}, v{t}")
        a("s_nop 1")
        a(f"v_max_f32 v{mx}, v{mx}, v{t}")
        a(f"v_mul_f32 v{mx}, s18, v{mx}")
        for h in range(0, 8, 2):
            a(f"v_pk_fma_f32 {vr(S+h,2)}, {vr(S+h,2)}, s[18:19], {vr(mx,2)} op_sel_hi:[1,1,0] neg_lo:[0,0,1] neg_hi:[0,0,1]")
        for e in range(8):
            a(f"v_exp_f32 v{S+e}, v{S+e}")
        a("s_nop 0")
        a(f"v_pk_add_f32 {vr(mx,2)}, {vr(S,2)}, {vr(S+2,2)}")
        a(f"v_pk_add_f32 {vr(30,2)}, {vr(S+4,2)}, {vr(S+6,2)}")
        a(f"v_pk_add_f32 {vr(mx,2)}, {vr(mx,2)}, {vr(30,2)}")
        a(f"v_add_f32 v{mx}, v{mx}, v{t}")
        red_g(a, mx, t)
        a(f"v_rcp_f32 v{mx}, v{mx}")
        a("s_nop 0")
        for h in range(0, 8, 2):
            a(f"v_pk_mul_f32 {vr(S+h,2)}, {vr(S+h,2)}, {vr(mx,2)} op_sel_hi:[1,0]")
        for h in range(4):
            a(f"v_cvt_pk_bf16_f32 v{PP+4*qb+h}, v{S+2*h}, v{S+2*h+1}")
    a.stamp(12)
    a("s_nop 1")
    for qb in range(4):
        a(f"v_mfma_f32_16x16x32_bf16 {vr(OO+8*qb,4)}, {vr(VT0+2*qb,4)}, {vr(PP+4*qb,4)}, 0")
        a(f"v_mfma_f32_16x16x32_bf16 {vr(OO+8*qb+4,4)}, {vr(VT1+2*qb,4)}, {vr(PP+4*qb,4)}, 0")
    a("s_nop 7")
    for qb in range(4):
        O = OO + 8 * qb
        a(f"v_cvt_pk_bf16_f32 v{O}, v{O}, v{O+1}")
        a(f"v_cvt_pk_bf16_f32 v{O+1}, v{O+2}, v{O+3}")
        a(f"v_cvt_pk_bf16_f32 v{O+4}, v{O+4}, v{O+5}")
        a(f"v_cvt_pk_bf16_f32 v{O+5}, v{O+6}, v{O+7}")
        a(f"s_mov_b32 s44, {A2_OFF + qb*2*A2_MT}")
        a(f"buffer_store_dwordx2 {vr(O,2)}, v22, s[12:15], s44 offen{ST_FLAGS}")
    a("s_mov_b64 exec, 0xffff")
    for qb in range(4):
        O = OO + 8 * qb
        a(f"s_mov_b32 s44, {A2_OFF + qb*2*A2_MT}")
        a(f"buffer_store_dwordx2 {vr(O+4,2)}, v21, s[12:15], s44 offen{ST_FLAGS}")
    a("s_mov_b64 exec, -1")
    a.stamp(8, True)
    a.stamp_flush(12, 1, 32)
    a.label("L_g1_done")
    a("s_endpgm")
    for blk in a.ool:
        a(blk)
    a.ool = []


def gen_k2(a):
    a.raw(".p2align 8")
    a.label("g2_kernel")
    a.vm = []
    a("""
    s_cmp_ge_u32 s2, 256
    s_cbranch_scc1 L_g2_done
    """)
    a.stamp(0)
    a("""
    s_load_dwordx2 s[4:5], s[0:1], 0
    s_load_dwordx2 s[10:11], s[0:1], 56
    s_load_dwordx2 s[28:29], s[0:1], 72
    v_lshrrev_b32 v1, 6, v0
    v_and_b32 v0, 63, v0
    s_nop 0
    v_readfirstlane_b32 s32, v1
    s_and_b32 s33, s2, 7
    s_lshr_b32 s3, s2, 3
    s_and_b32 s34, s3, 7
    s_lshr_b32 s3, s3, 3
    s_lshl_b32 s33, s33, 2
    s_add_u32 s33, s33, s3
    v_lshrrev_b32 v2, 4, v0
    v_lshlrev_b32 v5, 4, v0
    """)
    a(f"""
    s_mul_i32 s40, s32, 10
    s_lshl_b32 s41, s32, 3
    s_add_u32 s41, s41, 4
    s_cmp_lt_u32 s32, 2
    s_cselect_b32 s40, s40, s41
    s_lshl_b32 s47, s40, 10
    s_mul_i32 s48, s34, 68
    s_add_u32 s48, s48, s40
    s_mul_i32 s48, s48, 5120
    s_add_u32 s48, s48, {B2_OFF}
    s_mul_i32 s42, s32, 20480
    s_mul_i32 s45, s34, 160
    """)
    for mi in range(4):
        a(f"s_lshl_b32 s44, s33, 2")
        a(f"s_add_u32 s44, s44, {mi}")
        a(f"s_mul_i32 s44, s44, {A2_MT}")
        if A2_OFF:
            a(f"s_add_u32 s44, s44, {A2_OFF}")
        a(f"v_add_u32 v{10+mi}, s44, v5")
    a("v_add_u32 v14, 4096, v5")
    a("s_waitcnt lgkmcnt(0)")
    srd(a, 12, 28, WS_BYTES)
    srd(a, 20, 4, 2048 * 1280)
    srd(a, 24, 10, 2048 * 1280)
    ACC = 32
    ST = 112

    def issue(st):
        b = ST + 36 * (st & 3)
        for mi in range(4):
            a.vmem(f"buffer_load_dwordx4 {vr(b+4*mi,4)}, v{10+mi}, s[12:15], s47 offen", ("st", st))
        for j in range(4):
            a.vmem(f"buffer_load_dwordx4 {vr(b+16+4*j,4)}, v5, s[12:15], s48 offen offset:{1024*j}", ("st", st))
        a.vmem(f"buffer_load_dwordx4 {vr(b+32,4)}, v14, s[12:15], s48 offen", ("st", st))
        a("s_add_u32 s47, s47, 1024")
        a("s_add_u32 s48, s48, 5120")

    def body(n):
        a.vm = []
        a.stamp(1)
        for st in range(4):
            issue(st)
        a.stamp(2)
        for s in range(n):
            b = ST + 36 * (s & 3)
            a.wait_vm(("st", s))
            if s in (0, 3, 7):
                a.stamp({0: 3, 3: 4, 7: 5}[s])
            for j in range(5):
                for mi in range(4):
                    acc = ACC + 4 * (mi * 5 + j)
                    c = "0" if s == 0 else vr(acc, 4)
                    a(f"v_mfma_f32_16x16x32_bf16 {vr(acc,4)}, {vr(b+16+4*j,4)}, {vr(b+4*mi,4)}, {c}")
            if s + 4 < n:
                issue(s + 4)

    a("s_cmp_lt_u32 s32, 2")
    a("s_cbranch_scc0 L_g2_h")
    body(10)
    a("s_branch L_g2_red")
    a.label("L_g2_h")
    body(8)
    a.label("L_g2_red")
    a.stamp(6)
    a("s_nop 7")
    a("s_nop 7")
    a("v_add_u32 v20, s42, v5")
    for st in range(20):
        a(f"ds_write_b128 v20, {vr(ACC+4*st,4)} offset:{st*1024}")
    a("s_waitcnt lgkmcnt(0)")
    a("s_barrier")
    a.stamp(7, True)
    a.stamp_flush(12, 2, 32)
    a("s_mov_b32 s16, 0xffff0000")
    for r in range(3):
        if r == 2:
            a("s_cmp_ge_u32 s32, 4")
            a("s_cbranch_scc1 L_g2_done")
        a(f"s_add_u32 s40, s32, {8*r}")
        a("s_mul_i32 s41, s40, 52")
        a("s_lshr_b32 s41, s41, 8")
        a("s_mul_i32 s43, s41, 5")
        a("s_sub_u32 s43, s40, s43")
        a("""
        s_lshl_b32 s44, s33, 6
        s_lshl_b32 s41, s41, 4
        s_add_u32 s44, s44, s41
        v_and_b32 v21, 15, v0
        v_add_u32 v21, s44, v21
        v_mul_u32_u24 v21, 1280, v21
        v_lshl_add_u32 v21, v2, 3, v21
        s_lshl_b32 s43, s43, 5
        s_add_u32 s43, s43, s45
        v_add_u32 v21, s43, v21
        buffer_load_dwordx2 v[22:23], v21, s[20:23], 0 offen
        s_lshl_b32 s40, s40, 10
        v_add_u32 v20, s40, v5
        v_add_u32 v24, 81920, v20
        """)
        for w in range(8):
            if w < 4:
                a(f"ds_read_b128 {vr(32+4*w,4)}, v20 offset:{w*20480}")
            else:
                a(f"ds_read_b128 {vr(32+4*w,4)}, v24 offset:{(w-4)*20480}")
        a("s_waitcnt lgkmcnt(0)")
        for e in range(4):
            a(f"v_add_f32 v{32+e}, v{32+e}, v{36+e}")
            a(f"v_add_f32 v{40+e}, v{40+e}, v{44+e}")
            a(f"v_add_f32 v{48+e}, v{48+e}, v{52+e}")
            a(f"v_add_f32 v{56+e}, v{56+e}, v{60+e}")
            a(f"v_add_f32 v{40+e}, v{40+e}, v{48+e}")
            a(f"v_add_f32 v{40+e}, v{40+e}, v{56+e}")
        a("s_waitcnt vmcnt(0)")
        for p in range(2):
            a0, a1, b0, b1 = 32 + 2 * p, 33 + 2 * p, 40 + 2 * p, 41 + 2 * p
            a(f"v_cvt_pk_bf16_f32 v25, v{a0}, v{a1}")
            a(f"v_cvt_pk_bf16_f32 v26, v{b0}, v{b1}")
            a(f"v_lshlrev_b32 v{a0}, 16, v25")
            a(f"v_and_b32 v{a1}, s16, v25")
            a(f"v_lshlrev_b32 v{b0}, 16, v26")
            a(f"v_and_b32 v{b1}, s16, v26")
            a(f"v_lshlrev_b32 v25, 16, v{22+p}")
            a(f"v_and_b32 v26, s16, v{22+p}")
            a(f"v_add_f32 v{a0}, v{a0}, v25")
            a(f"v_add_f32 v{a1}, v{a1}, v26")
            a(f"v_cvt_pk_bf16_f32 v25, v{a0}, v{a1}")
            a(f"v_lshlrev_b32 v{a0}, 16, v25")
            a(f"v_and_b32 v{a1}, s16, v25")
            a(f"v_add_f32 v{a0}, v{a0}, v{b0}")
            a(f"v_add_f32 v{a1}, v{a1}, v{b1}")
            a(f"v_cvt_pk_bf16_f32 v{28+p}, v{a0}, v{a1}")
        a("buffer_store_dwordx2 v[28:29], v21, s[24:27], 0 offen")
        a("s_nop 1")
    a.label("L_g2_done")
    a("s_endpgm")


def kd(name, vgpr, sgpr=102):
    acc = (vgpr + 3) // 4 * 4
    return f""".p2align 6
.amdhsa_kernel {name}
  .amdhsa_next_free_vgpr {vgpr}
  .amdhsa_next_free_sgpr {sgpr}
  .amdhsa_accum_offset {acc}
  .amdhsa_group_segment_fixed_size 0
  .amdhsa_kernarg_size 80
  .amdhsa_user_sgpr_count 2
  .amdhsa_user_sgpr_kernarg_segment_ptr 1
  .amdhsa_system_sgpr_workgroup_id_x 1
.end_amdhsa_kernel
"""


def main(outpath):
    a = Asm()
    a.raw("; @launch kernel=g1_kernel grid=(256,1,1) block=(512,1,1) lds=163840")
    a.raw("; @launch kernel=g2_kernel grid=(256,1,1) block=(512,1,1) lds=163840")
    a.raw('.amdgcn_target "amdgcn-amd-amdhsa--gfx950"')
    a.raw(".text")
    for k in ("g1_kernel", "g2_kernel"):
        a.raw(f".globl {k}")
        a.raw(f".type {k},@function")
    gen_k1(a)
    gen_k2(a)
    a.raw('.section .rodata,"a"')
    a.raw(kd("g1_kernel", 256))
    a.raw(kd("g2_kernel", 256))
    open(outpath, "w").write(a.text())


if __name__ == "__main__":
    if len(sys.argv) > 2 and sys.argv[2] == "stamp":
        STAMP = True
    main(sys.argv[1] if len(sys.argv) > 1 else f"cdna_kernels/{NAME}.s")
```

```python
import sys, os

NAME = "parallel_sum__sliding_local_dilated__glu_gated_glu__prompt"
A2_OFF = 0
B2_OFF = 9 << 20
WS_BYTES = 16 << 20
A2_MT = 68 * 1024
STAMP = False
DBGSTAMP = os.environ.get("DBGSTAMP", "") == "1"
ST_FLAGS = os.environ.get("STF", "")
B2F = os.environ.get("B2F", "")
PFD = int(os.environ.get("PFD", "0"))
XP = os.environ.get("XP", "")
TLBPF = int(os.environ.get("TLBPF", "3"))
TLBAT = int(os.environ.get("TLBAT", "0"))
B2AT = int(os.environ.get("B2AT", "9"))
PFSCHED = eval(os.environ.get("PFSCHED", "[(0,4,6),(3,10,5),(6,15,5)]"))


class Asm:
    def __init__(self):
        self.lines = []
        self.vm = []
        self.ool = []

    def __call__(self, s):
        for ln in s.strip("\n").split("\n"):
            ln = ln.strip()
            if ln:
                self.lines.append("    " + ln)

    def label(self, l):
        self.lines.append(l + ":")

    def raw(self, s):
        self.lines.append(s)

    def text(self):
        return "\n".join(l for l in self.lines if l.strip() != "#CHUNK") + "\n"

    def capture(self, fn, *args):
        save = self.lines
        self.lines = []
        fn(*args)
        got = self.lines
        self.lines = save
        chunks, cur = [], []
        for ln in got:
            if ln.strip() == "#CHUNK":
                if cur:
                    chunks.append(cur)
                cur = []
            else:
                cur.append(ln)
        if cur:
            chunks.append(cur)
        return chunks

    def chunk(self):
        self.lines.append("#CHUNK")

    def vmem(self, s, tag, optional=False):
        self(s)
        self.vm.append((tag, optional))
        if not optional:
            self.chunk()

    def vm_count_after(self, tag):
        idx = max([i for i, (t, o) in enumerate(self.vm) if t == tag], default=-1)
        if idx < 0:
            return None
        return sum(1 for (t, o) in self.vm[idx + 1:] if not o)

    def wait_vm(self, tag, lgkm=False):
        n = self.vm_count_after(tag)
        parts = []
        if n is not None:
            assert n < 64
            parts.append(f"vmcnt({n})")
            idx = max([i for i, (t, o) in enumerate(self.vm) if t == tag])
            self.vm = self.vm[idx + 1:]
        if lgkm:
            parts.append("lgkmcnt(0)")
        if parts:
            self("s_waitcnt " + " ".join(parts))

    def stamp(self, n, last=False):
        if not STAMP:
            return
        self("s_memtime s[98:99]")
        self("s_waitcnt lgkmcnt(0)")
        if n == 0:
            self("s_mov_b32 s100, s98")
            self("s_memrealtime s[98:99]")
            self("s_waitcnt lgkmcnt(0)")
            self("s_mov_b32 s101, s98")
            return
        if n == 1:
            self("v_mov_b32 v1, s101")
            self("s_lshl_b32 s101, s2, 3")
            self("s_add_u32 s101, s101, s32")
            self("s_lshl_b32 s101, s101, 6")
            self(f"s_add_u32 s101, s101, {(12+self.kidx)<<20}")
            self("v_mov_b32 v255, 0")
            self("buffer_store_dword v1, v255, s[12:15], s101 offen offset:56")
            self("s_nop 1")
            self("v_mov_b32 v1, s100")
            self("buffer_store_dword v1, v255, s[12:15], s101 offen offset:0")
            self("s_nop 1")
            self.vm.append(("stamp", True)); self.vm.append(("stamp", True))
        self("v_mov_b32 v1, s98")
        self("v_mov_b32 v255, 0")
        self(f"buffer_store_dword v1, v255, s[12:15], s101 offen offset:{4*n}")
        self("s_nop 1")
        self.vm.append(("stamp", True))
        if last:
            self("s_memrealtime s[98:99]")
            self("s_waitcnt lgkmcnt(0)")
            self("v_mov_b32 v1, s98")
            self("buffer_store_dword v1, v255, s[12:15], s101 offen offset:60")
            self("s_nop 1")

    def stamp_flush(self, srd_ws, kidx, swave):
        return


def srd(a, d, base, nbytes):
    a(f"s_mov_b32 s{d}, s{base}")
    a(f"s_mov_b32 s{d+1}, s{base+1}")
    a(f"s_mov_b32 s{d+2}, {nbytes}")
    a(f"s_mov_b32 s{d+3}, 0x00020000")


def vr(b, n):
    return f"v[{b}:{b+n-1}]"


def unswap23(a, dst, src, t0, t1):
    a(f"v_lshrrev_b32 v{t0}, 1, v{src}")
    a(f"v_and_b32 v{t0}, 4, v{t0}")
    a(f"v_lshlrev_b32 v{t1}, 1, v{src}")
    a(f"v_and_b32 v{t1}, 8, v{t1}")
    a(f"v_and_b32 v{dst}, 0x13, v{src}")
    a(f"v_or3_b32 v{dst}, v{dst}, v{t0}, v{t1}")


def divsmall(a, q, p, d, lim=1024):
    m = (65536 + d - 1) // d
    for x in range(lim):
        assert (x * m) >> 16 == x // d, (d, x)
    a(f"v_mul_u32_u24 v{q}, {m}, v{p}")
    a(f"v_lshrrev_b32 v{q}, 16, v{q}")


def sdiv(a, q, p, d, lim):
    m = (65536 + d - 1) // d
    for x in range(lim):
        assert (x * m) >> 16 == x // d, (d, x)
    a(f"s_mul_i32 s{q}, s{p}, {m}")
    a(f"s_lshr_b32 s{q}, s{q}, 16")


def red_g(a, v, t):
    a(f"v_mov_b32 v{t}, v{v}")
    a("s_nop 1")
    a(f"v_permlane32_swap_b32 v{v}, v{t}")
    a("s_nop 1")
    a(f"v_add_f32 v{v}, v{v}, v{t}")
    a(f"v_mov_b32 v{t}, v{v}")
    a("s_nop 1")
    a(f"v_permlane16_swap_b32 v{v}, v{t}")
    a("s_nop 1")
    a(f"v_add_f32 v{v}, v{v}, v{t}")


NK = 20
STAT_LDS = 156 * 1024
CS_LDS = STAT_LDS + 2560
SCR_LDS = 144 * 1024
VONE = 228
TMP = 20


def k1_mainloop(a, NM, NN, dma_fn, xaddr_fn, waddr_fn, ACC, FR, ncs, nrs, CS, RS, hooks=None, mstat=None, skipj=None):
    FS = 4 * NM + 4 * NN

    def xfrag(s, mi):
        return FR + s * FS + 4 * mi

    def wfrag(s, j):
        return FR + s * FS + 4 * NM + 4 * j

    def reads(ks):
        s = ks & 1
        out = []
        for mi in range(NM):
            v, off = xaddr_fn(mi, ks)
            out.append(f"ds_read_b128 {vr(xfrag(s,mi),4)}, v{v} offset:{off}")
        for j in range(NN):
            v, off, dt = waddr_fn(j, ks)
            out.append(f"ds_read_b64_tr_b16 {vr(wfrag(s,j),2)}, v{v} offset:{off}")
            out.append(f"ds_read_b64_tr_b16 {vr(wfrag(s,j)+2,2)}, v{v} offset:{off+dt}")
        return out

    def mfmas(ks):
        s = ks & 1
        out = []
        for j in range(NN):
            grp = []
            for mi in range(NM):
                acc = ACC + 4 * (mi * NN + j)
                c = "0" if ks == 0 else vr(acc, 4)
                grp.append(f"v_mfma_f32_16x16x32_bf16 {vr(acc,4)}, {vr(wfrag(s,j),4)}, {vr(xfrag(s,mi),4)}, {c}")
            if skipj and j in skipj and "noskip" not in XP:
                lab = f"L_skj_{a.tag}_{ks}_{j}"
                out.append(f"s_cmp_eq_u32 s{skipj[j]}, 15\ns_cbranch_scc1 {lab}\n" + "\n".join(grp) + f"\n{lab}:")
            else:
                out.extend(grp)
        return out

    def stats(ks):
        s = ks & 1
        out = []
        for j in range(ncs):
            c = "0" if ks == 0 else vr(CS + 4 * j, 4)
            out.append(f"v_mfma_f32_16x16x32_bf16 {vr(CS+4*j,4)}, {vr(wfrag(s,j),4)}, {vr(VONE,4)}, {c}")
        valu = []
        if mstat is not None:
            for mi in range(2):
                R0, Q0 = mstat + 8 * mi, mstat + 8 * mi + 4
                c0 = "0" if ks == 0 else vr(R0, 4)
                c1 = "0" if ks == 0 else vr(Q0, 4)
                m0 = f"v_mfma_f32_16x16x32_bf16 {vr(R0,4)}, {vr(VONE,4)}, {vr(xfrag(s,mi),4)}, {c0}"
                m1 = f"v_mfma_f32_16x16x32_bf16 {vr(Q0,4)}, {vr(xfrag(s,mi),4)}, {vr(xfrag(s,mi),4)}, {c1}"
                if "noms" in XP:
                    continue
                if mi == 0:
                    out.extend([m0, m1] if "nosq" not in XP else [m0])
                else:
                    lab = f"L_ms_{a.tag}_{ks}"
                    out.append(f"s_cmp_eq_u32 s37, 3\ns_cbranch_scc1 {lab}_o\n{lab}:")
                    a.ool.append(f"{lab}_o:\n{m0}\n{m1}\ns_branch {lab}")
            return out, valu
        for mi in range(nrs):
            S0, S1, Q0, Q1 = [RS + 4 * mi + i for i in range(4)]
            for d in range(4):
                x = xfrag(s, mi) + d
                t0, t1 = TMP + 2 * (d & 1), TMP + 2 * (d & 1) + 1
                valu.append(f"v_lshlrev_b32 v{t0}, 16, v{x}")
                valu.append(f"v_and_b32 v{t1}, s69, v{x}")
                if ks == 0 and d == 0:
                    valu.append(f"v_mov_b32 v{S0}, v{t0}")
                    valu.append(f"v_mov_b32 v{S1}, v{t1}")
                    valu.append(f"v_mul_f32 v{Q0}, v{t0}, v{t0}")
                    valu.append(f"v_mul_f32 v{Q1}, v{t1}, v{t1}")
                else:
                    valu.append(f"v_add_f32 v{S0}, v{S0}, v{t0}")
                    valu.append(f"v_add_f32 v{S1}, v{S1}, v{t1}")
                    valu.append(f"v_fmac_f32 v{Q0}, v{t0}, v{t0}")
                    valu.append(f"v_fmac_f32 v{Q1}, v{t1}, v{t1}")
        if "novalu" in XP: valu = []
        if "nocs" in XP: out = []
        return out, valu

    a.stamp(2)
    a.wait_vm(("st", 0))
    a("s_barrier")
    a.stamp(3)
    for r in reads(0):
        a(r)
    for ks in range(NK):
        if ks + 1 < NK:
            a.wait_vm(("st", ks + 1), lgkm=True)
            a("s_barrier")
            if ks in (4, 10, 16):
                a.stamp({4: 4, 10: 5, 16: 6}[ks])
            if hooks and ks in hooks:
                hooks[ks]()
            dm = a.capture(dma_fn, ks + 4) if ks + 4 < NK else []
            if "nodma" in XP:
                dm = []; a.vm = []
            rd = reads(ks + 1)
            if "nolds" in XP: rd = []
        else:
            a("s_waitcnt lgkmcnt(0)")
            rd = []
            dm = []
        mf = mfmas(ks)
        smf, stt = stats(ks)
        mf = mf + smf
        nr = ns = nd = 0
        L = len(mf)
        for i, m in enumerate(mf):
            a(m)
            while nd < len(dm) and nd < 1 + i * len(dm) // (L - 2):
                a.lines.extend(dm[nd]); nd += 1
            while nr < len(rd) and nr < (i + 1) * len(rd) // max(1, L - 6):
                a(rd[nr]); nr += 1
            while ns < len(stt) and ns < (i + 1) * len(stt) // L:
                a(stt[ns]); ns += 1
        while nd < len(dm):
            a.lines.extend(dm[nd]); nd += 1
        while nr < len(rd):
            a(rd[nr]); nr += 1
        while ns < len(stt):
            a(stt[ns]); ns += 1


def rowstat_math(a, S, t):
    Q = S + 1
    a(f"v_mul_f32 v{S}, s17, v{S}")
    a(f"v_mul_f32 v{Q}, s17, v{Q}")
    a(f"v_fma_f32 v{Q}, -v{S}, v{S}, v{Q}")
    a(f"v_max_f32 v{Q}, 0, v{Q}")
    a(f"v_cvt_pk_bf16_f32 v{t}, v{S}, v{Q}")
    a(f"v_lshlrev_b32 v{S}, 16, v{t}")
    a(f"v_and_b32 v{Q}, s16, v{t}")
    a(f"v_add_f32 v{Q}, 0x3727c5ac, v{Q}")
    a(f"v_cvt_pk_bf16_f32 v{t}, v{Q}, v{Q}")
    a(f"v_and_b32 v{Q}, s16, v{t}")
    a(f"v_sqrt_f32 v{Q}, v{Q}")
    a("s_nop 0")
    a(f"v_cvt_pk_bf16_f32 v{t}, v{Q}, v{Q}")
    a(f"v_and_b32 v{S+3}, s16, v{t}")
    a(f"v_rcp_f32 v{t}, v{S+3}")
    a("s_nop 0")
    a(f"v_fma_f32 v{Q}, -v{S+3}, v{t}, 1.0")
    a(f"v_fma_f32 v{Q}, v{Q}, v{t}, v{t}")
    a(f"v_mul_f32 v{S+2}, 0xbfb8aa3b, v{Q}")


def gen_k1(a):
    a.raw(".p2align 8")
    a.label("g1_kernel")
    a.kidx = 1
    a("""
    s_cmp_ge_u32 s2, 256
    s_cbranch_scc1 L_g1_done
    """)
    a.stamp(0)
    a("""
    s_load_dwordx4 s[4:7], s[0:1], 0
    s_load_dwordx2 s[52:53], s[0:1], 16
    s_load_dwordx4 s[8:11], s[0:1], 32
    s_load_dwordx2 s[54:55], s[0:1], 48
    s_load_dwordx2 s[56:57], s[0:1], 72
    v_lshrrev_b32 v1, 6, v0
    v_and_b32 v0, 63, v0
    s_nop 0
    v_readfirstlane_b32 s32, v1
    s_and_b32 s34, s2, 7
    s_lshr_b32 s3, s2, 3
    s_and_b32 s33, s3, 15
    s_lshr_b32 s3, s3, 4
    s_lshr_b32 s36, s32, 2
    s_and_b32 s37, s32, 3
    v_lshrrev_b32 v2, 4, v0
    v_bfe_u32 v3, v0, 2, 2
    v_and_b32 v4, 3, v0
    v_lshlrev_b32 v5, 4, v0
    v_mov_b32 v228, 0x3f803f80
    v_mov_b32 v229, 0x3f803f80
    v_mov_b32 v230, 0x3f803f80
    v_mov_b32 v231, 0x3f803f80
    s_mov_b32 s69, 0xffff0000
    v_and_b32 v6, 15, v0
    s_waitcnt lgkmcnt(0)
    """)
    srd(a, 12, 56, WS_BYTES)
    srd(a, 28, 4, 2048 * 1280)
    a("""
    v_lshrrev_b32 v20, 3, v0
    v_and_b32 v21, 7, v0
    v_xor_b32 v21, v21, v20
    v_mul_u32_u24 v7, 1280, v20
    v_lshl_add_u32 v7, v21, 4, v7
    """)
    a("""
    v_and_b32 v20, 7, v6
    v_xor_b32 v21, v2, v20
    v_lshlrev_b32 v8, 7, v20
    v_lshl_add_u32 v8, v21, 4, v8
    v_lshrrev_b32 v20, 3, v6
    v_lshl_add_u32 v8, v20, 10, v8
    """)
    a("""
    v_and_b32 v20, 1, v2
    v_lshl_add_u32 v20, v20, 2, v3
    v_lshrrev_b32 v21, 1, v2
    v_lshl_add_u32 v9, v21, 4, v20
    """)

    def b2_issue():
        a("""
        s_mul_i32 s58, s2, 3
        s_add_u32 s58, s58, s32
        s_cmp_lt_u32 s32, 3
        s_cselect_b32 s58, s58, 4095
        s_cmp_lt_u32 s58, 680
        s_cbranch_scc0 L_b2_skip1_%s
        """ % a.tag)
        sdiv(a, 59, 58, 10, 680)
        a("""
        s_mul_i32 s60, s59, 10
        s_sub_u32 s60, s58, s60
        s_cmp_lt_u32 s59, 20
        s_cselect_b32 s64, s52, s54
        s_cselect_b32 s65, s53, s55
        s_mov_b32 s66, 1966080
        s_cselect_b32 s66, 819200, s66
        s_mov_b32 s67, 0x00020000
        s_sub_u32 s61, s59, 20
        s_cmp_lt_u32 s59, 20
        s_cselect_b32 s61, s59, s61
        s_mul_i32 s61, s61, 40960
        s_lshl_b32 s62, s60, 7
        s_add_u32 s61, s61, s62
        s_lshl_b32 s62, s32, 12
        s_add_u32 s62, s62, %d
        v_lshrrev_b32 v20, 3, v0
        v_and_b32 v21, 7, v0
        """ % SCR_LDS)
        for i in range(4):
            a(f"v_add_u32 v22, {8*i}, v20")
            unswap23(a, 23, 22, 246, 247)
            a("v_mul_u32_u24 v23, 1280, v23")
            a("v_lshl_add_u32 v23, v21, 4, v23")
            a(f"s_add_u32 m0, s62, {1024*i}")
            a("s_nop 0")
            a.vmem("buffer_load_dwordx4 v23, s[64:67], s61 offen lds", "b2", optional=True)
        a.label("L_b2_skip1_%s" % a.tag)

    def b2_finish():
        a("s_cmp_lt_u32 s58, 680")
        a("s_cbranch_scc0 L_b2_skip2_%s" % a.tag)
        a("v_lshlrev_b32 v1, 7, v9")
        a("v_lshl_add_u32 v1, v4, 3, v1")
        a("v_add_u32 v1, s62, v1")
        regs = [244, 248, 252, 20]
        for jj in range(4):
            a(f"ds_read_b64_tr_b16 {vr(regs[jj],2)}, v1 offset:{32*jj}")
            a(f"ds_read_b64_tr_b16 {vr(regs[jj]+2,2)}, v1 offset:{32*jj+1024}")
        a("s_waitcnt lgkmcnt(0)")
        for jj in range(4):
            a("s_lshl_b32 s61, s60, 2")
            a(f"s_add_u32 s61, s61, {jj}")
            sdiv(a, 62, 61, 5, 40)
            a("s_mul_i32 s63, s62, 5")
            a("s_sub_u32 s63, s61, s63")
            a("s_mul_i32 s62, s62, 68")
            a("s_add_u32 s62, s62, s59")
            a("s_mul_i32 s62, s62, 5")
            a("s_add_u32 s62, s62, s63")
            a("s_lshl_b32 s62, s62, 10")
            a(f"s_add_u32 s62, s62, {B2_OFF}")
            a.vmem(f"buffer_store_dwordx4 {vr(regs[jj],4)}, v5, s[12:15], s62 offen{B2F}", "b2s", optional=True)
        a("s_nop 4")
        a.label("L_b2_skip2_%s" % a.tag)

    a("s_cmp_eq_u32 s3, 0")
    a("s_cbranch_scc1 L_g1_attn")

    a.tag = "g"
    a.vm = []
    AR_G = 16384
    BR_G = 49152
    BS_G = 24576
    srd(a, 16, 8, 640 * 3072)
    srd(a, 20, 10, 640 * 3072)
    a("""
    s_cmp_lt_u32 s32, 4
    s_cselect_b32 s24, s8, s10
    s_cselect_b32 s25, s9, s11
    s_mov_b32 s26, 1966080
    s_mov_b32 s27, 0x00020000
    s_mov_b32 s43, 12288
    s_cselect_b32 s43, 0, s43
    """)
    a(f"""
    s_lshl_b32 s40, s32, 10
    s_add_u32 s41, s40, {BR_G}
    s_add_u32 s42, s40, {BR_G+12288}
    s_lshl_b32 s44, s37, 10
    s_add_u32 s43, s43, s44
    s_add_u32 s43, s43, {BR_G+8192}
    """)
    a("""
    s_lshl_b32 s44, s33, 4
    s_add_u32 s44, s44, s32
    s_mul_i32 s44, s44, 10240
    v_add_u32 v10, s44, v7
    v_add_u32 v11, 81920, v10
    s_mul_i32 s45, s34, 384
    """)

    def gate_off(dst, sInstr):
        a(f"s_lshl_b32 s44, s{sInstr}, 6")
        a(f"v_add_u32 v20, s44, v0")
        divsmall(a, 21, 20, 48)
        a("v_mul_u32_u24 v22, 48, v21")
        a("v_sub_u32 v22, v20, v22")
        a("v_and_b32 v23, 7, v21")
        a("v_lshlrev_b32 v23, 1, v23")
        a("v_xor_b32 v22, v22, v23")
        a("v_cmp_le_u32 vcc, 24, v22")
        a("s_nop 1")
        a("v_cndmask_b32 v23, 0, 1, vcc")
        a("v_mul_u32_u24 v24, 24, v23")
        a("v_sub_u32 v22, v22, v24")
        a("v_lshl_add_u32 v21, v23, 4, v21")
        unswap23(a, 24, 21, 25, 26)
        a("v_mul_u32_u24 v24, 3072, v24")
        a("v_lshl_add_u32 v24, v22, 4, v24")
        a(f"v_add_u32 v{dst}, s45, v24")
    gate_off(12, 32)
    a("s_add_u32 s46, s37, 8")
    gate_off(13, 46)
    a("s_mov_b32 s47, 0")
    a("s_mov_b32 s48, 0")

    def dma_g(st):
        sb = (st & 3) * BS_G
        if st % 2 == 0:
            ab = ((st // 2) % 3) * AR_G
            a(f"s_add_u32 m0, s40, {ab}")
            a("s_nop 0")
            a.vmem("buffer_load_dwordx4 v10, s[28:31], s47 offen lds", ("st", st))
            a(f"s_add_u32 m0, s40, {ab+8192}")
            a("s_nop 0")
            a.vmem("buffer_load_dwordx4 v11, s[28:31], s47 offen lds", ("st", st))
            a("s_add_u32 s47, s47, 128")
        a(f"s_add_u32 m0, s41, {sb}")
        a("s_nop 0")
        a.vmem("buffer_load_dwordx4 v12, s[16:19], s48 offen lds", ("st", st))
        a(f"s_add_u32 m0, s42, {sb}")
        a("s_nop 0")
        a.vmem("buffer_load_dwordx4 v12, s[20:23], s48 offen lds", ("st", st))
        a(f"s_add_u32 m0, s43, {sb}")
        a("s_nop 0")
        a.vmem("buffer_load_dwordx4 v13, s[24:27], s48 offen lds", ("st", st))
        a("s_add_u32 s48, s48, 98304")

    a.stamp(1)
    for st in range(4):
        dma_g(st)
    def tlb_g(k0=4, nk=16, tg=0):
        a(f"""
        s_mul_i32 s44, s33, {2*nk}
        s_add_u32 s44, s44, {32*k0}
        v_min_u32 v20, {2*nk-1}, v0
        v_add_u32 v20, s44, v20
        v_mul_u32_u24 v20, 3072, v20
        v_add_u32 v20, s45, v20
        """)
        offs = {1: [0], 2: [0, 256], 3: [0, 128, 256]}[TLBPF]
        for li, off in enumerate(offs):
            for mtx, sr in enumerate((16, 20)):
                wv = 2 * li + mtx
                a(f"s_cmp_eq_u32 s32, {wv}")
                a(f"s_cbranch_scc0 L_tlb_g{wv}_{tg}")
                a.vmem(f"buffer_load_dword v244, v20, s[{sr}:{sr+3}], 0 offen offset:{off}", "pf", optional=True)
                a.label(f"L_tlb_g{wv}_{tg}")
    if TLBPF and TLBAT < 0:
        tlb_g()

    def pf_w_g():
        a("""
        s_and_b32 s44, s32, 1
        s_cmp_eq_u32 s44, 0
        s_cselect_b32 s64, s8, s10
        s_cselect_b32 s65, s9, s11
        s_mov_b32 s66, 1966080
        s_mov_b32 s67, 0x00020000
        s_add_u32 s44, s33, 4
        s_lshl_b32 s44, s44, 5
        s_bfe_u32 s46, s32, 0x10001
        s_lshl_b32 s46, s46, 4
        s_add_u32 s44, s44, s46
        v_lshrrev_b32 v20, 2, v0
        v_add_u32 v20, s44, v20
        v_mul_u32_u24 v20, 3072, v20
        v_min_u32 v21, 2, v4
        v_lshl_add_u32 v20, v21, 7, v20
        v_add_u32 v20, s45, v20
        """)
        a.vmem("buffer_load_dword v244, v20, s[64:67], 0 offen", "pf")

    def pf_x_g():
        a("""
        s_lshl_b32 s44, s33, 4
        s_add_u32 s44, s44, s32
        s_lshl_b32 s44, s44, 3
        v_lshrrev_b32 v20, 3, v0
        v_add_u32 v20, s44, v20
        v_mul_u32_u24 v20, 1280, v20
        v_and_b32 v21, 7, v0
        v_lshl_add_u32 v20, v21, 7, v20
        """)
        a.vmem("buffer_load_dword v245, v20, s[28:31], 0 offen offset:256", "pf")

    XA = 208
    for mi in range(4):
        a(f"s_add_u32 s44, s37, {mi}")
        a("s_and_b32 s44, s44, 3")
        a("s_lshl_b32 s46, s36, 2")
        a("s_add_u32 s44, s44, s46")
        a("s_lshl_b32 s44, s44, 11")
        a(f"v_add_u32 v{XA+mi}, s44, v8")
        a(f"v_xor_b32 v{XA+4+mi}, 64, v{XA+mi}")
    WA = 216
    a(f"""
    v_and_b32 v20, 7, v9
    v_lshrrev_b32 v21, 1, v2
    v_mul_u32_u24 v21, 12, v21
    s_mul_i32 s44, s37, 3
    v_add_u32 v21, s44, v21
    v_mul_u32_u24 v22, 768, v20
    v_lshl_add_u32 v22, v4, 3, v22
    v_add_u32 v22, {BR_G}, v22
    s_mul_i32 s44, s36, 12288
    s_sub_u32 s46, 12288, s44
    """)
    for i in range(3):
        a(f"v_add_u32 v23, {i}, v21")
        a("v_xor_b32 v23, v23, v20")
        a(f"v_lshl_add_u32 v23, v23, 5, v22")
        a(f"v_add_u32 v{WA+i}, s44, v23")
        a(f"v_add_u32 v{WA+3+i}, s46, v23")
        a(f"v_add_u32 v{WA+6+i}, {2*BS_G}, v{WA+i}")
        a(f"v_add_u32 v{WA+9+i}, {2*BS_G}, v{WA+3+i}")

    def xaddr_g(mi, ks):
        return XA + 4 * (ks & 1) + mi, ((ks // 2) % 3) * AR_G

    def waddr_g(j, ks):
        slot = ks & 3
        v = WA + (6 if slot >= 2 else 0) + j
        return v, (slot & 1) * BS_G, 6144

    ACC = 32
    FR = 128
    CS, RS = 232, 24
    a("""
    s_lshl_b32 s44, s33, 1
    v_and_b32 v14, 1, v0
    v_add_u32 v14, s44, v14
    v_mul_u32_u24 v14, 3072, v14
    v_bfe_u32 v20, v0, 1, 2
    v_min_u32 v20, 2, v20
    v_lshl_add_u32 v14, v20, 7, v14
    v_add_u32 v14, s45, v14
    s_lshl_b32 s44, s33, 7
    v_add_u32 v15, s44, v0
    v_mul_u32_u24 v15, 1280, v15
    """)

    def mk_roll(ks, wsrds, wstride, extra=None):
        def f():
            if extra:
                extra()
            if PFD and ks + PFD < NK:
                lab = f"L_pf_{a.tag}_{ks}"
                a(f"s_cmp_eq_u32 s32, {ks & 7}")
                a(f"s_cbranch_scc0 {lab}")
                a(f"s_mov_b32 s44, {(ks+PFD)*wstride}")
                for sr in wsrds:
                    a.vmem(f"buffer_load_dword v244, v14, s[{sr}:{sr+3}], s44 offen", "pf", optional=True)
                a.label(lab)
            if PFD and ks % 2 == 0 and (ks + PFD) // 2 + 1 < 10:
                lab = f"L_pfx_{a.tag}_{ks}"
                a(f"s_cmp_eq_u32 s32, {(ks + 1) & 7}")
                a(f"s_cbranch_scc0 {lab}")
                a(f"s_mov_b32 s44, {((ks+PFD)//2+1)*128}")
                a.vmem(f"buffer_load_dword v245, v15, s[28:31], s44 offen", "pf", optional=True)
                a.label(lab)
        return f
    hx = {B2AT: b2_issue, B2AT + 6: b2_finish}
    for bi, (at, k0, nk) in enumerate(PFSCHED):
        hx[at] = (lambda k0=k0, nk=nk, bi=bi: tlb_g(k0, nk, bi))
    hk = {ks: mk_roll(ks, (16, 20), 98304, hx.get(ks)) for ks in range(NK - 1)}
    k1_mainloop(a, 4, 6, dma_g, xaddr_g, waddr_g, ACC, FR, 3, 1, CS, RS, hooks=hk)
    a.stamp(7)
    a("s_mov_b32 s16, 0xffff0000")
    a("s_mov_b32 s17, 0x3acccccd")
    a("v_add_f32 v16, v24, v25")
    a("v_add_f32 v17, v26, v27")
    for v in (16, 17):
        red_g(a, v, 20)
    rowstat_math(a, 16, 20)
    a(f"""
    s_lshl_b32 s44, s36, 2
    s_add_u32 s44, s44, s37
    s_lshl_b32 s44, s44, 8
    s_add_u32 s44, s44, {STAT_LDS}
    v_lshl_add_u32 v20, v6, 4, s44
    ds_write_b128 v20, v[16:19]
    s_mul_i32 s44, s36, 12
    s_mul_i32 s46, s37, 3
    s_add_u32 s44, s44, s46
    s_lshl_b32 s44, s44, 6
    s_add_u32 s44, s44, {CS_LDS}
    v_lshl_add_u32 v20, v2, 4, s44
    ds_write_b128 v20, v[232:235]
    ds_write_b128 v20, v[236:239] offset:64
    ds_write_b128 v20, v[240:243] offset:128
    s_waitcnt lgkmcnt(0)
    s_barrier
    """)
    for mi in range(4):
        a(f"s_add_u32 s44, s37, {mi}")
        a("s_and_b32 s44, s44, 3")
        a("s_lshl_b32 s46, s36, 2")
        a("s_add_u32 s44, s44, s46")
        a("s_lshl_b32 s44, s44, 8")
        a(f"s_add_u32 s44, s44, {STAT_LDS}")
        a("v_lshl_add_u32 v20, v6, 4, s44")
        a(f"ds_read_b128 {vr(128+4*mi,4)}, v20")
    a(f"""
    s_mul_i32 s44, s37, 192
    s_add_u32 s44, s44, {CS_LDS}
    v_lshl_add_u32 v20, v2, 4, s44
    """)
    for i in range(3):
        a(f"ds_read_b128 {vr(144+4*i,4)}, v20 offset:{64*i}")
        a(f"ds_read_b128 {vr(156+4*i,4)}, v20 offset:{768+64*i}")
    a(f"""
    v_lshrrev_b32 v21, 1, v2
    v_lshl_add_u32 v20, v21, 4, v6
    v_lshlrev_b32 v20, 4, v20
    v_and_b32 v21, 1, v2
    v_lshl_add_u32 v20, v21, 3, v20
    s_lshl_b32 s44, s33, 3
    s_lshl_b32 s45, s36, 2
    s_add_u32 s44, s44, s45
    s_mul_i32 s44, s44, {A2_MT}
    s_add_u32 s44, s44, {A2_OFF + 20*1024}
    v_add_u32 v20, s44, v20
    s_mul_i32 s45, s34, 12
    s_mul_i32 s46, s37, 3
    s_add_u32 s45, s45, s46
    s_lshl_b32 s45, s45, 9
    s_add_u32 s46, s45, 512
    s_add_u32 s47, s45, 1024
    """)
    for mi in range(4):
        a(f"s_add_u32 s44, s37, {mi}")
        a("s_and_b32 s44, s44, 3")
        a(f"s_mul_i32 s44, s44, {A2_MT}")
        a(f"v_add_u32 v{24+mi}, s44, v20")
    a("s_waitcnt lgkmcnt(0)")

    def g_epi(swapped):
        for mi in range(4):
            P = 128 + 4 * mi
            for i in range(3):
                g = ACC + 4 * (mi * 6 + (3 + i if swapped else i))
                u = ACC + 4 * (mi * 6 + (i if swapped else 3 + i))
                for h in (0, 2):
                    a(f"v_pk_fma_f32 {vr(g+h,2)}, {vr(144+4*i+h,2)}, {vr(P,2)}, {vr(g+h,2)} op_sel_hi:[1,0,1] neg_lo:[0,1,0] neg_hi:[0,1,0]")
                for h in (0, 2):
                    a(f"v_pk_mul_f32 {vr(g+h,2)}, {vr(g+h,2)}, {vr(P+2,2)} op_sel_hi:[1,0]")
                for e in range(4):
                    a(f"v_exp_f32 v{g+e}, v{g+e}")
                for h in (0, 2):
                    a(f"v_pk_fma_f32 {vr(u+h,2)}, {vr(156+4*i+h,2)}, {vr(P,2)}, {vr(u+h,2)} op_sel_hi:[1,0,1] neg_lo:[0,1,0] neg_hi:[0,1,0]")
                for h in (0, 2):
                    a(f"v_pk_fma_f32 {vr(g+h,2)}, {vr(g+h,2)}, {vr(P+2,2)}, {vr(P+2,2)} op_sel:[0,1,1] op_sel_hi:[1,1,1]")
                for e in range(4):
                    a(f"v_rcp_f32 v{g+e}, v{g+e}")
                a("s_nop 0")
                for h in (0, 2):
                    a(f"v_pk_mul_f32 {vr(g+h,2)}, {vr(g+h,2)}, {vr(u+h,2)}")
                a(f"v_cvt_pk_bf16_f32 v{u}, v{g}, v{g+1}")
                a(f"v_cvt_pk_bf16_f32 v{u+1}, v{g+2}, v{g+3}")
                a(f"buffer_store_dwordx2 {vr(u,2)}, v{24+mi}, s[12:15], s{45+i} offen{ST_FLAGS}")
    a("s_cmp_eq_u32 s36, 0")
    a("s_cbranch_scc0 L_g1_g_sw")
    g_epi(False)
    a("s_branch L_g1_g_end")
    a.label("L_g1_g_sw")
    g_epi(True)
    a.label("L_g1_g_end")
    a.stamp(8, True)
    a.stamp_flush(12, 1, 32)
    a("s_endpgm")

    a.label("L_g1_attn")
    a.tag = "a"
    a.vm = []
    AR_A = 18432
    BR_A = 55296
    BS_A = 15360
    srd(a, 16, 6, 640 * 3840)
    a(f"""
    s_lshl_b32 s42, s32, 10
    s_add_u32 s40, s42, {BR_A}
    s_add_u32 s41, s42, {BR_A+8192}
    s_mul_i32 s45, s34, 160
    """)

    def qkv_off(dst, sInstr):
        a(f"s_lshl_b32 s44, s{sInstr}, 6")
        a(f"v_add_u32 v20, s44, v0")
        divsmall(a, 21, 20, 30)
        a("v_mul_u32_u24 v22, 30, v21")
        a("v_sub_u32 v22, v20, v22")
        divsmall(a, 23, 22, 10)
        a("v_mul_u32_u24 v24, 10, v23")
        a("v_sub_u32 v22, v22, v24")
        a("v_and_b32 v21, 31, v21")
        unswap23(a, 24, 21, 25, 26)
        a("v_mul_u32_u24 v24, 3840, v24")
        a("v_mul_u32_u24 v23, 1280, v23")
        a("v_add_u32 v24, v24, v23")
        a("v_lshl_add_u32 v24, v22, 4, v24")
        a(f"v_add_u32 v{dst}, s45, v24")

    def ajob_off(dst, sJob):
        a("s_lshl_b32 s44, s33, 4")
        a(f"s_add_u32 s44, s44, s{sJob}")
        a("s_max_u32 s44, s44, 2")
        a("s_sub_u32 s44, s44, 2")
        a("s_mul_i32 s44, s44, 10240")
        a(f"v_add_u32 v{dst}, s44, v7")
    qkv_off(12, 32)
    a("s_add_u32 s46, s32, 8")
    a("s_min_u32 s46, s46, 14")
    qkv_off(13, 46)
    ajob_off(10, 32)
    a("s_add_u32 s46, s32, 8")
    ajob_off(11, 46)
    a("s_and_b32 s46, s32, 1")
    a("s_add_u32 s46, s46, 16")
    ajob_off(19, 46)
    a("""
    s_mov_b32 s47, 0
    s_mov_b32 s48, 0
    """)

    def dma_a(st):
        sb = (st & 3) * BS_A
        a(f"s_add_u32 m0, s40, {sb}")
        a("s_nop 0")
        a.vmem("buffer_load_dwordx4 v12, s[16:19], s48 offen lds", ("st", st))
        a("s_cmp_eq_u32 s32, 7")
        lab = f"L_a_s1_{st}"
        a(f"s_cbranch_scc1 {lab}")
        a(f"s_add_u32 m0, s41, {sb}")
        a("s_nop 0")
        a.vmem("buffer_load_dwordx4 v13, s[16:19], s48 offen lds", ("st", st), optional=True)
        a.label(lab)
        a("s_add_u32 s48, s48, 122880")
        if st % 2 == 0:
            ab = ((st // 2) % 3) * AR_A
            lab = f"L_a_s4_{st}"
            a("s_cmp_ge_u32 s32, 6")
            a(f"s_cbranch_scc1 {lab}_o")
            a.label(lab)
            a.vm.append((("st", st), True))
            a.ool.append(f"{lab}_o:\ns_add_u32 m0, s42, {ab + 10*1024}\ns_nop 0\nbuffer_load_dwordx4 v19, s[28:31], s47 offen lds\ns_branch {lab}")
            a(f"s_add_u32 m0, s42, {ab}")
            a("s_nop 0")
            a.vmem("buffer_load_dwordx4 v10, s[28:31], s47 offen lds", ("st", st))
            a(f"s_add_u32 m0, s42, {ab+8192}")
            a("s_nop 0")
            a.vmem("buffer_load_dwordx4 v11, s[28:31], s47 offen lds", ("st", st))
            a("s_add_u32 s47, s47, 128")

    a.stamp(1)
    for st in range(4):
        dma_a(st)
    def tlb_a(k0=4, nk=16, tg=0):
        a(f"""
        s_mul_i32 s44, s33, {2*nk}
        s_add_u32 s44, s44, {32*k0}
        v_min_u32 v20, {2*nk-1}, v0
        v_add_u32 v20, s44, v20
        v_mul_u32_u24 v20, 3840, v20
        v_add_u32 v20, s45, v20
        s_mul_i32 s44, s32, 1280
        s_cmp_lt_u32 s32, 3
        s_cbranch_scc0 L_tlb_a0_{tg}
        """)
        a.vmem("buffer_load_dword v244, v20, s[16:19], s44 offen", "pf", optional=True)
        a.label(f"L_tlb_a0_{tg}")
        if TLBPF >= 3:
            a(f"""
            s_sub_u32 s44, s32, 3
            s_cmp_lt_u32 s44, 3
            s_cbranch_scc0 L_tlb_a1_{tg}
            s_mul_i32 s44, s44, 1280
            """)
            a.vmem("buffer_load_dword v244, v20, s[16:19], s44 offen offset:128", "pf", optional=True)
            a.label(f"L_tlb_a1_{tg}")
    if TLBPF and TLBAT < 0:
        tlb_a()

    def pf_w_a():
        a("""
        s_add_u32 s44, s33, 4
        s_lshl_b32 s44, s44, 5
        s_lshl_b32 s46, s37, 3
        s_add_u32 s44, s44, s46
        v_lshrrev_b32 v20, 3, v0
        v_add_u32 v20, s44, v20
        v_mul_u32_u24 v20, 3840, v20
        v_and_b32 v21, 7, v0
        v_min_u32 v21, 5, v21
        v_lshrrev_b32 v22, 1, v21
        v_mul_u32_u24 v22, 1280, v22
        v_and_b32 v21, 1, v21
        v_lshl_add_u32 v22, v21, 7, v22
        v_add3_u32 v20, v20, v22, s45
        """)
        a.vmem("buffer_load_dword v244, v20, s[16:19], 0 offen", "pf")

    def pf_x_a():
        a("""
        s_lshl_b32 s44, s33, 4
        s_add_u32 s44, s44, s32
        s_add_u32 s44, s44, 8
        s_lshl_b32 s44, s44, 3
        v_lshrrev_b32 v20, 3, v0
        v_add_u32 v20, s44, v20
        v_mul_u32_u24 v20, 1280, v20
        v_and_b32 v21, 7, v0
        v_lshl_add_u32 v20, v21, 7, v20
        """)
        a.vmem("buffer_load_dword v245, v20, s[28:31], 0 offen offset:256", "pf")

    for mi in range(5):
        a(f"s_add_u32 s44, s37, {mi}")
        a("s_sub_u32 s46, s44, 5")
        a("s_cmp_ge_u32 s44, 5")
        a("s_cselect_b32 s44, s46, s44")
        a("s_lshl_b32 s46, s36, 2")
        a("s_add_u32 s44, s44, s46")
        a("s_lshl_b32 s44, s44, 11")
        a(f"v_add_u32 v{XA+mi}, s44, v8")
        a(f"v_xor_b32 v{XA+5+mi}, 64, v{XA+mi}")
    WAa = 220
    a(f"""
    v_mul_u32_u24 v20, 480, v9
    v_lshl_add_u32 v20, v4, 3, v20
    v_add_u32 v20, {BR_A}, v20
    """)
    for j in range(4):
        a("s_lshl_b32 s44, s36, 1")
        a(f"s_add_u32 s44, s44, {j}")
        a("s_and_b32 s44, s44, 3")
        a("s_lshl_b32 s46, s37, 2")
        a("s_add_u32 s44, s44, s46")
        if j in (1, 3):
            a(f"s_mov_b32 s{50 if j == 1 else 51}, s44")
        a("s_lshl_b32 s44, s44, 5")
        a(f"v_add_u32 v{WAa+j}, s44, v20")

    def xaddr_a(mi, ks):
        return XA + 5 * (ks & 1) + mi, ((ks // 2) % 3) * AR_A

    def waddr_a(j, ks):
        return WAa + j, (ks & 3) * BS_A, 3840

    CSa, RSa = 232, 24
    T32 = 32 * 488
    for mi in range(5):
        a(f"s_add_u32 s44, s37, {mi}")
        a("s_sub_u32 s46, s44, 5")
        a("s_cmp_ge_u32 s44, 5")
        a("s_cselect_b32 s44, s46, s44")
        a("s_lshl_b32 s46, s36, 2")
        a("s_add_u32 s44, s44, s46")
        a(f"s_mul_i32 s{70+mi}, s44, {16*488}")
        a("s_lshl_b32 s44, s44, 8")
        a(f"s_add_u32 s{75+mi}, s44, {STAT_LDS}")
    a("""
    v_mul_u32_u24 v21, 488, v6
    v_lshl_add_u32 v21, v2, 3, v21
    """)
    for j in range(4):
        a("s_lshl_b32 s44, s36, 1")
        a(f"s_add_u32 s44, s44, {j}")
        a("s_and_b32 s44, s44, 3")
        a("s_lshl_b32 s46, s37, 2")
        a("s_add_u32 s44, s44, s46")
        a("s_lshl_b32 s46, s44, 5")
        a(f"v_add_u32 v{200+j}, s46, v21")
        a("s_lshl_b32 s44, s44, 6")
        a(f"s_add_u32 s44, s44, {CS_LDS}")
        a(f"v_lshl_add_u32 v{224+j}, v2, 4, s44")
    a(f"""
    v_lshl_add_u32 v20, v6, 1, s36
    v_add_u32 v21, 16, v20
    v_subrev_u32 v22, 16, v20
    v_max_i32 v22, 0, v22
    s_mul_i32 s44, s37, 40
    v_mul_u32_u24 v21, 488, v21
    v_mul_u32_u24 v22, 488, v22
    v_lshl_add_u32 v23, v2, 4, s44
    v_add_u32 v204, v21, v23
    v_add_u32 v205, v22, v23
    v_lshl_add_u32 v20, v2, 2, v3
    v_lshl_add_u32 v20, v20, 1, s36
    v_add_u32 v21, 16, v20
    v_subrev_u32 v22, 16, v20
    v_max_i32 v22, 0, v22
    v_mul_u32_u24 v21, 488, v21
    v_mul_u32_u24 v22, 488, v22
    v_lshl_add_u32 v23, v4, 3, s44
    v_add_u32 v206, v21, v23
    v_add_u32 v207, v22, v23
    s_mul_i32 s44, s34, 80
    s_mul_i32 s46, s37, 20
    s_add_u32 s44, s44, s46
    v_lshl_add_u32 v23, v2, 2, s44
    v_lshrrev_b32 v21, 3, v23
    v_lshlrev_b32 v21, 8, v21
    v_and_b32 v23, 4, v23
    v_lshl_add_u32 v21, v23, 1, v21
    v_lshrrev_b32 v23, 3, v6
    s_lshl_b32 s46, s33, 3
    v_add_u32 v23, s46, v23
    v_mul_u32_u24 v23, {A2_MT}, v23
    v_and_b32 v22, 7, v6
    v_lshl_add_u32 v22, v22, 1, s36
    v_lshl_add_u32 v23, v22, 4, v23
    v_add_u32 v218, v23, v21
    s_add_u32 s44, s44, 16
    s_lshr_b32 s46, s44, 3
    s_lshl_b32 s46, s46, 8
    s_and_b32 s44, s44, 4
    s_lshl_b32 s44, s44, 1
    s_add_u32 s46, s46, s44
    v_add_u32 v219, s46, v23
    v_lshlrev_b32 v20, 2, v2
    v_add_u32 v21, 9, v6
    """)
    for r in range(4):
        a(f"v_add_u32 v22, {r}, v20")
        a(f"v_cmp_ge_u32 s[{80+2*r}:{81+2*r}], v22, v21")
        a(f"v_cmp_le_u32 s[{88+2*r}:{89+2*r}], v22, v6")
        a(f"v_add_u32 v22, 7, v22")
        a(f"v_cmp_ge_u32 s[38:39], v22, v6")
        a("s_nop 1")
        a(f"s_and_b64 s[{88+2*r}:{89+2*r}], s[{88+2*r}:{89+2*r}], s[38:39]")
    a("v_cmp_gt_u32 s[38:39], 3, v2")
    a("v_cmp_gt_u32 s[96:97], 2, v2")
    hx = {B2AT: b2_issue, B2AT + 6: b2_finish}
    for bi, (at, k0, nk) in enumerate(PFSCHED):
        hx[at] = (lambda k0=k0, nk=nk, bi=bi: tlb_a(k0, nk, bi))
    hk = {ks: mk_roll(ks, (16,), 122880, hx.get(ks)) for ks in range(NK - 1)}
    k1_mainloop(a, 5, 4, dma_a, xaddr_a, waddr_a, ACC, FR, 2, 2, CSa, RSa, hooks=hk, mstat=112, skipj={1: 50, 3: 51})
    a.stamp(7)
    a("s_mov_b32 s16, 0xffff0000")
    a("s_mov_b32 s17, 0x3acccccd")
    a("""
    s_nop 7
    v_lshrrev_b32 v21, 2, v6
    v_cmp_eq_u32 s[40:41], v21, v2
    v_and_b32 v21, 3, v6
    v_cmp_eq_u32 s[42:43], 1, v21
    v_cmp_eq_u32 s[44:45], 2, v21
    v_cmp_eq_u32 s[46:47], 3, v21
    s_nop 1
    """)
    for mi, S in ((0, 12), (1, 16)):
        R0, Q0 = 112 + 8 * mi, 116 + 8 * mi
        a(f"v_mov_b32 v{S}, v{R0}")
        a(f"v_cndmask_b32 v{S+1}, v{Q0}, v{Q0+1}, s[42:43]")
        a(f"v_cndmask_b32 v{S+1}, v{S+1}, v{Q0+2}, s[44:45]")
        a(f"v_cndmask_b32 v{S+1}, v{S+1}, v{Q0+3}, s[46:47]")
        a(f"v_cndmask_b32 v{S+1}, 0, v{S+1}, s[40:41]")
        red_g(a, S + 1, 20)
    rowstat_math(a, 12, 20)
    rowstat_math(a, 16, 20)
    a(f"""
    s_lshl_b32 s44, s36, 2
    s_add_u32 s44, s44, s37
    s_lshl_b32 s44, s44, 8
    s_add_u32 s44, s44, {STAT_LDS}
    v_lshl_add_u32 v20, v6, 4, s44
    ds_write_b128 v20, v[12:15]
    s_cmp_eq_u32 s37, 3
    s_cbranch_scc0 L_a_nos1
    ds_write_b128 v20, v[16:19] offset:256
    L_a_nos1:
    s_lshl_b32 s44, s37, 2
    s_lshl_b32 s46, s36, 1
    s_add_u32 s44, s44, s46
    s_lshl_b32 s44, s44, 6
    s_add_u32 s44, s44, {CS_LDS}
    v_lshl_add_u32 v20, v2, 4, s44
    ds_write_b128 v20, v[232:235]
    ds_write_b128 v20, v[236:239] offset:64
    s_waitcnt lgkmcnt(0)
    s_barrier
    """)
    a.stamp(9)
    a("v_lshlrev_b32 v21, 4, v6")
    for mi in range(5):
        a(f"v_add_u32 v20, s{75+mi}, v21")
        a(f"ds_read_b64 {vr(128+2*mi,2)}, v20")
    for j in range(4):
        a(f"ds_read_b128 {vr(140+4*j,4)}, v{224+j}")
    a("s_waitcnt lgkmcnt(0)")
    for j in range(4):
        if j in (1, 3):
            a(f"s_cmp_eq_u32 s{50 if j == 1 else 51}, 15")
            a(f"s_cbranch_scc1 L_g1_a_skip{j}")
        for mi in range(5):
            P = 128 + 2 * mi
            acc = ACC + 4 * (mi * 4 + j)
            for h in (0, 2):
                a(f"v_pk_fma_f32 {vr(acc+h,2)}, {vr(140+4*j+h,2)}, {vr(P,2)}, {vr(acc+h,2)} op_sel_hi:[1,0,1] neg_lo:[0,1,0] neg_hi:[0,1,0]")
            for h in (0, 2):
                a(f"v_pk_mul_f32 {vr(acc+h,2)}, {vr(acc+h,2)}, {vr(P,2)} op_sel:[0,1] op_sel_hi:[1,1]")
            a(f"v_cvt_pk_bf16_f32 v{acc}, v{acc}, v{acc+1}")
            a(f"v_cvt_pk_bf16_f32 v{acc+1}, v{acc+2}, v{acc+3}")
            a(f"v_add_u32 v{acc+2}, s{70+mi}, v{200+j}")
            a(f"ds_write_b64 v{acc+2}, {vr(acc,2)}")
        if j in (1, 3):
            a.label(f"L_g1_a_skip{j}")
    a("s_waitcnt lgkmcnt(0)")
    a("s_barrier")
    a.stamp(10)
    KF, VT0, VT1, QF, SS, PP, OO = 32, 52, 62, 72, 88, 120, 136
    for qb in range(4):
        a(f"ds_read_b64 {vr(QF+4*qb,2)}, v204 offset:{qb*T32}")
        a(f"ds_read_b64 {vr(QF+4*qb+2,2)}, v204 offset:{qb*T32+8}")
    a(f"ds_read_b64 {vr(KF,2)}, v205 offset:160")
    a(f"ds_read_b64 {vr(KF+2,2)}, v205 offset:168")
    for t in range(4):
        a(f"ds_read_b64 {vr(KF+4+4*t,2)}, v204 offset:{t*T32+160}")
        a(f"ds_read_b64 {vr(KF+4+4*t+2,2)}, v204 offset:{t*T32+168}")
    a(f"ds_read_b64_tr_b16 {vr(VT0,2)}, v207 offset:320")
    a(f"ds_read_b64_tr_b16 {vr(VT1,2)}, v207 offset:352")
    for t in range(4):
        a(f"ds_read_b64_tr_b16 {vr(VT0+2+2*t,2)}, v206 offset:{t*T32+320}")
        a(f"ds_read_b64_tr_b16 {vr(VT1+2+2*t,2)}, v206 offset:{t*T32+352}")
    a("s_cmp_eq_u32 s33, 0")
    for r in range(4):
        a(f"s_cselect_b64 s[{60+2*r}:{61+2*r}], 0, s[{80+2*r}:{81+2*r}]")
    a("""
    s_mov_b32 s18, 0x3ea52b5c
    s_mov_b32 s19, 0x3ea52b5c
    v_mov_b32 v29, 0xff800000
    s_waitcnt lgkmcnt(10)
    """)
    a.stamp(11)
    for qb in range(4):
        q = QF + 4 * qb
        a(f"v_cndmask_b32 v{q}, 0, v{q}, s[38:39]")
        a(f"v_cndmask_b32 v{q+1}, 0, v{q+1}, s[38:39]")
        a(f"v_cndmask_b32 v{q+2}, 0, v{q+2}, s[96:97]")
        a(f"v_cndmask_b32 v{q+3}, 0, v{q+3}, s[96:97]")
    a("s_nop 1")
    for qb in range(4):
        a(f"v_mfma_f32_16x16x32_bf16 {vr(SS+8*qb,4)}, {vr(KF+4*qb,4)}, {vr(QF+4*qb,4)}, 0")
        a(f"v_mfma_f32_16x16x32_bf16 {vr(SS+8*qb+4,4)}, {vr(KF+4*qb+4,4)}, {vr(QF+4*qb,4)}, 0")
    a("s_nop 7")
    for qb in range(4):
        S = SS + 8 * qb
        mb = 60 if qb == 0 else 80
        for r in range(4):
            a(f"v_cndmask_b32 v{S+r}, v29, v{S+r}, s[{mb+2*r}:{mb+1+2*r}]")
            a(f"v_cndmask_b32 v{S+4+r}, v29, v{S+4+r}, s[{88+2*r}:{89+2*r}]")
        mx, t = 24 + (qb & 1) * 2, 25 + (qb & 1) * 2
        a(f"v_max3_f32 v{mx}, v{S}, v{S+1}, v{S+2}")
        a(f"v_max3_f32 v{mx}, v{mx}, v{S+3}, v{S+4}")
        a(f"v_max3_f32 v{mx}, v{mx}, v{S+5}, v{S+6}")
        a(f"v_max_f32 v{mx}, v{mx}, v{S+7}")
        a(f"v_mov_b32 v{t}, v{mx}")
        a("s_nop 1")
        a(f"v_permlane32_swap_b32 v{mx}, v{t}")
        a("s_nop 1")
        a(f"v_max_f32 v{mx}, v{mx}, v{t}")
        a(f"v_mov_b32 v{t}, v{mx}")
        a("s_nop 1")
        a(f"v_permlane16_swap_b32 v{mx}, v{t}")
        a("s_nop 1")
        a(f"v_max_f32 v{mx}, v{mx}, v{t}")
        a(f"v_mul_f32 v{mx}, s18, v{mx}")
        for h in range(0, 8, 2):
            a(f"v_pk_fma_f32 {vr(S+h,2)}, {vr(S+h,2)}, s[18:19], {vr(mx,2)} op_sel_hi:[1,1,0] neg_lo:[0,0,1] neg_hi:[0,0,1]")
        for e in range(8):
            a(f"v_exp_f32 v{S+e}, v{S+e}")
        a("s_nop 0")
        a(f"v_pk_add_f32 {vr(mx,2)}, {vr(S,2)}, {vr(S+2,2)}")
        a(f"v_pk_add_f32 {vr(30,2)}, {vr(S+4,2)}, {vr(S+6,2)}")
        a(f"v_pk_add_f32 {vr(mx,2)}, {vr(mx,2)}, {vr(30,2)}")
        a(f"v_add_f32 v{mx}, v{mx}, v{t}")
        red_g(a, mx, t)
        a(f"v_rcp_f32 v{mx}, v{mx}")
        a("s_nop 0")
        for h in range(0, 8, 2):
            a(f"v_pk_mul_f32 {vr(S+h,2)}, {vr(S+h,2)}, {vr(mx,2)} op_sel_hi:[1,0]")
        for h in range(4):
            a(f"v_cvt_pk_bf16_f32 v{PP+4*qb+h}, v{S+2*h}, v{S+2*h+1}")
    a.stamp(12)
    a("s_waitcnt lgkmcnt(0)")
    a("s_nop 1")
    for qb in range(4):
        a(f"v_mfma_f32_16x16x32_bf16 {vr(OO+8*qb,4)}, {vr(VT0+2*qb,4)}, {vr(PP+4*qb,4)}, 0")
        a(f"v_mfma_f32_16x16x32_bf16 {vr(OO+8*qb+4,4)}, {vr(VT1+2*qb,4)}, {vr(PP+4*qb,4)}, 0")
    a("s_nop 7")
    for qb in range(4):
        O = OO + 8 * qb
        a(f"v_cvt_pk_bf16_f32 v{O}, v{O}, v{O+1}")
        a(f"v_cvt_pk_bf16_f32 v{O+1}, v{O+2}, v{O+3}")
        a(f"v_cvt_pk_bf16_f32 v{O+4}, v{O+4}, v{O+5}")
        a(f"v_cvt_pk_bf16_f32 v{O+5}, v{O+6}, v{O+7}")
        a(f"s_mov_b32 s44, {A2_OFF + qb*2*A2_MT}")
        a(f"buffer_store_dwordx2 {vr(O,2)}, v218, s[12:15], s44 offen{ST_FLAGS}")
    a("s_mov_b64 exec, 0xffff")
    for qb in range(4):
        O = OO + 8 * qb
        a(f"s_mov_b32 s44, {A2_OFF + qb*2*A2_MT}")
        a(f"buffer_store_dwordx2 {vr(O+4,2)}, v219, s[12:15], s44 offen{ST_FLAGS}")
    a("s_mov_b64 exec, -1")
    a.stamp(8, True)
    a.stamp_flush(12, 1, 32)
    a.label("L_g1_done")
    a("s_endpgm")
    for blk in a.ool:
        a(blk)
    a.ool = []


def gen_k2(a):
    a.raw(".p2align 8")
    a.label("g2_kernel")
    a.kidx = 2
    a.vm = []
    a("""
    s_cmp_ge_u32 s2, 256
    s_cbranch_scc1 L_g2_done
    """)
    a.stamp(0)
    a("""
    s_load_dwordx2 s[4:5], s[0:1], 0
    s_load_dwordx2 s[10:11], s[0:1], 56
    s_load_dwordx2 s[28:29], s[0:1], 72
    v_lshrrev_b32 v1, 6, v0
    v_and_b32 v0, 63, v0
    s_nop 0
    v_readfirstlane_b32 s32, v1
    s_and_b32 s33, s2, 7
    s_lshr_b32 s3, s2, 3
    s_and_b32 s34, s3, 7
    s_lshr_b32 s3, s3, 3
    s_lshl_b32 s33, s33, 2
    s_add_u32 s33, s33, s3
    v_lshrrev_b32 v2, 4, v0
    v_lshlrev_b32 v5, 4, v0
    """)
    a(f"""
    s_mul_i32 s40, s32, 10
    s_lshl_b32 s41, s32, 3
    s_add_u32 s41, s41, 4
    s_cmp_lt_u32 s32, 2
    s_cselect_b32 s40, s40, s41
    s_lshl_b32 s47, s40, 10
    s_mul_i32 s48, s34, 68
    s_add_u32 s48, s48, s40
    s_mul_i32 s48, s48, 5120
    s_add_u32 s48, s48, {B2_OFF}
    s_mul_i32 s42, s32, 20480
    s_mul_i32 s45, s34, 160
    """)
    for mi in range(4):
        a(f"s_lshl_b32 s44, s33, 2")
        a(f"s_add_u32 s44, s44, {mi}")
        a(f"s_mul_i32 s44, s44, {A2_MT}")
        if A2_OFF:
            a(f"s_add_u32 s44, s44, {A2_OFF}")
        a(f"v_add_u32 v{10+mi}, s44, v5")
    a("v_add_u32 v14, 4096, v5")
    a("s_waitcnt lgkmcnt(0)")
    srd(a, 12, 28, WS_BYTES)
    srd(a, 20, 4, 2048 * 1280)
    srd(a, 24, 10, 2048 * 1280)
    ACC = 32
    ST = 112

    def issue(st):
        b = ST + 36 * (st & 3)
        for mi in range(4):
            a.vmem(f"buffer_load_dwordx4 {vr(b+4*mi,4)}, v{10+mi}, s[12:15], s47 offen", ("st", st))
        for j in range(4):
            a.vmem(f"buffer_load_dwordx4 {vr(b+16+4*j,4)}, v5, s[12:15], s48 offen offset:{1024*j}", ("st", st))
        a.vmem(f"buffer_load_dwordx4 {vr(b+32,4)}, v14, s[12:15], s48 offen", ("st", st))
        a("s_add_u32 s47, s47, 1024")
        a("s_add_u32 s48, s48, 5120")

    def body(n):
        a.vm = []
        a.stamp(1)
        for st in range(4):
            issue(st)
        a.stamp(2)
        for s in range(n):
            b = ST + 36 * (s & 3)
            a.wait_vm(("st", s))
            if s in (0, 3, 7):
                a.stamp({0: 3, 3: 4, 7: 5}[s])
            for j in range(5):
                for mi in range(4):
                    acc = ACC + 4 * (mi * 5 + j)
                    c = "0" if s == 0 else vr(acc, 4)
                    a(f"v_mfma_f32_16x16x32_bf16 {vr(acc,4)}, {vr(b+16+4*j,4)}, {vr(b+4*mi,4)}, {c}")
            if s + 4 < n:
                issue(s + 4)

    a("s_cmp_lt_u32 s32, 2")
    a("s_cbranch_scc0 L_g2_h")
    body(10)
    a("s_branch L_g2_red")
    a.label("L_g2_h")
    body(8)
    a.label("L_g2_red")
    a.stamp(6)
    for r in range(3):
        a(f"s_add_u32 s40, s32, {8*r}")
        a("s_min_u32 s40, s40, 19")
        a("s_mul_i32 s41, s40, 52")
        a("s_lshr_b32 s41, s41, 8")
        a("s_mul_i32 s43, s41, 5")
        a("s_sub_u32 s43, s40, s43")
        a(f"""
        s_lshl_b32 s44, s33, 6
        s_lshl_b32 s41, s41, 4
        s_add_u32 s44, s44, s41
        v_and_b32 v21, 15, v0
        v_add_u32 v21, s44, v21
        v_mul_u32_u24 v21, 1280, v21
        v_lshl_add_u32 v21, v2, 3, v21
        s_lshl_b32 s43, s43, 5
        s_add_u32 s43, s43, s45
        v_add_u32 v{112+r}, s43, v21
        buffer_load_dwordx2 {vr(116+2*r,2)}, v{112+r}, s[20:23], 0 offen
        """)
    a("v_add_u32 v20, s42, v5")
    for st in range(20):
        a(f"ds_write_b128 v20, {vr(ACC+4*st,4)} offset:{st*1024}")
    a("s_waitcnt lgkmcnt(0)")
    a("s_barrier")
    a.stamp(7, True)
    a.stamp_flush(12, 2, 32)
    a("s_mov_b32 s16, 0xffff0000")
    a("s_lshl_b32 s40, s32, 10")
    a("v_add_u32 v20, s40, v5")
    a("v_add_u32 v21, 40960, v20")
    a("v_add_u32 v22, 81920, v20")
    a("v_add_u32 v23, 122880, v20")
    for r in range(3):
        if r == 2:
            a("s_cmp_ge_u32 s32, 4")
            a("s_cbranch_scc1 L_g2_r2skip")
        for w in range(8):
            base = 128 + 32 * r + 4 * w
            a(f"ds_read_b128 {vr(base,4)}, v{20+(w>>1)} offset:{(w&1)*20480 + r*8192}")
    a.label("L_g2_r2skip")
    a("s_waitcnt vmcnt(0) lgkmcnt(0)")
    for r in range(3):
        if r == 2:
            a("s_cmp_ge_u32 s32, 4")
            a("s_cbranch_scc1 L_g2_done")
        B = 128 + 32 * r
        X = 116 + 2 * r
        for h in (0, 2):
            a(f"v_pk_add_f32 {vr(B+h,2)}, {vr(B+h,2)}, {vr(B+4+h,2)}")
            a(f"v_pk_add_f32 {vr(B+8+h,2)}, {vr(B+8+h,2)}, {vr(B+12+h,2)}")
            a(f"v_pk_add_f32 {vr(B+16+h,2)}, {vr(B+16+h,2)}, {vr(B+20+h,2)}")
            a(f"v_pk_add_f32 {vr(B+24+h,2)}, {vr(B+24+h,2)}, {vr(B+28+h,2)}")
            a(f"v_pk_add_f32 {vr(B+8+h,2)}, {vr(B+8+h,2)}, {vr(B+16+h,2)}")
            a(f"v_pk_add_f32 {vr(B+8+h,2)}, {vr(B+8+h,2)}, {vr(B+24+h,2)}")
        for p in range(2):
            a0, a1, b0, b1 = B + 2 * p, B + 1 + 2 * p, B + 8 + 2 * p, B + 9 + 2 * p
            a(f"v_cvt_pk_bf16_f32 v25, v{a0}, v{a1}")
            a(f"v_cvt_pk_bf16_f32 v26, v{b0}, v{b1}")
            a(f"v_lshlrev_b32 v{a0}, 16, v25")
            a(f"v_and_b32 v{a1}, s16, v25")
            a(f"v_lshlrev_b32 v{b0}, 16, v26")
            a(f"v_and_b32 v{b1}, s16, v26")
            a(f"v_lshlrev_b32 v26, 16, v{X+p}")
            a(f"v_and_b32 v27, s16, v{X+p}")
            a(f"v_pk_add_f32 {vr(a0,2)}, {vr(a0,2)}, v[26:27]")
            a(f"v_cvt_pk_bf16_f32 v25, v{a0}, v{a1}")
            a(f"v_lshlrev_b32 v{a0}, 16, v25")
            a(f"v_and_b32 v{a1}, s16, v25")
            a(f"v_pk_add_f32 {vr(a0,2)}, {vr(a0,2)}, {vr(b0,2)}")
            a(f"v_cvt_pk_bf16_f32 v{B+16+p}, v{a0}, v{a1}")
        a(f"buffer_store_dwordx2 {vr(B+16,2)}, v{112+r}, s[24:27], 0 offen")
    a.label("L_g2_done")
    a("s_endpgm")


def kd(name, vgpr, sgpr=102):
    acc = (vgpr + 3) // 4 * 4
    return f""".p2align 6
.amdhsa_kernel {name}
  .amdhsa_next_free_vgpr {vgpr}
  .amdhsa_next_free_sgpr {sgpr}
  .amdhsa_accum_offset {acc}
  .amdhsa_group_segment_fixed_size 0
  .amdhsa_kernarg_size 80
  .amdhsa_user_sgpr_count 2
  .amdhsa_user_sgpr_kernarg_segment_ptr 1
  .amdhsa_system_sgpr_workgroup_id_x 1
.end_amdhsa_kernel
"""


def main(outpath):
    a = Asm()
    a.raw("; @launch kernel=g1_kernel grid=(256,1,1) block=(512,1,1) lds=163840")
    a.raw("; @launch kernel=g2_kernel grid=(256,1,1) block=(512,1,1) lds=163840")
    a.raw('.amdgcn_target "amdgcn-amd-amdhsa--gfx950"')
    a.raw(".text")
    for k in ("g1_kernel", "g2_kernel"):
        a.raw(f".globl {k}")
        a.raw(f".type {k},@function")
    gen_k1(a)
    gen_k2(a)
    a.raw('.section .rodata,"a"')
    a.raw(kd("g1_kernel", 256))
    a.raw(kd("g2_kernel", 256))
    open(outpath, "w").write(a.text())


if __name__ == "__main__":
    if len(sys.argv) > 2 and sys.argv[2] == "stamp":
        STAMP = True
    main(sys.argv[1] if len(sys.argv) > 1 else f"cdna_kernels/{NAME}.s")
```

```python
import sys, os

NAME = "parallel_sum__sliding_local_dilated__glu_gated_glu__prompt"
A2_OFF = 0
B2_OFF = 9 << 20
WS_BYTES = 16 << 20
A2_MT = 68 * 1024
STAMP = False
DBGSTAMP = os.environ.get("DBGSTAMP", "") == "1"
ST_FLAGS = os.environ.get("STF", "")
B2F = os.environ.get("B2F", " sc0 sc1")
PFD = int(os.environ.get("PFD", "0"))
XP = os.environ.get("XP", "")
TLBPF = int(os.environ.get("TLBPF", "3"))
TLBAT = int(os.environ.get("TLBAT", "0"))
B2AT = int(os.environ.get("B2AT", "9"))
PFSCHED = eval(os.environ.get("PFSCHED", "[(0,4,6),(3,10,5),(6,15,5)]"))


class Asm:
    def __init__(self):
        self.lines = []
        self.vm = []
        self.ool = []

    def __call__(self, s):
        for ln in s.strip("\n").split("\n"):
            ln = ln.strip()
            if ln:
                self.lines.append("    " + ln)

    def label(self, l):
        self.lines.append(l + ":")

    def raw(self, s):
        self.lines.append(s)

    def text(self):
        return "\n".join(l for l in self.lines if l.strip() != "#CHUNK") + "\n"

    def capture(self, fn, *args):
        save = self.lines
        self.lines = []
        fn(*args)
        got = self.lines
        self.lines = save
        chunks, cur = [], []
        for ln in got:
            if ln.strip() == "#CHUNK":
                if cur:
                    chunks.append(cur)
                cur = []
            else:
                cur.append(ln)
        if cur:
            chunks.append(cur)
        return chunks

    def chunk(self):
        self.lines.append("#CHUNK")

    def vmem(self, s, tag, optional=False):
        self(s)
        self.vm.append((tag, optional))
        if not optional:
            self.chunk()

    def vm_count_after(self, tag):
        idx = max([i for i, (t, o) in enumerate(self.vm) if t == tag], default=-1)
        if idx < 0:
            return None
        return sum(1 for (t, o) in self.vm[idx + 1:] if not o)

    def wait_vm(self, tag, lgkm=False):
        n = self.vm_count_after(tag)
        parts = []
        if n is not None:
            assert n < 64
            parts.append(f"vmcnt({n})")
            idx = max([i for i, (t, o) in enumerate(self.vm) if t == tag])
            self.vm = self.vm[idx + 1:]
        if lgkm:
            parts.append("lgkmcnt(0)")
        if parts:
            self("s_waitcnt " + " ".join(parts))

    def stamp(self, n, last=False):
        if not STAMP:
            return
        self("s_memtime s[98:99]")
        self("s_waitcnt lgkmcnt(0)")
        if n == 0:
            self("s_mov_b32 s100, s98")
            self("s_memrealtime s[98:99]")
            self("s_waitcnt lgkmcnt(0)")
            self("s_mov_b32 s101, s98")
            return
        if n == 1:
            self("v_mov_b32 v1, s101")
            self("s_lshl_b32 s101, s2, 3")
            self("s_add_u32 s101, s101, s32")
            self("s_lshl_b32 s101, s101, 6")
            self(f"s_add_u32 s101, s101, {(12+self.kidx)<<20}")
            self("v_mov_b32 v255, 0")
            self("buffer_store_dword v1, v255, s[12:15], s101 offen offset:56")
            self("s_nop 1")
            self("v_mov_b32 v1, s100")
            self("buffer_store_dword v1, v255, s[12:15], s101 offen offset:0")
            self("s_nop 1")
            self.vm.append(("stamp", True)); self.vm.append(("stamp", True))
        self("v_mov_b32 v1, s98")
        self("v_mov_b32 v255, 0")
        self(f"buffer_store_dword v1, v255, s[12:15], s101 offen offset:{4*n}")
        self("s_nop 1")
        self.vm.append(("stamp", True))
        if last:
            self("s_memrealtime s[98:99]")
            self("s_waitcnt lgkmcnt(0)")
            self("v_mov_b32 v1, s98")
            self("buffer_store_dword v1, v255, s[12:15], s101 offen offset:60")
            self("s_nop 1")

    def stamp_flush(self, srd_ws, kidx, swave):
        return


def srd(a, d, base, nbytes):
    a(f"s_mov_b32 s{d}, s{base}")
    a(f"s_mov_b32 s{d+1}, s{base+1}")
    a(f"s_mov_b32 s{d+2}, {nbytes}")
    a(f"s_mov_b32 s{d+3}, 0x00020000")


def vr(b, n):
    return f"v[{b}:{b+n-1}]"


def unswap23(a, dst, src, t0, t1):
    a(f"v_lshrrev_b32 v{t0}, 1, v{src}")
    a(f"v_and_b32 v{t0}, 4, v{t0}")
    a(f"v_lshlrev_b32 v{t1}, 1, v{src}")
    a(f"v_and_b32 v{t1}, 8, v{t1}")
    a(f"v_and_b32 v{dst}, 0x13, v{src}")
    a(f"v_or3_b32 v{dst}, v{dst}, v{t0}, v{t1}")


def divsmall(a, q, p, d, lim=1024):
    m = (65536 + d - 1) // d
    for x in range(lim):
        assert (x * m) >> 16 == x // d, (d, x)
    a(f"v_mul_u32_u24 v{q}, {m}, v{p}")
    a(f"v_lshrrev_b32 v{q}, 16, v{q}")


def sdiv(a, q, p, d, lim):
    m = (65536 + d - 1) // d
    for x in range(lim):
        assert (x * m) >> 16 == x // d, (d, x)
    a(f"s_mul_i32 s{q}, s{p}, {m}")
    a(f"s_lshr_b32 s{q}, s{q}, 16")


def red_g(a, v, t):
    a(f"v_mov_b32 v{t}, v{v}")
    a("s_nop 1")
    a(f"v_permlane32_swap_b32 v{v}, v{t}")
    a("s_nop 1")
    a(f"v_add_f32 v{v}, v{v}, v{t}")
    a(f"v_mov_b32 v{t}, v{v}")
    a("s_nop 1")
    a(f"v_permlane16_swap_b32 v{v}, v{t}")
    a("s_nop 1")
    a(f"v_add_f32 v{v}, v{v}, v{t}")


NK = 20
STAT_LDS = 156 * 1024
CS_LDS = STAT_LDS + 2560
SCR_LDS = 144 * 1024
VONE = 228
TMP = 20


def k1_mainloop(a, NM, NN, dma_fn, xaddr_fn, waddr_fn, ACC, FR, ncs, nrs, CS, RS, hooks=None, mstat=None, skipj=None, NMM=None, mslots=(0,)):
    NMM = NMM or NM
    FS = 4 * NM + 4 * NN

    def xfrag(s, mi):
        return FR + s * FS + 4 * mi

    def wfrag(s, j):
        return FR + s * FS + 4 * NM + 4 * j

    def reads(ks):
        s = ks & 1
        out = []
        for mi in range(NM):
            v, off = xaddr_fn(mi, ks)
            out.append(f"ds_read_b128 {vr(xfrag(s,mi),4)}, v{v} offset:{off}")
        for j in range(NN):
            v, off, dt = waddr_fn(j, ks)
            out.append(f"ds_read_b64_tr_b16 {vr(wfrag(s,j),2)}, v{v} offset:{off}")
            out.append(f"ds_read_b64_tr_b16 {vr(wfrag(s,j)+2,2)}, v{v} offset:{off+dt}")
        return out

    def mfmas(ks):
        s = ks & 1
        out = []
        for j in range(NN):
            grp = []
            for mi in range(NMM):
                acc = ACC + 4 * (mi * NN + j)
                c = "0" if ks == 0 else vr(acc, 4)
                grp.append(f"v_mfma_f32_16x16x32_bf16 {vr(acc,4)}, {vr(wfrag(s,j),4)}, {vr(xfrag(s,mi),4)}, {c}")
            if skipj and j in skipj and "noskip" not in XP:
                lab = f"L_skj_{a.tag}_{ks}_{j}"
                out.append(f"s_cmp_eq_u32 s{skipj[j]}, 15\ns_cbranch_scc1 {lab}\n" + "\n".join(grp) + f"\n{lab}:")
            else:
                out.extend(grp)
        return out

    def stats(ks):
        s = ks & 1
        out = []
        for j in range(ncs):
            c = "0" if ks == 0 else vr(CS + 4 * j, 4)
            out.append(f"v_mfma_f32_16x16x32_bf16 {vr(CS+4*j,4)}, {vr(wfrag(s,j),4)}, {vr(VONE,4)}, {c}")
        valu = []
        if mstat is not None:
            for k, mi in enumerate(mslots):
                R0, Q0 = mstat + 8 * k, mstat + 8 * k + 4
                c0 = "0" if ks == 0 else vr(R0, 4)
                c1 = "0" if ks == 0 else vr(Q0, 4)
                out.append(f"v_mfma_f32_16x16x32_bf16 {vr(R0,4)}, {vr(VONE,4)}, {vr(xfrag(s,mi),4)}, {c0}")
                out.append(f"v_mfma_f32_16x16x32_bf16 {vr(Q0,4)}, {vr(xfrag(s,mi),4)}, {vr(xfrag(s,mi),4)}, {c1}")
            return out, valu
        for mi in range(nrs):
            S0, S1, Q0, Q1 = [RS + 4 * mi + i for i in range(4)]
            for d in range(4):
                x = xfrag(s, mi) + d
                t0, t1 = TMP + 2 * (d & 1), TMP + 2 * (d & 1) + 1
                valu.append(f"v_lshlrev_b32 v{t0}, 16, v{x}")
                valu.append(f"v_and_b32 v{t1}, s69, v{x}")
                if ks == 0 and d == 0:
                    valu.append(f"v_mov_b32 v{S0}, v{t0}")
                    valu.append(f"v_mov_b32 v{S1}, v{t1}")
                    valu.append(f"v_mul_f32 v{Q0}, v{t0}, v{t0}")
                    valu.append(f"v_mul_f32 v{Q1}, v{t1}, v{t1}")
                else:
                    valu.append(f"v_add_f32 v{S0}, v{S0}, v{t0}")
                    valu.append(f"v_add_f32 v{S1}, v{S1}, v{t1}")
                    valu.append(f"v_fmac_f32 v{Q0}, v{t0}, v{t0}")
                    valu.append(f"v_fmac_f32 v{Q1}, v{t1}, v{t1}")
        if "novalu" in XP: valu = []
        if "nocs" in XP: out = []
        return out, valu

    a.stamp(2)
    a.wait_vm(("st", 0))
    a("s_barrier")
    a.stamp(3)
    for r in reads(0):
        a(r)
    for ks in range(NK):
        if ks + 1 < NK:
            a.wait_vm(("st", ks + 1), lgkm=True)
            a("s_barrier")
            if ks in (4, 10, 16):
                a.stamp({4: 4, 10: 5, 16: 6}[ks])
            if hooks and ks in hooks:
                hooks[ks]()
            dm = a.capture(dma_fn, ks + 4) if ks + 4 < NK else []
            if "nodma" in XP:
                dm = []; a.vm = []
            rd = reads(ks + 1)
            if "nolds" in XP: rd = []
        else:
            a("s_waitcnt lgkmcnt(0)")
            rd = []
            dm = []
        mf = mfmas(ks)
        smf, stt = stats(ks)
        mf = mf + smf
        nr = ns = nd = 0
        L = len(mf)
        for i, m in enumerate(mf):
            a(m)
            while nd < len(dm) and nd < 1 + i * len(dm) // (L - 2):
                a.lines.extend(dm[nd]); nd += 1
            while nr < len(rd) and nr < (i + 1) * len(rd) // max(1, L - 6):
                a(rd[nr]); nr += 1
            while ns < len(stt) and ns < (i + 1) * len(stt) // L:
                a(stt[ns]); ns += 1
        while nd < len(dm):
            a.lines.extend(dm[nd]); nd += 1
        while nr < len(rd):
            a(rd[nr]); nr += 1
        while ns < len(stt):
            a(stt[ns]); ns += 1


def rowstat_math(a, S, t):
    Q = S + 1
    a(f"v_mul_f32 v{S}, s17, v{S}")
    a(f"v_mul_f32 v{Q}, s17, v{Q}")
    a(f"v_fma_f32 v{Q}, -v{S}, v{S}, v{Q}")
    a(f"v_max_f32 v{Q}, 0, v{Q}")
    a(f"v_cvt_pk_bf16_f32 v{t}, v{S}, v{Q}")
    a(f"v_lshlrev_b32 v{S}, 16, v{t}")
    a(f"v_and_b32 v{Q}, s16, v{t}")
    a(f"v_add_f32 v{Q}, 0x3727c5ac, v{Q}")
    a(f"v_cvt_pk_bf16_f32 v{t}, v{Q}, v{Q}")
    a(f"v_and_b32 v{Q}, s16, v{t}")
    a(f"v_sqrt_f32 v{Q}, v{Q}")
    a("s_nop 0")
    a(f"v_cvt_pk_bf16_f32 v{t}, v{Q}, v{Q}")
    a(f"v_and_b32 v{S+3}, s16, v{t}")
    a(f"v_rcp_f32 v{t}, v{S+3}")
    a("s_nop 0")
    a(f"v_fma_f32 v{Q}, -v{S+3}, v{t}, 1.0")
    a(f"v_fma_f32 v{Q}, v{Q}, v{t}, v{t}")
    a(f"v_mul_f32 v{S+2}, 0xbfb8aa3b, v{Q}")


def gen_k1(a):
    a.raw(".p2align 8")
    a.label("g1_kernel")
    a.kidx = 1
    a("""
    s_cmp_ge_u32 s2, 256
    s_cbranch_scc1 L_g1_done
    """)
    a.stamp(0)
    a("""
    s_load_dwordx4 s[4:7], s[0:1], 0
    s_load_dwordx2 s[52:53], s[0:1], 16
    s_load_dwordx4 s[8:11], s[0:1], 32
    s_load_dwordx2 s[54:55], s[0:1], 48
    s_load_dwordx2 s[56:57], s[0:1], 72
    v_lshrrev_b32 v1, 6, v0
    v_and_b32 v0, 63, v0
    s_nop 0
    v_readfirstlane_b32 s32, v1
    s_and_b32 s34, s2, 7
    s_lshr_b32 s3, s2, 3
    s_and_b32 s33, s3, 15
    s_lshr_b32 s3, s3, 4
    s_lshr_b32 s36, s32, 2
    s_and_b32 s37, s32, 3
    v_lshrrev_b32 v2, 4, v0
    v_bfe_u32 v3, v0, 2, 2
    v_and_b32 v4, 3, v0
    v_lshlrev_b32 v5, 4, v0
    v_mov_b32 v228, 0x3f803f80
    v_mov_b32 v229, 0x3f803f80
    v_mov_b32 v230, 0x3f803f80
    v_mov_b32 v231, 0x3f803f80
    s_mov_b32 s69, 0xffff0000
    v_and_b32 v6, 15, v0
    s_waitcnt lgkmcnt(0)
    """)
    srd(a, 12, 56, WS_BYTES)
    srd(a, 28, 4, 2048 * 1280)
    a("""
    v_lshrrev_b32 v20, 3, v0
    v_and_b32 v21, 7, v0
    v_xor_b32 v21, v21, v20
    v_mul_u32_u24 v7, 1280, v20
    v_lshl_add_u32 v7, v21, 4, v7
    """)
    a("""
    v_and_b32 v20, 7, v6
    v_xor_b32 v21, v2, v20
    v_lshlrev_b32 v8, 7, v20
    v_lshl_add_u32 v8, v21, 4, v8
    v_lshrrev_b32 v20, 3, v6
    v_lshl_add_u32 v8, v20, 10, v8
    """)
    a("""
    v_and_b32 v20, 1, v2
    v_lshl_add_u32 v20, v20, 2, v3
    v_lshrrev_b32 v21, 1, v2
    v_lshl_add_u32 v9, v21, 4, v20
    """)

    def b2_issue():
        a("""
        s_mul_i32 s58, s2, 3
        s_add_u32 s58, s58, s32
        s_cmp_lt_u32 s32, 3
        s_cselect_b32 s58, s58, 4095
        s_cmp_lt_u32 s58, 680
        s_cbranch_scc0 L_b2_skip1_%s
        """ % a.tag)
        sdiv(a, 59, 58, 10, 680)
        a("""
        s_mul_i32 s60, s59, 10
        s_sub_u32 s60, s58, s60
        s_cmp_lt_u32 s59, 20
        s_cselect_b32 s64, s52, s54
        s_cselect_b32 s65, s53, s55
        s_mov_b32 s66, 1966080
        s_cselect_b32 s66, 819200, s66
        s_mov_b32 s67, 0x00020000
        s_sub_u32 s61, s59, 20
        s_cmp_lt_u32 s59, 20
        s_cselect_b32 s61, s59, s61
        s_mul_i32 s61, s61, 40960
        s_lshl_b32 s62, s60, 7
        s_add_u32 s61, s61, s62
        s_lshl_b32 s62, s32, 12
        s_add_u32 s62, s62, %d
        v_lshrrev_b32 v20, 3, v0
        v_and_b32 v21, 7, v0
        """ % SCR_LDS)
        for i in range(4):
            a(f"v_add_u32 v22, {8*i}, v20")
            unswap23(a, 23, 22, 246, 247)
            a("v_mul_u32_u24 v23, 1280, v23")
            a("v_lshl_add_u32 v23, v21, 4, v23")
            a(f"s_add_u32 m0, s62, {1024*i}")
            a("s_nop 0")
            a.vmem("buffer_load_dwordx4 v23, s[64:67], s61 offen lds", "b2", optional=True)
        a.label("L_b2_skip1_%s" % a.tag)

    def b2_finish():
        a("s_cmp_lt_u32 s58, 680")
        a("s_cbranch_scc0 L_b2_skip2_%s" % a.tag)
        a("v_lshlrev_b32 v1, 7, v9")
        a("v_lshl_add_u32 v1, v4, 3, v1")
        a("v_add_u32 v1, s62, v1")
        regs = [244, 248, 252, 20]
        for jj in range(4):
            a(f"ds_read_b64_tr_b16 {vr(regs[jj],2)}, v1 offset:{32*jj}")
            a(f"ds_read_b64_tr_b16 {vr(regs[jj]+2,2)}, v1 offset:{32*jj+1024}")
        a("s_waitcnt lgkmcnt(0)")
        for jj in range(4):
            a("s_lshl_b32 s61, s60, 2")
            a(f"s_add_u32 s61, s61, {jj}")
            sdiv(a, 62, 61, 5, 40)
            a("s_mul_i32 s63, s62, 5")
            a("s_sub_u32 s63, s61, s63")
            a("s_mul_i32 s62, s62, 68")
            a("s_add_u32 s62, s62, s59")
            a("s_mul_i32 s62, s62, 5")
            a("s_add_u32 s62, s62, s63")
            a("s_lshl_b32 s62, s62, 10")
            a(f"s_add_u32 s62, s62, {B2_OFF}")
            a.vmem(f"buffer_store_dwordx4 {vr(regs[jj],4)}, v5, s[12:15], s62 offen{B2F}", "b2s", optional=True)
        a("s_nop 4")
        a.label("L_b2_skip2_%s" % a.tag)

    a("s_cmp_eq_u32 s3, 0")
    a("s_cbranch_scc1 L_g1_attn")

    a.tag = "g"
    a.vm = []
    AR_G = 16384
    BR_G = 49152
    BS_G = 24576
    srd(a, 16, 8, 640 * 3072)
    srd(a, 20, 10, 640 * 3072)
    a("""
    s_cmp_lt_u32 s32, 4
    s_cselect_b32 s24, s8, s10
    s_cselect_b32 s25, s9, s11
    s_mov_b32 s26, 1966080
    s_mov_b32 s27, 0x00020000
    s_mov_b32 s43, 12288
    s_cselect_b32 s43, 0, s43
    """)
    a(f"""
    s_lshl_b32 s40, s32, 10
    s_add_u32 s41, s40, {BR_G}
    s_add_u32 s42, s40, {BR_G+12288}
    s_lshl_b32 s44, s37, 10
    s_add_u32 s43, s43, s44
    s_add_u32 s43, s43, {BR_G+8192}
    """)
    a("""
    s_lshl_b32 s44, s33, 4
    s_add_u32 s44, s44, s32
    s_mul_i32 s44, s44, 10240
    v_add_u32 v10, s44, v7
    v_add_u32 v11, 81920, v10
    s_mul_i32 s45, s34, 384
    """)

    def gate_off(dst, sInstr):
        a(f"s_lshl_b32 s44, s{sInstr}, 6")
        a(f"v_add_u32 v20, s44, v0")
        divsmall(a, 21, 20, 48)
        a("v_mul_u32_u24 v22, 48, v21")
        a("v_sub_u32 v22, v20, v22")
        a("v_and_b32 v23, 7, v21")
        a("v_lshlrev_b32 v23, 1, v23")
        a("v_xor_b32 v22, v22, v23")
        a("v_cmp_le_u32 vcc, 24, v22")
        a("s_nop 1")
        a("v_cndmask_b32 v23, 0, 1, vcc")
        a("v_mul_u32_u24 v24, 24, v23")
        a("v_sub_u32 v22, v22, v24")
        a("v_lshl_add_u32 v21, v23, 4, v21")
        unswap23(a, 24, 21, 25, 26)
        a("v_mul_u32_u24 v24, 3072, v24")
        a("v_lshl_add_u32 v24, v22, 4, v24")
        a(f"v_add_u32 v{dst}, s45, v24")
    gate_off(12, 32)
    a("s_add_u32 s46, s37, 8")
    gate_off(13, 46)
    a("s_mov_b32 s47, 0")
    a("s_mov_b32 s48, 0")

    def dma_g(st):
        sb = (st & 3) * BS_G
        if st % 2 == 0:
            ab = ((st // 2) % 3) * AR_G
            a(f"s_add_u32 m0, s40, {ab}")
            a("s_nop 0")
            a.vmem("buffer_load_dwordx4 v10, s[28:31], s47 offen lds", ("st", st))
            a(f"s_add_u32 m0, s40, {ab+8192}")
            a("s_nop 0")
            a.vmem("buffer_load_dwordx4 v11, s[28:31], s47 offen lds", ("st", st))
            a("s_add_u32 s47, s47, 128")
        a(f"s_add_u32 m0, s41, {sb}")
        a("s_nop 0")
        a.vmem("buffer_load_dwordx4 v12, s[16:19], s48 offen lds", ("st", st))
        a(f"s_add_u32 m0, s42, {sb}")
        a("s_nop 0")
        a.vmem("buffer_load_dwordx4 v12, s[20:23], s48 offen lds", ("st", st))
        a(f"s_add_u32 m0, s43, {sb}")
        a("s_nop 0")
        a.vmem("buffer_load_dwordx4 v13, s[24:27], s48 offen lds", ("st", st))
        a("s_add_u32 s48, s48, 98304")

    a.stamp(1)
    for st in range(4):
        dma_g(st)
    def tlb_g(k0=4, nk=16, tg=0):
        a(f"""
        s_mul_i32 s44, s33, {2*nk}
        s_add_u32 s44, s44, {32*k0}
        v_min_u32 v20, {2*nk-1}, v0
        v_add_u32 v20, s44, v20
        v_mul_u32_u24 v20, 3072, v20
        v_add_u32 v20, s45, v20
        """)
        offs = {1: [0], 2: [0, 256], 3: [0, 128, 256]}[TLBPF]
        for li, off in enumerate(offs):
            for mtx, sr in enumerate((16, 20)):
                wv = 2 * li + mtx
                a(f"s_cmp_eq_u32 s32, {wv}")
                a(f"s_cbranch_scc0 L_tlb_g{wv}_{tg}")
                a.vmem(f"buffer_load_dword v244, v20, s[{sr}:{sr+3}], 0 offen offset:{off}", "pf", optional=True)
                a.label(f"L_tlb_g{wv}_{tg}")
    if TLBPF and TLBAT < 0:
        tlb_g()

    def pf_w_g():
        a("""
        s_and_b32 s44, s32, 1
        s_cmp_eq_u32 s44, 0
        s_cselect_b32 s64, s8, s10
        s_cselect_b32 s65, s9, s11
        s_mov_b32 s66, 1966080
        s_mov_b32 s67, 0x00020000
        s_add_u32 s44, s33, 4
        s_lshl_b32 s44, s44, 5
        s_bfe_u32 s46, s32, 0x10001
        s_lshl_b32 s46, s46, 4
        s_add_u32 s44, s44, s46
        v_lshrrev_b32 v20, 2, v0
        v_add_u32 v20, s44, v20
        v_mul_u32_u24 v20, 3072, v20
        v_min_u32 v21, 2, v4
        v_lshl_add_u32 v20, v21, 7, v20
        v_add_u32 v20, s45, v20
        """)
        a.vmem("buffer_load_dword v244, v20, s[64:67], 0 offen", "pf")

    def pf_x_g():
        a("""
        s_lshl_b32 s44, s33, 4
        s_add_u32 s44, s44, s32
        s_lshl_b32 s44, s44, 3
        v_lshrrev_b32 v20, 3, v0
        v_add_u32 v20, s44, v20
        v_mul_u32_u24 v20, 1280, v20
        v_and_b32 v21, 7, v0
        v_lshl_add_u32 v20, v21, 7, v20
        """)
        a.vmem("buffer_load_dword v245, v20, s[28:31], 0 offen offset:256", "pf")

    XA = 208
    for mi in range(4):
        a(f"s_add_u32 s44, s37, {mi}")
        a("s_and_b32 s44, s44, 3")
        a("s_lshl_b32 s46, s36, 2")
        a("s_add_u32 s44, s44, s46")
        a("s_lshl_b32 s44, s44, 11")
        a(f"v_add_u32 v{XA+mi}, s44, v8")
        a(f"v_xor_b32 v{XA+4+mi}, 64, v{XA+mi}")
    WA = 216
    a(f"""
    v_and_b32 v20, 7, v9
    v_lshrrev_b32 v21, 1, v2
    v_mul_u32_u24 v21, 12, v21
    s_mul_i32 s44, s37, 3
    v_add_u32 v21, s44, v21
    v_mul_u32_u24 v22, 768, v20
    v_lshl_add_u32 v22, v4, 3, v22
    v_add_u32 v22, {BR_G}, v22
    s_mul_i32 s44, s36, 12288
    s_sub_u32 s46, 12288, s44
    """)
    for i in range(3):
        a(f"v_add_u32 v23, {i}, v21")
        a("v_xor_b32 v23, v23, v20")
        a(f"v_lshl_add_u32 v23, v23, 5, v22")
        a(f"v_add_u32 v{WA+i}, s44, v23")
        a(f"v_add_u32 v{WA+3+i}, s46, v23")
        a(f"v_add_u32 v{WA+6+i}, {2*BS_G}, v{WA+i}")
        a(f"v_add_u32 v{WA+9+i}, {2*BS_G}, v{WA+3+i}")

    def xaddr_g(mi, ks):
        return XA + 4 * (ks & 1) + mi, ((ks // 2) % 3) * AR_G

    def waddr_g(j, ks):
        slot = ks & 3
        v = WA + (6 if slot >= 2 else 0) + j
        return v, (slot & 1) * BS_G, 6144

    ACC = 32
    FR = 128
    CS, RS = 232, 24
    a("""
    s_lshl_b32 s44, s33, 1
    v_and_b32 v14, 1, v0
    v_add_u32 v14, s44, v14
    v_mul_u32_u24 v14, 3072, v14
    v_bfe_u32 v20, v0, 1, 2
    v_min_u32 v20, 2, v20
    v_lshl_add_u32 v14, v20, 7, v14
    v_add_u32 v14, s45, v14
    s_lshl_b32 s44, s33, 7
    v_add_u32 v15, s44, v0
    v_mul_u32_u24 v15, 1280, v15
    """)

    def mk_roll(ks, wsrds, wstride, extra=None):
        def f():
            if extra:
                extra()
            if PFD and ks + PFD < NK:
                lab = f"L_pf_{a.tag}_{ks}"
                a(f"s_cmp_eq_u32 s32, {ks & 7}")
                a(f"s_cbranch_scc0 {lab}")
                a(f"s_mov_b32 s44, {(ks+PFD)*wstride}")
                for sr in wsrds:
                    a.vmem(f"buffer_load_dword v244, v14, s[{sr}:{sr+3}], s44 offen", "pf", optional=True)
                a.label(lab)
            if PFD and ks % 2 == 0 and (ks + PFD) // 2 + 1 < 10:
                lab = f"L_pfx_{a.tag}_{ks}"
                a(f"s_cmp_eq_u32 s32, {(ks + 1) & 7}")
                a(f"s_cbranch_scc0 {lab}")
                a(f"s_mov_b32 s44, {((ks+PFD)//2+1)*128}")
                a.vmem(f"buffer_load_dword v245, v15, s[28:31], s44 offen", "pf", optional=True)
                a.label(lab)
        return f
    hx = {B2AT: b2_issue, B2AT + 6: b2_finish}
    for bi, (at, k0, nk) in enumerate(PFSCHED):
        hx[at] = (lambda k0=k0, nk=nk, bi=bi: tlb_g(k0, nk, bi))
    hk = {ks: mk_roll(ks, (16, 20), 98304, hx.get(ks)) for ks in range(NK - 1)}
    k1_mainloop(a, 4, 6, dma_g, xaddr_g, waddr_g, ACC, FR, 3, 1, CS, RS, hooks=hk)
    a.stamp(7)
    a("s_mov_b32 s16, 0xffff0000")
    a("s_mov_b32 s17, 0x3acccccd")
    a("v_add_f32 v16, v24, v25")
    a("v_add_f32 v17, v26, v27")
    for v in (16, 17):
        red_g(a, v, 20)
    rowstat_math(a, 16, 20)
    a(f"""
    s_lshl_b32 s44, s36, 2
    s_add_u32 s44, s44, s37
    s_lshl_b32 s44, s44, 8
    s_add_u32 s44, s44, {STAT_LDS}
    v_lshl_add_u32 v20, v6, 4, s44
    ds_write_b128 v20, v[16:19]
    s_mul_i32 s44, s36, 12
    s_mul_i32 s46, s37, 3
    s_add_u32 s44, s44, s46
    s_lshl_b32 s44, s44, 6
    s_add_u32 s44, s44, {CS_LDS}
    v_lshl_add_u32 v20, v2, 4, s44
    ds_write_b128 v20, v[232:235]
    ds_write_b128 v20, v[236:239] offset:64
    ds_write_b128 v20, v[240:243] offset:128
    s_waitcnt lgkmcnt(0)
    s_barrier
    """)
    for mi in range(4):
        a(f"s_add_u32 s44, s37, {mi}")
        a("s_and_b32 s44, s44, 3")
        a("s_lshl_b32 s46, s36, 2")
        a("s_add_u32 s44, s44, s46")
        a("s_lshl_b32 s44, s44, 8")
        a(f"s_add_u32 s44, s44, {STAT_LDS}")
        a("v_lshl_add_u32 v20, v6, 4, s44")
        a(f"ds_read_b128 {vr(128+4*mi,4)}, v20")
    a(f"""
    s_mul_i32 s44, s37, 192
    s_add_u32 s44, s44, {CS_LDS}
    v_lshl_add_u32 v20, v2, 4, s44
    """)
    for i in range(3):
        a(f"ds_read_b128 {vr(144+4*i,4)}, v20 offset:{64*i}")
        a(f"ds_read_b128 {vr(156+4*i,4)}, v20 offset:{768+64*i}")
    a(f"""
    v_lshrrev_b32 v21, 1, v2
    v_lshl_add_u32 v20, v21, 4, v6
    v_lshlrev_b32 v20, 4, v20
    v_and_b32 v21, 1, v2
    v_lshl_add_u32 v20, v21, 3, v20
    s_lshl_b32 s44, s33, 3
    s_lshl_b32 s45, s36, 2
    s_add_u32 s44, s44, s45
    s_mul_i32 s44, s44, {A2_MT}
    s_add_u32 s44, s44, {A2_OFF + 20*1024}
    v_add_u32 v20, s44, v20
    s_mul_i32 s45, s34, 12
    s_mul_i32 s46, s37, 3
    s_add_u32 s45, s45, s46
    s_lshl_b32 s45, s45, 9
    s_add_u32 s46, s45, 512
    s_add_u32 s47, s45, 1024
    """)
    for mi in range(4):
        a(f"s_add_u32 s44, s37, {mi}")
        a("s_and_b32 s44, s44, 3")
        a(f"s_mul_i32 s44, s44, {A2_MT}")
        a(f"v_add_u32 v{24+mi}, s44, v20")
    a("s_waitcnt lgkmcnt(0)")

    def g_epi(swapped):
        for mi in range(4):
            P = 128 + 4 * mi
            for i in range(3):
                g = ACC + 4 * (mi * 6 + (3 + i if swapped else i))
                u = ACC + 4 * (mi * 6 + (i if swapped else 3 + i))
                for h in (0, 2):
                    a(f"v_pk_fma_f32 {vr(g+h,2)}, {vr(144+4*i+h,2)}, {vr(P,2)}, {vr(g+h,2)} op_sel_hi:[1,0,1] neg_lo:[0,1,0] neg_hi:[0,1,0]")
                for h in (0, 2):
                    a(f"v_pk_mul_f32 {vr(g+h,2)}, {vr(g+h,2)}, {vr(P+2,2)} op_sel_hi:[1,0]")
                for e in range(4):
                    a(f"v_exp_f32 v{g+e}, v{g+e}")
                for h in (0, 2):
                    a(f"v_pk_fma_f32 {vr(u+h,2)}, {vr(156+4*i+h,2)}, {vr(P,2)}, {vr(u+h,2)} op_sel_hi:[1,0,1] neg_lo:[0,1,0] neg_hi:[0,1,0]")
                for h in (0, 2):
                    a(f"v_pk_fma_f32 {vr(g+h,2)}, {vr(g+h,2)}, {vr(P+2,2)}, {vr(P+2,2)} op_sel:[0,1,1] op_sel_hi:[1,1,1]")
                for e in range(4):
                    a(f"v_rcp_f32 v{g+e}, v{g+e}")
                a("s_nop 0")
                for h in (0, 2):
                    a(f"v_pk_mul_f32 {vr(g+h,2)}, {vr(g+h,2)}, {vr(u+h,2)}")
                a(f"v_cvt_pk_bf16_f32 v{u}, v{g}, v{g+1}")
                a(f"v_cvt_pk_bf16_f32 v{u+1}, v{g+2}, v{g+3}")
                a(f"buffer_store_dwordx2 {vr(u,2)}, v{24+mi}, s[12:15], s{45+i} offen{ST_FLAGS}")
    a("s_cmp_eq_u32 s36, 0")
    a("s_cbranch_scc0 L_g1_g_sw")
    g_epi(False)
    a("s_branch L_g1_g_end")
    a.label("L_g1_g_sw")
    g_epi(True)
    a.label("L_g1_g_end")
    a.stamp(8, True)
    a.stamp_flush(12, 1, 32)
    a("s_endpgm")

    a.label("L_g1_attn")
    a.tag = "a"
    a.vm = []
    AR_A = 18432
    BR_A = 55296
    BS_A = 15360
    srd(a, 16, 6, 640 * 3840)
    a(f"""
    s_lshl_b32 s42, s32, 10
    s_add_u32 s40, s42, {BR_A}
    s_add_u32 s41, s42, {BR_A+8192}
    s_mul_i32 s45, s34, 160
    """)

    def qkv_off(dst, sInstr):
        a(f"s_lshl_b32 s44, s{sInstr}, 6")
        a(f"v_add_u32 v20, s44, v0")
        divsmall(a, 21, 20, 30)
        a("v_mul_u32_u24 v22, 30, v21")
        a("v_sub_u32 v22, v20, v22")
        divsmall(a, 23, 22, 10)
        a("v_mul_u32_u24 v24, 10, v23")
        a("v_sub_u32 v22, v22, v24")
        a("v_and_b32 v21, 31, v21")
        unswap23(a, 24, 21, 25, 26)
        a("v_mul_u32_u24 v24, 3840, v24")
        a("v_mul_u32_u24 v23, 1280, v23")
        a("v_add_u32 v24, v24, v23")
        a("v_lshl_add_u32 v24, v22, 4, v24")
        a(f"v_add_u32 v{dst}, s45, v24")

    def ajob_off(dst, sJob):
        a("s_lshl_b32 s44, s33, 4")
        a(f"s_add_u32 s44, s44, s{sJob}")
        a("s_max_u32 s44, s44, 2")
        a("s_sub_u32 s44, s44, 2")
        a("s_mul_i32 s44, s44, 10240")
        a(f"v_add_u32 v{dst}, s44, v7")
    qkv_off(12, 32)
    a("s_add_u32 s46, s32, 8")
    a("s_min_u32 s46, s46, 14")
    qkv_off(13, 46)
    ajob_off(10, 32)
    a("s_add_u32 s46, s32, 8")
    ajob_off(11, 46)
    a("s_and_b32 s46, s32, 1")
    a("s_add_u32 s46, s46, 16")
    ajob_off(19, 46)
    a("""
    s_mov_b32 s47, 0
    s_mov_b32 s48, 0
    """)

    def dma_a(st):
        sb = (st & 3) * BS_A
        a(f"s_add_u32 m0, s40, {sb}")
        a("s_nop 0")
        a.vmem("buffer_load_dwordx4 v12, s[16:19], s48 offen lds", ("st", st))
        a("s_cmp_eq_u32 s32, 7")
        lab = f"L_a_s1_{a.tag}_{st}"
        a(f"s_cbranch_scc1 {lab}")
        a(f"s_add_u32 m0, s41, {sb}")
        a("s_nop 0")
        a.vmem("buffer_load_dwordx4 v13, s[16:19], s48 offen lds", ("st", st), optional=True)
        a.label(lab)
        a("s_add_u32 s48, s48, 122880")
        if st % 2 == 0:
            ab = ((st // 2) % 3) * AR_A
            lab = f"L_a_s4_{a.tag}_{st}"
            a("s_cmp_ge_u32 s32, 6")
            a(f"s_cbranch_scc1 {lab}_o")
            a.label(lab)
            a.vm.append((("st", st), True))
            a.ool.append(f"{lab}_o:\ns_add_u32 m0, s42, {ab + 10*1024}\ns_nop 0\nbuffer_load_dwordx4 v19, s[28:31], s47 offen lds\ns_branch {lab}")
            a(f"s_add_u32 m0, s42, {ab}")
            a("s_nop 0")
            a.vmem("buffer_load_dwordx4 v10, s[28:31], s47 offen lds", ("st", st))
            a(f"s_add_u32 m0, s42, {ab+8192}")
            a("s_nop 0")
            a.vmem("buffer_load_dwordx4 v11, s[28:31], s47 offen lds", ("st", st))
            a("s_add_u32 s47, s47, 128")

    a.stamp(1)
    for st in range(4):
        dma_a(st)
    def tlb_a(k0=4, nk=16, tg=0):
        a(f"""
        s_mul_i32 s44, s33, {2*nk}
        s_add_u32 s44, s44, {32*k0}
        v_min_u32 v20, {2*nk-1}, v0
        v_add_u32 v20, s44, v20
        v_mul_u32_u24 v20, 3840, v20
        v_add_u32 v20, s45, v20
        s_mul_i32 s44, s32, 1280
        s_cmp_lt_u32 s32, 3
        s_cbranch_scc0 L_tlb_a0_{a.tag}_{tg}
        """)
        a.vmem("buffer_load_dword v244, v20, s[16:19], s44 offen", "pf", optional=True)
        a.label(f"L_tlb_a0_{a.tag}_{tg}")
        if TLBPF >= 3:
            a(f"""
            s_sub_u32 s44, s32, 3
            s_cmp_lt_u32 s44, 3
            s_cbranch_scc0 L_tlb_a1_{a.tag}_{tg}
            s_mul_i32 s44, s44, 1280
            """)
            a.vmem("buffer_load_dword v244, v20, s[16:19], s44 offen offset:128", "pf", optional=True)
            a.label(f"L_tlb_a1_{a.tag}_{tg}")
    if TLBPF and TLBAT < 0:
        tlb_a()

    def pf_w_a():
        a("""
        s_add_u32 s44, s33, 4
        s_lshl_b32 s44, s44, 5
        s_lshl_b32 s46, s37, 3
        s_add_u32 s44, s44, s46
        v_lshrrev_b32 v20, 3, v0
        v_add_u32 v20, s44, v20
        v_mul_u32_u24 v20, 3840, v20
        v_and_b32 v21, 7, v0
        v_min_u32 v21, 5, v21
        v_lshrrev_b32 v22, 1, v21
        v_mul_u32_u24 v22, 1280, v22
        v_and_b32 v21, 1, v21
        v_lshl_add_u32 v22, v21, 7, v22
        v_add3_u32 v20, v20, v22, s45
        """)
        a.vmem("buffer_load_dword v244, v20, s[16:19], 0 offen", "pf")

    def pf_x_a():
        a("""
        s_lshl_b32 s44, s33, 4
        s_add_u32 s44, s44, s32
        s_add_u32 s44, s44, 8
        s_lshl_b32 s44, s44, 3
        v_lshrrev_b32 v20, 3, v0
        v_add_u32 v20, s44, v20
        v_mul_u32_u24 v20, 1280, v20
        v_and_b32 v21, 7, v0
        v_lshl_add_u32 v20, v21, 7, v20
        """)
        a.vmem("buffer_load_dword v245, v20, s[28:31], 0 offen offset:256", "pf")

    def frag_of(mi, dst):
        a(f"s_add_u32 s44, s37, {mi}")
        a("s_sub_u32 s46, s44, 5")
        a("s_cmp_ge_u32 s44, 5")
        a("s_cselect_b32 s46, s46, s44")
        if mi < 4:
            a("s_and_b32 s44, s44, 3")
            a("s_add_u32 s44, s44, 5")
        else:
            a("s_mov_b32 s44, 4")
        a("s_cmp_eq_u32 s36, 0")
        a(f"s_cselect_b32 s{dst}, s46, s44")

    for mi in range(5):
        frag_of(mi, 44)
        a(f"s_mul_i32 s{70+mi}, s44, {16*488}")
        a("s_lshl_b32 s46, s44, 8")
        a(f"s_add_u32 s{75+mi}, s46, {STAT_LDS}")
        a("s_lshl_b32 s44, s44, 11")
        a(f"v_add_u32 v{XA+mi}, s44, v8")
        a(f"v_xor_b32 v{XA+5+mi}, 64, v{XA+mi}")
    WAa = 220
    a(f"""
    v_mul_u32_u24 v20, 480, v9
    v_lshl_add_u32 v20, v4, 3, v20
    v_add_u32 v20, {BR_A}, v20
    """)
    for j in range(4):
        a("s_lshl_b32 s44, s36, 1")
        a(f"s_add_u32 s44, s44, {j}")
        a("s_and_b32 s44, s44, 3")
        a("s_lshl_b32 s46, s37, 2")
        a("s_add_u32 s44, s44, s46")
        if j in (1, 3):
            a(f"s_mov_b32 s{50 if j == 1 else 51}, s44")
        a("s_lshl_b32 s44, s44, 5")
        a(f"v_add_u32 v{WAa+j}, s44, v20")

    def xaddr_a(mi, ks):
        return XA + 5 * (ks & 1) + mi, ((ks // 2) % 3) * AR_A

    def waddr_a(j, ks):
        return WAa + j, (ks & 3) * BS_A, 3840

    CSa, RSa = 232, 24
    T32 = 32 * 488
    a("""
    v_mul_u32_u24 v21, 488, v6
    v_lshl_add_u32 v21, v2, 3, v21
    """)
    for j in range(4):
        a("s_lshl_b32 s44, s36, 1")
        a(f"s_add_u32 s44, s44, {j}")
        a("s_and_b32 s44, s44, 3")
        a("s_lshl_b32 s46, s37, 2")
        a("s_add_u32 s44, s44, s46")
        a("s_lshl_b32 s46, s44, 5")
        a(f"v_add_u32 v{200+j}, s46, v21")
        a("s_lshl_b32 s44, s44, 6")
        a(f"s_add_u32 s44, s44, {CS_LDS}")
        a(f"v_lshl_add_u32 v{224+j}, v2, 4, s44")
    a(f"""
    v_lshl_add_u32 v20, v6, 1, s36
    v_add_u32 v21, 16, v20
    v_subrev_u32 v22, 16, v20
    v_max_i32 v22, 0, v22
    s_mul_i32 s44, s37, 40
    v_mul_u32_u24 v21, 488, v21
    v_mul_u32_u24 v22, 488, v22
    v_lshl_add_u32 v23, v2, 4, s44
    v_add_u32 v204, v21, v23
    v_add_u32 v205, v22, v23
    v_lshl_add_u32 v20, v2, 2, v3
    v_lshl_add_u32 v20, v20, 1, s36
    v_add_u32 v21, 16, v20
    v_subrev_u32 v22, 16, v20
    v_max_i32 v22, 0, v22
    v_mul_u32_u24 v21, 488, v21
    v_mul_u32_u24 v22, 488, v22
    v_lshl_add_u32 v23, v4, 3, s44
    v_add_u32 v206, v21, v23
    v_add_u32 v207, v22, v23
    s_mul_i32 s44, s34, 80
    s_mul_i32 s46, s37, 20
    s_add_u32 s44, s44, s46
    v_lshl_add_u32 v23, v2, 2, s44
    v_lshrrev_b32 v21, 3, v23
    v_lshlrev_b32 v21, 8, v21
    v_and_b32 v23, 4, v23
    v_lshl_add_u32 v21, v23, 1, v21
    v_lshrrev_b32 v23, 3, v6
    s_lshl_b32 s46, s33, 3
    v_add_u32 v23, s46, v23
    v_mul_u32_u24 v23, {A2_MT}, v23
    v_and_b32 v22, 7, v6
    v_lshl_add_u32 v22, v22, 1, s36
    v_lshl_add_u32 v23, v22, 4, v23
    v_add_u32 v218, v23, v21
    s_add_u32 s44, s44, 16
    s_lshr_b32 s46, s44, 3
    s_lshl_b32 s46, s46, 8
    s_and_b32 s44, s44, 4
    s_lshl_b32 s44, s44, 1
    s_add_u32 s46, s46, s44
    v_add_u32 v219, s46, v23
    v_lshlrev_b32 v20, 2, v2
    v_add_u32 v21, 9, v6
    """)
    for r in range(4):
        a(f"v_add_u32 v22, {r}, v20")
        a(f"v_cmp_ge_u32 s[{80+2*r}:{81+2*r}], v22, v21")
        a(f"v_cmp_le_u32 s[{88+2*r}:{89+2*r}], v22, v6")
        a(f"v_add_u32 v22, 7, v22")
        a(f"v_cmp_ge_u32 s[38:39], v22, v6")
        a("s_nop 1")
        a(f"s_and_b64 s[{88+2*r}:{89+2*r}], s[{88+2*r}:{89+2*r}], s[38:39]")
    a("v_cmp_gt_u32 s[38:39], 3, v2")
    a("v_cmp_gt_u32 s[96:97], 2, v2")
    hx = {B2AT: b2_issue, B2AT + 6: b2_finish}
    for bi, (at, k0, nk) in enumerate(PFSCHED):
        hx[at] = (lambda k0=k0, nk=nk, bi=bi: tlb_a(k0, nk, bi))
    hk = {ks: mk_roll(ks, (16,), 122880, hx.get(ks)) for ks in range(NK - 1)}
    vm0 = list(a.vm)
    a("s_cmp_eq_u32 s36, 0")
    a("s_cbranch_scc0 L_a_loop1")
    a.tag = "a0"
    k1_mainloop(a, 5, 4, dma_a, xaddr_a, waddr_a, ACC, FR, 2, 2, CSa, RSa, hooks=hk, mstat=112, NMM=5, mslots=(0,))
    a("s_branch L_a_loopend")
    a.label("L_a_loop1")
    a.tag = "a1"
    a.vm = vm0
    k1_mainloop(a, 5, 4, dma_a, xaddr_a, waddr_a, ACC, FR, 2, 2, CSa, RSa, hooks=hk, mstat=112, NMM=4, mslots=(0, 4))
    a.label("L_a_loopend")
    a.stamp(7)
    a("s_mov_b32 s16, 0xffff0000")
    a("s_mov_b32 s17, 0x3acccccd")
    a("""
    s_nop 7
    v_lshrrev_b32 v21, 2, v6
    v_cmp_eq_u32 s[40:41], v21, v2
    v_and_b32 v21, 3, v6
    v_cmp_eq_u32 s[42:43], 1, v21
    v_cmp_eq_u32 s[44:45], 2, v21
    v_cmp_eq_u32 s[46:47], 3, v21
    s_nop 1
    """)
    for mi, S in ((0, 12), (1, 16)):
        R0, Q0 = 112 + 8 * mi, 116 + 8 * mi
        a(f"v_mov_b32 v{S}, v{R0}")
        a(f"v_cndmask_b32 v{S+1}, v{Q0}, v{Q0+1}, s[42:43]")
        a(f"v_cndmask_b32 v{S+1}, v{S+1}, v{Q0+2}, s[44:45]")
        a(f"v_cndmask_b32 v{S+1}, v{S+1}, v{Q0+3}, s[46:47]")
        a(f"v_cndmask_b32 v{S+1}, 0, v{S+1}, s[40:41]")
        red_g(a, S + 1, 20)
    rowstat_math(a, 12, 20)
    rowstat_math(a, 16, 20)
    a(f"""
    v_lshl_add_u32 v20, v6, 4, s75
    ds_write_b128 v20, v[12:15]
    s_cmp_eq_u32 s36, 0
    s_cbranch_scc1 L_a_nos1
    v_lshl_add_u32 v20, v6, 4, s79
    ds_write_b128 v20, v[16:19]
    L_a_nos1:
    s_lshl_b32 s44, s37, 2
    s_lshl_b32 s46, s36, 1
    s_add_u32 s44, s44, s46
    s_lshl_b32 s44, s44, 6
    s_add_u32 s44, s44, {CS_LDS}
    v_lshl_add_u32 v20, v2, 4, s44
    ds_write_b128 v20, v[232:235]
    ds_write_b128 v20, v[236:239] offset:64
    s_waitcnt lgkmcnt(0)
    s_barrier
    """)
    a.stamp(9)
    a("v_lshlrev_b32 v21, 4, v6")
    for mi in range(5):
        a(f"v_add_u32 v20, s{75+mi}, v21")
        a(f"ds_read_b64 {vr(128+2*mi,2)}, v20")
    for j in range(4):
        a(f"ds_read_b128 {vr(140+4*j,4)}, v{224+j}")
    a("s_waitcnt lgkmcnt(0)")
    for j in range(4):
        if j in (1, 3):
            a(f"s_cmp_eq_u32 s{50 if j == 1 else 51}, 15")
            a(f"s_cbranch_scc1 L_g1_a_skip{j}")
        for mi in range(5):
            P = 128 + 2 * mi
            acc = ACC + 4 * (mi * 4 + j)
            if mi == 4:
                a("s_cmp_eq_u32 s36, 0")
                a(f"s_cbranch_scc0 L_g1_a_skip{j}")
            for h in (0, 2):
                a(f"v_pk_fma_f32 {vr(acc+h,2)}, {vr(140+4*j+h,2)}, {vr(P,2)}, {vr(acc+h,2)} op_sel_hi:[1,0,1] neg_lo:[0,1,0] neg_hi:[0,1,0]")
            for h in (0, 2):
                a(f"v_pk_mul_f32 {vr(acc+h,2)}, {vr(acc+h,2)}, {vr(P,2)} op_sel:[0,1] op_sel_hi:[1,1]")
            a(f"v_cvt_pk_bf16_f32 v{acc}, v{acc}, v{acc+1}")
            a(f"v_cvt_pk_bf16_f32 v{acc+1}, v{acc+2}, v{acc+3}")
            a(f"v_add_u32 v{acc+2}, s{70+mi}, v{200+j}")
            a(f"ds_write_b64 v{acc+2}, {vr(acc,2)}")
        a.label(f"L_g1_a_skip{j}")
    a("s_waitcnt lgkmcnt(0)")
    a("s_barrier")
    a.stamp(10)
    KF, VT0, VT1, QF, SS, PP, OO = 32, 52, 62, 72, 88, 120, 136
    for qb in range(4):
        a(f"ds_read_b64 {vr(QF+4*qb,2)}, v204 offset:{qb*T32}")
        a(f"ds_read_b64 {vr(QF+4*qb+2,2)}, v204 offset:{qb*T32+8}")
    a(f"ds_read_b64 {vr(KF,2)}, v205 offset:160")
    a(f"ds_read_b64 {vr(KF+2,2)}, v205 offset:168")
    for t in range(4):
        a(f"ds_read_b64 {vr(KF+4+4*t,2)}, v204 offset:{t*T32+160}")
        a(f"ds_read_b64 {vr(KF+4+4*t+2,2)}, v204 offset:{t*T32+168}")
    a(f"ds_read_b64_tr_b16 {vr(VT0,2)}, v207 offset:320")
    a(f"ds_read_b64_tr_b16 {vr(VT1,2)}, v207 offset:352")
    for t in range(4):
        a(f"ds_read_b64_tr_b16 {vr(VT0+2+2*t,2)}, v206 offset:{t*T32+320}")
        a(f"ds_read_b64_tr_b16 {vr(VT1+2+2*t,2)}, v206 offset:{t*T32+352}")
    a("s_cmp_eq_u32 s33, 0")
    for r in range(4):
        a(f"s_cselect_b64 s[{60+2*r}:{61+2*r}], 0, s[{80+2*r}:{81+2*r}]")
    a("""
    s_mov_b32 s18, 0x3ea52b5c
    s_mov_b32 s19, 0x3ea52b5c
    v_mov_b32 v29, 0xff800000
    s_waitcnt lgkmcnt(10)
    """)
    a.stamp(11)
    for qb in range(4):
        q = QF + 4 * qb
        a(f"v_cndmask_b32 v{q}, 0, v{q}, s[38:39]")
        a(f"v_cndmask_b32 v{q+1}, 0, v{q+1}, s[38:39]")
        a(f"v_cndmask_b32 v{q+2}, 0, v{q+2}, s[96:97]")
        a(f"v_cndmask_b32 v{q+3}, 0, v{q+3}, s[96:97]")
    a("s_nop 1")
    for qb in range(4):
        a(f"v_mfma_f32_16x16x32_bf16 {vr(SS+8*qb,4)}, {vr(KF+4*qb,4)}, {vr(QF+4*qb,4)}, 0")
        a(f"v_mfma_f32_16x16x32_bf16 {vr(SS+8*qb+4,4)}, {vr(KF+4*qb+4,4)}, {vr(QF+4*qb,4)}, 0")
    a("s_nop 7")
    for qb in range(4):
        S = SS + 8 * qb
        mb = 60 if qb == 0 else 80
        for r in range(4):
            a(f"v_cndmask_b32 v{S+r}, v29, v{S+r}, s[{mb+2*r}:{mb+1+2*r}]")
            a(f"v_cndmask_b32 v{S+4+r}, v29, v{S+4+r}, s[{88+2*r}:{89+2*r}]")
        mx, t = 24 + (qb & 1) * 2, 25 + (qb & 1) * 2
        a(f"v_max3_f32 v{mx}, v{S}, v{S+1}, v{S+2}")
        a(f"v_max3_f32 v{mx}, v{mx}, v{S+3}, v{S+4}")
        a(f"v_max3_f32 v{mx}, v{mx}, v{S+5}, v{S+6}")
        a(f"v_max_f32 v{mx}, v{mx}, v{S+7}")
        a(f"v_mov_b32 v{t}, v{mx}")
        a("s_nop 1")
        a(f"v_permlane32_swap_b32 v{mx}, v{t}")
        a("s_nop 1")
        a(f"v_max_f32 v{mx}, v{mx}, v{t}")
        a(f"v_mov_b32 v{t}, v{mx}")
        a("s_nop 1")
        a(f"v_permlane16_swap_b32 v{mx}, v{t}")
        a("s_nop 1")
        a(f"v_max_f32 v{mx}, v{mx}, v{t}")
        a(f"v_mul_f32 v{mx}, s18, v{mx}")
        for h in range(0, 8, 2):
            a(f"v_pk_fma_f32 {vr(S+h,2)}, {vr(S+h,2)}, s[18:19], {vr(mx,2)} op_sel_hi:[1,1,0] neg_lo:[0,0,1] neg_hi:[0,0,1]")
        for e in range(8):
            a(f"v_exp_f32 v{S+e}, v{S+e}")
        a("s_nop 0")
        a(f"v_pk_add_f32 {vr(mx,2)}, {vr(S,2)}, {vr(S+2,2)}")
        a(f"v_pk_add_f32 {vr(30,2)}, {vr(S+4,2)}, {vr(S+6,2)}")
        a(f"v_pk_add_f32 {vr(mx,2)}, {vr(mx,2)}, {vr(30,2)}")
        a(f"v_add_f32 v{mx}, v{mx}, v{t}")
        red_g(a, mx, t)
        a(f"v_rcp_f32 v{mx}, v{mx}")
        a("s_nop 0")
        for h in range(0, 8, 2):
            a(f"v_pk_mul_f32 {vr(S+h,2)}, {vr(S+h,2)}, {vr(mx,2)} op_sel_hi:[1,0]")
        for h in range(4):
            a(f"v_cvt_pk_bf16_f32 v{PP+4*qb+h}, v{S+2*h}, v{S+2*h+1}")
    a.stamp(12)
    a("s_waitcnt lgkmcnt(0)")
    a("s_nop 1")
    for qb in range(4):
        a(f"v_mfma_f32_16x16x32_bf16 {vr(OO+8*qb,4)}, {vr(VT0+2*qb,4)}, {vr(PP+4*qb,4)}, 0")
        a(f"v_mfma_f32_16x16x32_bf16 {vr(OO+8*qb+4,4)}, {vr(VT1+2*qb,4)}, {vr(PP+4*qb,4)}, 0")
    a("s_nop 7")
    for qb in range(4):
        O = OO + 8 * qb
        a(f"v_cvt_pk_bf16_f32 v{O}, v{O}, v{O+1}")
        a(f"v_cvt_pk_bf16_f32 v{O+1}, v{O+2}, v{O+3}")
        a(f"v_cvt_pk_bf16_f32 v{O+4}, v{O+4}, v{O+5}")
        a(f"v_cvt_pk_bf16_f32 v{O+5}, v{O+6}, v{O+7}")
        a(f"s_mov_b32 s44, {A2_OFF + qb*2*A2_MT}")
        a(f"buffer_store_dwordx2 {vr(O,2)}, v218, s[12:15], s44 offen{ST_FLAGS}")
    a("s_mov_b64 exec, 0xffff")
    for qb in range(4):
        O = OO + 8 * qb
        a(f"s_mov_b32 s44, {A2_OFF + qb*2*A2_MT}")
        a(f"buffer_store_dwordx2 {vr(O+4,2)}, v219, s[12:15], s44 offen{ST_FLAGS}")
    a("s_mov_b64 exec, -1")
    a.stamp(8, True)
    a.stamp_flush(12, 1, 32)
    a.label("L_g1_done")
    a("s_endpgm")
    for blk in a.ool:
        a(blk)
    a.ool = []


def gen_k2(a):
    a.raw(".p2align 8")
    a.label("g2_kernel")
    a.kidx = 2
    a.vm = []
    a("""
    s_cmp_ge_u32 s2, 256
    s_cbranch_scc1 L_g2_done
    """)
    a.stamp(0)
    a("""
    s_load_dwordx2 s[4:5], s[0:1], 0
    s_load_dwordx2 s[10:11], s[0:1], 56
    s_load_dwordx2 s[28:29], s[0:1], 72
    v_lshrrev_b32 v1, 6, v0
    v_and_b32 v0, 63, v0
    s_nop 0
    v_readfirstlane_b32 s32, v1
    s_and_b32 s33, s2, 7
    s_lshr_b32 s3, s2, 3
    s_and_b32 s34, s3, 7
    s_lshr_b32 s3, s3, 3
    s_lshl_b32 s33, s33, 2
    s_add_u32 s33, s33, s3
    v_lshrrev_b32 v2, 4, v0
    v_lshlrev_b32 v5, 4, v0
    """)
    a(f"""
    s_mul_i32 s40, s32, 10
    s_lshl_b32 s41, s32, 3
    s_add_u32 s41, s41, 4
    s_cmp_lt_u32 s32, 2
    s_cselect_b32 s40, s40, s41
    s_lshl_b32 s47, s40, 10
    s_mul_i32 s48, s34, 68
    s_add_u32 s48, s48, s40
    s_mul_i32 s48, s48, 5120
    s_add_u32 s48, s48, {B2_OFF}
    s_mul_i32 s42, s32, 20480
    s_mul_i32 s45, s34, 160
    """)
    for mi in range(4):
        a(f"s_lshl_b32 s44, s33, 2")
        a(f"s_add_u32 s44, s44, {mi}")
        a(f"s_mul_i32 s44, s44, {A2_MT}")
        if A2_OFF:
            a(f"s_add_u32 s44, s44, {A2_OFF}")
        a(f"v_add_u32 v{10+mi}, s44, v5")
    a("v_add_u32 v14, 4096, v5")
    a("s_waitcnt lgkmcnt(0)")
    srd(a, 12, 28, WS_BYTES)
    srd(a, 20, 4, 2048 * 1280)
    srd(a, 24, 10, 2048 * 1280)
    ACC = 32
    ST = 112

    def issue(st):
        b = ST + 36 * (st & 3)
        for mi in range(4):
            a.vmem(f"buffer_load_dwordx4 {vr(b+4*mi,4)}, v{10+mi}, s[12:15], s47 offen", ("st", st))
        for j in range(4):
            a.vmem(f"buffer_load_dwordx4 {vr(b+16+4*j,4)}, v5, s[12:15], s48 offen offset:{1024*j}", ("st", st))
        a.vmem(f"buffer_load_dwordx4 {vr(b+32,4)}, v14, s[12:15], s48 offen", ("st", st))
        a("s_add_u32 s47, s47, 1024")
        a("s_add_u32 s48, s48, 5120")

    def body(n):
        a.vm = []
        a.stamp(1)
        for st in range(4):
            issue(st)
        a.stamp(2)
        for s in range(n):
            b = ST + 36 * (s & 3)
            a.wait_vm(("st", s))
            if s in (0, 3, 7):
                a.stamp({0: 3, 3: 4, 7: 5}[s])
            for j in range(5):
                for mi in range(4):
                    acc = ACC + 4 * (mi * 5 + j)
                    c = "0" if s == 0 else vr(acc, 4)
                    a(f"v_mfma_f32_16x16x32_bf16 {vr(acc,4)}, {vr(b+16+4*j,4)}, {vr(b+4*mi,4)}, {c}")
            if s + 4 < n:
                issue(s + 4)

    a("s_cmp_lt_u32 s32, 2")
    a("s_cbranch_scc0 L_g2_h")
    body(10)
    a("s_branch L_g2_red")
    a.label("L_g2_h")
    body(8)
    a.label("L_g2_red")
    a.stamp(6)
    for r in range(3):
        a(f"s_add_u32 s40, s32, {8*r}")
        a("s_min_u32 s40, s40, 19")
        a("s_mul_i32 s41, s40, 52")
        a("s_lshr_b32 s41, s41, 8")
        a("s_mul_i32 s43, s41, 5")
        a("s_sub_u32 s43, s40, s43")
        a(f"""
        s_lshl_b32 s44, s33, 6
        s_lshl_b32 s41, s41, 4
        s_add_u32 s44, s44, s41
        v_and_b32 v21, 15, v0
        v_add_u32 v21, s44, v21
        v_mul_u32_u24 v21, 1280, v21
        v_lshl_add_u32 v21, v2, 3, v21
        s_lshl_b32 s43, s43, 5
        s_add_u32 s43, s43, s45
        v_add_u32 v{112+r}, s43, v21
        buffer_load_dwordx2 {vr(116+2*r,2)}, v{112+r}, s[20:23], 0 offen
        """)
    a("v_add_u32 v20, s42, v5")
    for st in range(20):
        a(f"ds_write_b128 v20, {vr(ACC+4*st,4)} offset:{st*1024}")
    a("s_waitcnt lgkmcnt(0)")
    a("s_barrier")
    a.stamp(7, True)
    a.stamp_flush(12, 2, 32)
    a("s_mov_b32 s16, 0xffff0000")
    a("s_lshl_b32 s40, s32, 10")
    a("v_add_u32 v20, s40, v5")
    a("v_add_u32 v21, 40960, v20")
    a("v_add_u32 v22, 81920, v20")
    a("v_add_u32 v23, 122880, v20")
    for r in range(3):
        if r == 2:
            a("s_cmp_ge_u32 s32, 4")
            a("s_cbranch_scc1 L_g2_r2skip")
        for w in range(8):
            base = 128 + 32 * r + 4 * w
            a(f"ds_read_b128 {vr(base,4)}, v{20+(w>>1)} offset:{(w&1)*20480 + r*8192}")
    a.label("L_g2_r2skip")
    a("s_waitcnt vmcnt(0) lgkmcnt(0)")
    for r in range(3):
        if r == 2:
            a("s_cmp_ge_u32 s32, 4")
            a("s_cbranch_scc1 L_g2_done")
        B = 128 + 32 * r
        X = 116 + 2 * r
        for h in (0, 2):
            a(f"v_pk_add_f32 {vr(B+h,2)}, {vr(B+h,2)}, {vr(B+4+h,2)}")
            a(f"v_pk_add_f32 {vr(B+8+h,2)}, {vr(B+8+h,2)}, {vr(B+12+h,2)}")
            a(f"v_pk_add_f32 {vr(B+16+h,2)}, {vr(B+16+h,2)}, {vr(B+20+h,2)}")
            a(f"v_pk_add_f32 {vr(B+24+h,2)}, {vr(B+24+h,2)}, {vr(B+28+h,2)}")
            a(f"v_pk_add_f32 {vr(B+8+h,2)}, {vr(B+8+h,2)}, {vr(B+16+h,2)}")
            a(f"v_pk_add_f32 {vr(B+8+h,2)}, {vr(B+8+h,2)}, {vr(B+24+h,2)}")
        for p in range(2):
            a0, a1, b0, b1 = B + 2 * p, B + 1 + 2 * p, B + 8 + 2 * p, B + 9 + 2 * p
            a(f"v_cvt_pk_bf16_f32 v25, v{a0}, v{a1}")
            a(f"v_cvt_pk_bf16_f32 v26, v{b0}, v{b1}")
            a(f"v_lshlrev_b32 v{a0}, 16, v25")
            a(f"v_and_b32 v{a1}, s16, v25")
            a(f"v_lshlrev_b32 v{b0}, 16, v26")
            a(f"v_and_b32 v{b1}, s16, v26")
            a(f"v_lshlrev_b32 v26, 16, v{X+p}")
            a(f"v_and_b32 v27, s16, v{X+p}")
            a(f"v_pk_add_f32 {vr(a0,2)}, {vr(a0,2)}, v[26:27]")
            a(f"v_cvt_pk_bf16_f32 v25, v{a0}, v{a1}")
            a(f"v_lshlrev_b32 v{a0}, 16, v25")
            a(f"v_and_b32 v{a1}, s16, v25")
            a(f"v_pk_add_f32 {vr(a0,2)}, {vr(a0,2)}, {vr(b0,2)}")
            a(f"v_cvt_pk_bf16_f32 v{B+16+p}, v{a0}, v{a1}")
        a(f"buffer_store_dwordx2 {vr(B+16,2)}, v{112+r}, s[24:27], 0 offen")
    a.label("L_g2_done")
    a("s_endpgm")


def kd(name, vgpr, sgpr=102):
    acc = (vgpr + 3) // 4 * 4
    return f""".p2align 6
.amdhsa_kernel {name}
  .amdhsa_next_free_vgpr {vgpr}
  .amdhsa_next_free_sgpr {sgpr}
  .amdhsa_accum_offset {acc}
  .amdhsa_group_segment_fixed_size 0
  .amdhsa_kernarg_size 80
  .amdhsa_user_sgpr_count 2
  .amdhsa_user_sgpr_kernarg_segment_ptr 1
  .amdhsa_system_sgpr_workgroup_id_x 1
.end_amdhsa_kernel
"""


def main(outpath):
    a = Asm()
    a.raw("; @launch kernel=g1_kernel grid=(256,1,1) block=(512,1,1) lds=163840")
    a.raw("; @launch kernel=g2_kernel grid=(256,1,1) block=(512,1,1) lds=163840")
    a.raw('.amdgcn_target "amdgcn-amd-amdhsa--gfx950"')
    a.raw(".text")
    for k in ("g1_kernel", "g2_kernel"):
        a.raw(f".globl {k}")
        a.raw(f".type {k},@function")
    gen_k1(a)
    gen_k2(a)
    a.raw('.section .rodata,"a"')
    a.raw(kd("g1_kernel", 256))
    a.raw(kd("g2_kernel", 256))
    open(outpath, "w").write(a.text())


if __name__ == "__main__":
    if len(sys.argv) > 2 and sys.argv[2] == "stamp":
        STAMP = True
    main(sys.argv[1] if len(sys.argv) > 1 else f"cdna_kernels/{NAME}.s")
```

```python
import sys, os

NAME = "parallel_sum__sliding_local_dilated__glu_gated_glu__prompt"
A2_OFF = 0
B2_OFF = 9 << 20
WS_BYTES = 16 << 20
A2_MT = 68 * 1024
STAMP = False
DBGSTAMP = os.environ.get("DBGSTAMP", "") == "1"
ST_FLAGS = os.environ.get("STF", "")
B2F = os.environ.get("B2F", " sc0 sc1")
PRIO = int(os.environ.get("PRIO", "0"))
RDT = int(os.environ.get("RDT", "6"))
CODEPF = int(os.environ.get("CODEPF", "0"))
PFD = int(os.environ.get("PFD", "0"))
XP = os.environ.get("XP", "")
TLBPF = int(os.environ.get("TLBPF", "3"))
TLBAT = int(os.environ.get("TLBAT", "0"))
B2AT = int(os.environ.get("B2AT", "9"))
PFSCHED = eval(os.environ.get("PFSCHED", "[(0,4,6),(3,10,5),(6,15,5)]"))


class Asm:
    def __init__(self):
        self.lines = []
        self.vm = []
        self.ool = []

    def __call__(self, s):
        for ln in s.strip("\n").split("\n"):
            ln = ln.strip()
            if ln:
                self.lines.append("    " + ln)

    def label(self, l):
        self.lines.append(l + ":")

    def raw(self, s):
        self.lines.append(s)

    def text(self):
        return "\n".join(l for l in self.lines if l.strip() != "#CHUNK") + "\n"

    def capture(self, fn, *args):
        save = self.lines
        self.lines = []
        fn(*args)
        got = self.lines
        self.lines = save
        chunks, cur = [], []
        for ln in got:
            if ln.strip() == "#CHUNK":
                if cur:
                    chunks.append(cur)
                cur = []
            else:
                cur.append(ln)
        if cur:
            chunks.append(cur)
        return chunks

    def chunk(self):
        self.lines.append("#CHUNK")

    def vmem(self, s, tag, optional=False):
        self(s)
        self.vm.append((tag, optional))
        if not optional:
            self.chunk()

    def vm_count_after(self, tag):
        idx = max([i for i, (t, o) in enumerate(self.vm) if t == tag], default=-1)
        if idx < 0:
            return None
        return sum(1 for (t, o) in self.vm[idx + 1:] if not o)

    def wait_vm(self, tag, lgkm=False):
        n = self.vm_count_after(tag)
        parts = []
        if n is not None:
            assert n < 64
            parts.append(f"vmcnt({n})")
            idx = max([i for i, (t, o) in enumerate(self.vm) if t == tag])
            self.vm = self.vm[idx + 1:]
        if lgkm:
            parts.append("lgkmcnt(0)")
        if parts:
            self("s_waitcnt " + " ".join(parts))

    def stamp(self, n, last=False):
        if not STAMP:
            return
        self("s_memtime s[98:99]")
        self("s_waitcnt lgkmcnt(0)")
        if n == 0:
            self("s_mov_b32 s100, s98")
            self("s_memrealtime s[98:99]")
            self("s_waitcnt lgkmcnt(0)")
            self("s_mov_b32 s101, s98")
            return
        if n == 1:
            self("v_mov_b32 v1, s101")
            self("s_lshl_b32 s101, s2, 3")
            self("s_add_u32 s101, s101, s32")
            self("s_lshl_b32 s101, s101, 6")
            self(f"s_add_u32 s101, s101, {(12+self.kidx)<<20}")
            self("v_mov_b32 v255, 0")
            self("buffer_store_dword v1, v255, s[12:15], s101 offen offset:56")
            self("s_nop 1")
            self("v_mov_b32 v1, s100")
            self("buffer_store_dword v1, v255, s[12:15], s101 offen offset:0")
            self("s_nop 1")
            self.vm.append(("stamp", True)); self.vm.append(("stamp", True))
        self("v_mov_b32 v1, s98")
        self("v_mov_b32 v255, 0")
        self(f"buffer_store_dword v1, v255, s[12:15], s101 offen offset:{4*n}")
        self("s_nop 1")
        self.vm.append(("stamp", True))
        if last:
            self("s_memrealtime s[98:99]")
            self("s_waitcnt lgkmcnt(0)")
            self("v_mov_b32 v1, s98")
            self("buffer_store_dword v1, v255, s[12:15], s101 offen offset:60")
            self("s_nop 1")

    def stamp_flush(self, srd_ws, kidx, swave):
        return


def srd(a, d, base, nbytes):
    a(f"s_mov_b32 s{d}, s{base}")
    a(f"s_mov_b32 s{d+1}, s{base+1}")
    a(f"s_mov_b32 s{d+2}, {nbytes}")
    a(f"s_mov_b32 s{d+3}, 0x00020000")


def vr(b, n):
    return f"v[{b}:{b+n-1}]"


def unswap23(a, dst, src, t0, t1):
    a(f"v_lshrrev_b32 v{t0}, 1, v{src}")
    a(f"v_and_b32 v{t0}, 4, v{t0}")
    a(f"v_lshlrev_b32 v{t1}, 1, v{src}")
    a(f"v_and_b32 v{t1}, 8, v{t1}")
    a(f"v_and_b32 v{dst}, 0x13, v{src}")
    a(f"v_or3_b32 v{dst}, v{dst}, v{t0}, v{t1}")


def divsmall(a, q, p, d, lim=1024):
    m = (65536 + d - 1) // d
    for x in range(lim):
        assert (x * m) >> 16 == x // d, (d, x)
    a(f"v_mul_u32_u24 v{q}, {m}, v{p}")
    a(f"v_lshrrev_b32 v{q}, 16, v{q}")


def sdiv(a, q, p, d, lim):
    m = (65536 + d - 1) // d
    for x in range(lim):
        assert (x * m) >> 16 == x // d, (d, x)
    a(f"s_mul_i32 s{q}, s{p}, {m}")
    a(f"s_lshr_b32 s{q}, s{q}, 16")


def red_g(a, v, t):
    a(f"v_mov_b32 v{t}, v{v}")
    a("s_nop 1")
    a(f"v_permlane32_swap_b32 v{v}, v{t}")
    a("s_nop 1")
    a(f"v_add_f32 v{v}, v{v}, v{t}")
    a(f"v_mov_b32 v{t}, v{v}")
    a("s_nop 1")
    a(f"v_permlane16_swap_b32 v{v}, v{t}")
    a("s_nop 1")
    a(f"v_add_f32 v{v}, v{v}, v{t}")


NK = 20
STAT_LDS = 156 * 1024
CS_LDS = STAT_LDS + 2560
SCR_LDS = 144 * 1024
VONE = 228
TMP = 20


def k1_mainloop(a, NM, NN, dma_fn, xaddr_fn, waddr_fn, ACC, FR, ncs, nrs, CS, RS, hooks=None, mstat=None, skipj=None, NMM=None, mslots=(0,)):
    NMM = NMM or NM
    FS = 4 * NM + 4 * NN

    def xfrag(s, mi):
        return FR + s * FS + 4 * mi

    def wfrag(s, j):
        return FR + s * FS + 4 * NM + 4 * j

    def reads(ks):
        s = ks & 1
        out = []
        for mi in range(NM):
            v, off = xaddr_fn(mi, ks)
            out.append(f"ds_read_b128 {vr(xfrag(s,mi),4)}, v{v} offset:{off}")
        for j in range(NN):
            v, off, dt = waddr_fn(j, ks)
            out.append(f"ds_read_b64_tr_b16 {vr(wfrag(s,j),2)}, v{v} offset:{off}")
            out.append(f"ds_read_b64_tr_b16 {vr(wfrag(s,j)+2,2)}, v{v} offset:{off+dt}")
        return out

    def mfmas(ks):
        s = ks & 1
        out = []
        for j in range(NN):
            grp = []
            for mi in range(NMM):
                acc = ACC + 4 * (mi * NN + j)
                c = "0" if ks == 0 else vr(acc, 4)
                grp.append(f"v_mfma_f32_16x16x32_bf16 {vr(acc,4)}, {vr(wfrag(s,j),4)}, {vr(xfrag(s,mi),4)}, {c}")
            if skipj and j in skipj and "noskip" not in XP:
                lab = f"L_skj_{a.tag}_{ks}_{j}"
                out.append(f"s_cmp_eq_u32 s{skipj[j]}, 15\ns_cbranch_scc1 {lab}\n" + "\n".join(grp) + f"\n{lab}:")
            else:
                out.extend(grp)
        return out

    def stats(ks):
        s = ks & 1
        out = []
        for j in range(ncs):
            c = "0" if ks == 0 else vr(CS + 4 * j, 4)
            out.append(f"v_mfma_f32_16x16x32_bf16 {vr(CS+4*j,4)}, {vr(wfrag(s,j),4)}, {vr(VONE,4)}, {c}")
        valu = []
        if mstat is not None:
            for k, mi in enumerate(mslots):
                R0, Q0 = mstat + 8 * k, mstat + 8 * k + 4
                c0 = "0" if ks == 0 else vr(R0, 4)
                c1 = "0" if ks == 0 else vr(Q0, 4)
                out.append(f"v_mfma_f32_16x16x32_bf16 {vr(R0,4)}, {vr(VONE,4)}, {vr(xfrag(s,mi),4)}, {c0}")
                out.append(f"v_mfma_f32_16x16x32_bf16 {vr(Q0,4)}, {vr(xfrag(s,mi),4)}, {vr(xfrag(s,mi),4)}, {c1}")
            return out, valu
        for mi in range(nrs):
            S0, S1, Q0, Q1 = [RS + 4 * mi + i for i in range(4)]
            for d in range(4):
                x = xfrag(s, mi) + d
                t0, t1 = TMP + 2 * (d & 1), TMP + 2 * (d & 1) + 1
                valu.append(f"v_lshlrev_b32 v{t0}, 16, v{x}")
                valu.append(f"v_and_b32 v{t1}, s69, v{x}")
                if ks == 0 and d == 0:
                    valu.append(f"v_mov_b32 v{S0}, v{t0}")
                    valu.append(f"v_mov_b32 v{S1}, v{t1}")
                    valu.append(f"v_mul_f32 v{Q0}, v{t0}, v{t0}")
                    valu.append(f"v_mul_f32 v{Q1}, v{t1}, v{t1}")
                else:
                    valu.append(f"v_add_f32 v{S0}, v{S0}, v{t0}")
                    valu.append(f"v_add_f32 v{S1}, v{S1}, v{t1}")
                    valu.append(f"v_fmac_f32 v{Q0}, v{t0}, v{t0}")
                    valu.append(f"v_fmac_f32 v{Q1}, v{t1}, v{t1}")
        if "novalu" in XP: valu = []
        if "nocs" in XP: out = []
        return out, valu

    a.stamp(2)
    if PRIO:
        lab = f"L_prio_{a.tag}"
        a(f"s_cmp_eq_u32 s36, {PRIO-1}")
        a(f"s_cbranch_scc0 {lab}")
        a("s_setprio 1")
        a.label(lab)
    a.wait_vm(("st", 0))
    a("s_barrier")
    a.stamp(3)
    for r in reads(0):
        a(r)
    for ks in range(NK):
        if ks + 1 < NK:
            a.wait_vm(("st", ks + 1), lgkm=True)
            a("s_barrier")
            if ks in (4, 10, 16):
                a.stamp({4: 4, 10: 5, 16: 6}[ks])
            if hooks and ks in hooks:
                hooks[ks]()
            dm = a.capture(dma_fn, ks + 4) if ks + 4 < NK else []
            if "nodma" in XP:
                dm = []; a.vm = []
            rd = reads(ks + 1)
            if "nolds" in XP: rd = []
        else:
            a("s_waitcnt lgkmcnt(0)")
            rd = []
            dm = []
        mf = mfmas(ks)
        smf, stt = stats(ks)
        mf = mf + smf
        nr = ns = nd = 0
        L = len(mf)
        for i, m in enumerate(mf):
            a(m)
            while nd < len(dm) and nd < 1 + i * len(dm) // (L - 2):
                a.lines.extend(dm[nd]); nd += 1
            while nr < len(rd) and nr < (i + 1) * len(rd) // max(1, L - RDT):
                a(rd[nr]); nr += 1
            while ns < len(stt) and ns < (i + 1) * len(stt) // L:
                a(stt[ns]); ns += 1
        while nd < len(dm):
            a.lines.extend(dm[nd]); nd += 1
        while nr < len(rd):
            a(rd[nr]); nr += 1
        while ns < len(stt):
            a(stt[ns]); ns += 1


def rowstat_math(a, S, t):
    Q = S + 1
    a(f"v_mul_f32 v{S}, s17, v{S}")
    a(f"v_mul_f32 v{Q}, s17, v{Q}")
    a(f"v_fma_f32 v{Q}, -v{S}, v{S}, v{Q}")
    a(f"v_max_f32 v{Q}, 0, v{Q}")
    a(f"v_cvt_pk_bf16_f32 v{t}, v{S}, v{Q}")
    a(f"v_lshlrev_b32 v{S}, 16, v{t}")
    a(f"v_and_b32 v{Q}, s16, v{t}")
    a(f"v_add_f32 v{Q}, 0x3727c5ac, v{Q}")
    a(f"v_cvt_pk_bf16_f32 v{t}, v{Q}, v{Q}")
    a(f"v_and_b32 v{Q}, s16, v{t}")
    a(f"v_sqrt_f32 v{Q}, v{Q}")
    a("s_nop 0")
    a(f"v_cvt_pk_bf16_f32 v{t}, v{Q}, v{Q}")
    a(f"v_and_b32 v{S+3}, s16, v{t}")
    a(f"v_rcp_f32 v{t}, v{S+3}")
    a("s_nop 0")
    a(f"v_fma_f32 v{Q}, -v{S+3}, v{t}, 1.0")
    a(f"v_fma_f32 v{Q}, v{Q}, v{t}, v{t}")
    a(f"v_mul_f32 v{S+2}, 0xbfb8aa3b, v{Q}")


def gen_k1(a):
    a.raw(".p2align 8")
    a.label("g1_kernel")
    a.kidx = 1
    a("""
    s_cmp_ge_u32 s2, 256
    s_cbranch_scc1 L_g1_done
    """)
    a.stamp(0)
    if CODEPF:
        a("""
        s_getpc_b64 s[90:91]
        L_pc_here:
        s_sub_u32 s90, s90, L_pc_here - g1_kernel
        s_subb_u32 s91, s91, 0
        v_lshlrev_b32 v1, 7, v0
        v_min_u32 v1, L_code_end - g1_kernel - 4, v1
        global_load_dword v254, v1, s[90:91]
        """)
    a("""
    s_load_dwordx4 s[4:7], s[0:1], 0
    s_load_dwordx2 s[52:53], s[0:1], 16
    s_load_dwordx4 s[8:11], s[0:1], 32
    s_load_dwordx2 s[54:55], s[0:1], 48
    s_load_dwordx2 s[56:57], s[0:1], 72
    v_lshrrev_b32 v1, 6, v0
    v_and_b32 v0, 63, v0
    s_nop 0
    v_readfirstlane_b32 s32, v1
    s_and_b32 s34, s2, 7
    s_lshr_b32 s3, s2, 3
    s_and_b32 s33, s3, 15
    s_lshr_b32 s3, s3, 4
    s_lshr_b32 s36, s32, 2
    s_and_b32 s37, s32, 3
    v_lshrrev_b32 v2, 4, v0
    v_bfe_u32 v3, v0, 2, 2
    v_and_b32 v4, 3, v0
    v_lshlrev_b32 v5, 4, v0
    v_mov_b32 v228, 0x3f803f80
    v_mov_b32 v229, 0x3f803f80
    v_mov_b32 v230, 0x3f803f80
    v_mov_b32 v231, 0x3f803f80
    s_mov_b32 s69, 0xffff0000
    v_and_b32 v6, 15, v0
    s_waitcnt lgkmcnt(0)
    """)
    srd(a, 12, 56, WS_BYTES)
    srd(a, 28, 4, 2048 * 1280)
    a("""
    v_lshrrev_b32 v20, 3, v0
    v_and_b32 v21, 7, v0
    v_xor_b32 v21, v21, v20
    v_mul_u32_u24 v7, 1280, v20
    v_lshl_add_u32 v7, v21, 4, v7
    """)
    a("""
    v_and_b32 v20, 7, v6
    v_xor_b32 v21, v2, v20
    v_lshlrev_b32 v8, 7, v20
    v_lshl_add_u32 v8, v21, 4, v8
    v_lshrrev_b32 v20, 3, v6
    v_lshl_add_u32 v8, v20, 10, v8
    """)
    a("""
    v_and_b32 v20, 1, v2
    v_lshl_add_u32 v20, v20, 2, v3
    v_lshrrev_b32 v21, 1, v2
    v_lshl_add_u32 v9, v21, 4, v20
    """)

    def b2_issue():
        a("""
        s_mul_i32 s58, s2, 3
        s_add_u32 s58, s58, s32
        s_cmp_lt_u32 s32, 3
        s_cselect_b32 s58, s58, 4095
        s_cmp_lt_u32 s58, 680
        s_cbranch_scc0 L_b2_skip1_%s
        """ % a.tag)
        sdiv(a, 59, 58, 10, 680)
        a("""
        s_mul_i32 s60, s59, 10
        s_sub_u32 s60, s58, s60
        s_cmp_lt_u32 s59, 20
        s_cselect_b32 s64, s52, s54
        s_cselect_b32 s65, s53, s55
        s_mov_b32 s66, 1966080
        s_cselect_b32 s66, 819200, s66
        s_mov_b32 s67, 0x00020000
        s_sub_u32 s61, s59, 20
        s_cmp_lt_u32 s59, 20
        s_cselect_b32 s61, s59, s61
        s_mul_i32 s61, s61, 40960
        s_lshl_b32 s62, s60, 7
        s_add_u32 s61, s61, s62
        s_lshl_b32 s62, s32, 12
        s_add_u32 s62, s62, %d
        v_lshrrev_b32 v20, 3, v0
        v_and_b32 v21, 7, v0
        """ % SCR_LDS)
        for i in range(4):
            a(f"v_add_u32 v22, {8*i}, v20")
            unswap23(a, 23, 22, 246, 247)
            a("v_mul_u32_u24 v23, 1280, v23")
            a("v_lshl_add_u32 v23, v21, 4, v23")
            a(f"s_add_u32 m0, s62, {1024*i}")
            a("s_nop 0")
            a.vmem("buffer_load_dwordx4 v23, s[64:67], s61 offen lds", "b2", optional=True)
        a.label("L_b2_skip1_%s" % a.tag)

    def b2_finish():
        a("s_cmp_lt_u32 s58, 680")
        a("s_cbranch_scc0 L_b2_skip2_%s" % a.tag)
        a("v_lshlrev_b32 v1, 7, v9")
        a("v_lshl_add_u32 v1, v4, 3, v1")
        a("v_add_u32 v1, s62, v1")
        regs = [244, 248, 252, 20]
        for jj in range(4):
            a(f"ds_read_b64_tr_b16 {vr(regs[jj],2)}, v1 offset:{32*jj}")
            a(f"ds_read_b64_tr_b16 {vr(regs[jj]+2,2)}, v1 offset:{32*jj+1024}")
        a("s_waitcnt lgkmcnt(0)")
        for jj in range(4):
            a("s_lshl_b32 s61, s60, 2")
            a(f"s_add_u32 s61, s61, {jj}")
            sdiv(a, 62, 61, 5, 40)
            a("s_mul_i32 s63, s62, 5")
            a("s_sub_u32 s63, s61, s63")
            a("s_mul_i32 s62, s62, 68")
            a("s_add_u32 s62, s62, s59")
            a("s_mul_i32 s62, s62, 5")
            a("s_add_u32 s62, s62, s63")
            a("s_lshl_b32 s62, s62, 10")
            a(f"s_add_u32 s62, s62, {B2_OFF}")
            a.vmem(f"buffer_store_dwordx4 {vr(regs[jj],4)}, v5, s[12:15], s62 offen{B2F}", "b2s", optional=True)
        a("s_nop 4")
        a.label("L_b2_skip2_%s" % a.tag)

    a("s_cmp_eq_u32 s3, 0")
    a("s_cbranch_scc1 L_g1_attn")

    a.tag = "g"
    a.vm = []
    AR_G = 16384
    BR_G = 49152
    BS_G = 24576
    srd(a, 16, 8, 640 * 3072)
    srd(a, 20, 10, 640 * 3072)
    a("""
    s_cmp_lt_u32 s32, 4
    s_cselect_b32 s24, s8, s10
    s_cselect_b32 s25, s9, s11
    s_mov_b32 s26, 1966080
    s_mov_b32 s27, 0x00020000
    s_mov_b32 s43, 12288
    s_cselect_b32 s43, 0, s43
    """)
    a(f"""
    s_lshl_b32 s40, s32, 10
    s_add_u32 s41, s40, {BR_G}
    s_add_u32 s42, s40, {BR_G+12288}
    s_lshl_b32 s44, s37, 10
    s_add_u32 s43, s43, s44
    s_add_u32 s43, s43, {BR_G+8192}
    """)
    a("""
    s_lshl_b32 s44, s33, 4
    s_add_u32 s44, s44, s32
    s_mul_i32 s44, s44, 10240
    v_add_u32 v10, s44, v7
    v_add_u32 v11, 81920, v10
    s_mul_i32 s45, s34, 384
    """)

    def gate_off(dst, sInstr):
        a(f"s_lshl_b32 s44, s{sInstr}, 6")
        a(f"v_add_u32 v20, s44, v0")
        divsmall(a, 21, 20, 48)
        a("v_mul_u32_u24 v22, 48, v21")
        a("v_sub_u32 v22, v20, v22")
        a("v_and_b32 v23, 7, v21")
        a("v_lshlrev_b32 v23, 1, v23")
        a("v_xor_b32 v22, v22, v23")
        a("v_cmp_le_u32 vcc, 24, v22")
        a("s_nop 1")
        a("v_cndmask_b32 v23, 0, 1, vcc")
        a("v_mul_u32_u24 v24, 24, v23")
        a("v_sub_u32 v22, v22, v24")
        a("v_lshl_add_u32 v21, v23, 4, v21")
        unswap23(a, 24, 21, 25, 26)
        a("v_mul_u32_u24 v24, 3072, v24")
        a("v_lshl_add_u32 v24, v22, 4, v24")
        a(f"v_add_u32 v{dst}, s45, v24")
    gate_off(12, 32)
    a("s_add_u32 s46, s37, 8")
    gate_off(13, 46)
    a("s_mov_b32 s47, 0")
    a("s_mov_b32 s48, 0")

    def dma_g(st):
        sb = (st & 3) * BS_G
        if st % 2 == 0:
            ab = ((st // 2) % 3) * AR_G
            a(f"s_add_u32 m0, s40, {ab}")
            a("s_nop 0")
            a.vmem("buffer_load_dwordx4 v10, s[28:31], s47 offen lds", ("st", st))
            a(f"s_add_u32 m0, s40, {ab+8192}")
            a("s_nop 0")
            a.vmem("buffer_load_dwordx4 v11, s[28:31], s47 offen lds", ("st", st))
            a("s_add_u32 s47, s47, 128")
        a(f"s_add_u32 m0, s41, {sb}")
        a("s_nop 0")
        a.vmem("buffer_load_dwordx4 v12, s[16:19], s48 offen lds", ("st", st))
        a(f"s_add_u32 m0, s42, {sb}")
        a("s_nop 0")
        a.vmem("buffer_load_dwordx4 v12, s[20:23], s48 offen lds", ("st", st))
        a(f"s_add_u32 m0, s43, {sb}")
        a("s_nop 0")
        a.vmem("buffer_load_dwordx4 v13, s[24:27], s48 offen lds", ("st", st))
        a("s_add_u32 s48, s48, 98304")

    a.stamp(1)
    for st in range(4):
        dma_g(st)
    def tlb_g(k0=4, nk=16, tg=0):
        a(f"""
        s_mul_i32 s44, s33, {2*nk}
        s_add_u32 s44, s44, {32*k0}
        v_min_u32 v20, {2*nk-1}, v0
        v_add_u32 v20, s44, v20
        v_mul_u32_u24 v20, 3072, v20
        v_add_u32 v20, s45, v20
        """)
        offs = {1: [0], 2: [0, 256], 3: [0, 128, 256]}[TLBPF]
        for li, off in enumerate(offs):
            for mtx, sr in enumerate((16, 20)):
                wv = 2 * li + mtx
                a(f"s_cmp_eq_u32 s32, {wv}")
                a(f"s_cbranch_scc0 L_tlb_g{wv}_{tg}")
                a.vmem(f"buffer_load_dword v244, v20, s[{sr}:{sr+3}], 0 offen offset:{off}", "pf", optional=True)
                a.label(f"L_tlb_g{wv}_{tg}")
    if TLBPF and TLBAT < 0:
        tlb_g()

    def pf_w_g():
        a("""
        s_and_b32 s44, s32, 1
        s_cmp_eq_u32 s44, 0
        s_cselect_b32 s64, s8, s10
        s_cselect_b32 s65, s9, s11
        s_mov_b32 s66, 1966080
        s_mov_b32 s67, 0x00020000
        s_add_u32 s44, s33, 4
        s_lshl_b32 s44, s44, 5
        s_bfe_u32 s46, s32, 0x10001
        s_lshl_b32 s46, s46, 4
        s_add_u32 s44, s44, s46
        v_lshrrev_b32 v20, 2, v0
        v_add_u32 v20, s44, v20
        v_mul_u32_u24 v20, 3072, v20
        v_min_u32 v21, 2, v4
        v_lshl_add_u32 v20, v21, 7, v20
        v_add_u32 v20, s45, v20
        """)
        a.vmem("buffer_load_dword v244, v20, s[64:67], 0 offen", "pf")

    def pf_x_g():
        a("""
        s_lshl_b32 s44, s33, 4
        s_add_u32 s44, s44, s32
        s_lshl_b32 s44, s44, 3
        v_lshrrev_b32 v20, 3, v0
        v_add_u32 v20, s44, v20
        v_mul_u32_u24 v20, 1280, v20
        v_and_b32 v21, 7, v0
        v_lshl_add_u32 v20, v21, 7, v20
        """)
        a.vmem("buffer_load_dword v245, v20, s[28:31], 0 offen offset:256", "pf")

    XA = 208
    for mi in range(4):
        a(f"s_add_u32 s44, s37, {mi}")
        a("s_and_b32 s44, s44, 3")
        a("s_lshl_b32 s46, s36, 2")
        a("s_add_u32 s44, s44, s46")
        a("s_lshl_b32 s44, s44, 11")
        a(f"v_add_u32 v{XA+mi}, s44, v8")
        a(f"v_xor_b32 v{XA+4+mi}, 64, v{XA+mi}")
    WA = 216
    a(f"""
    v_and_b32 v20, 7, v9
    v_lshrrev_b32 v21, 1, v2
    v_mul_u32_u24 v21, 12, v21
    s_mul_i32 s44, s37, 3
    v_add_u32 v21, s44, v21
    v_mul_u32_u24 v22, 768, v20
    v_lshl_add_u32 v22, v4, 3, v22
    v_add_u32 v22, {BR_G}, v22
    s_mul_i32 s44, s36, 12288
    s_sub_u32 s46, 12288, s44
    """)
    for i in range(3):
        a(f"v_add_u32 v23, {i}, v21")
        a("v_xor_b32 v23, v23, v20")
        a(f"v_lshl_add_u32 v23, v23, 5, v22")
        a(f"v_add_u32 v{WA+i}, s44, v23")
        a(f"v_add_u32 v{WA+3+i}, s46, v23")
        a(f"v_add_u32 v{WA+6+i}, {2*BS_G}, v{WA+i}")
        a(f"v_add_u32 v{WA+9+i}, {2*BS_G}, v{WA+3+i}")

    def xaddr_g(mi, ks):
        return XA + 4 * (ks & 1) + mi, ((ks // 2) % 3) * AR_G

    def waddr_g(j, ks):
        slot = ks & 3
        v = WA + (6 if slot >= 2 else 0) + j
        return v, (slot & 1) * BS_G, 6144

    ACC = 32
    FR = 128
    CS, RS = 232, 24
    a("""
    s_lshl_b32 s44, s33, 1
    v_and_b32 v14, 1, v0
    v_add_u32 v14, s44, v14
    v_mul_u32_u24 v14, 3072, v14
    v_bfe_u32 v20, v0, 1, 2
    v_min_u32 v20, 2, v20
    v_lshl_add_u32 v14, v20, 7, v14
    v_add_u32 v14, s45, v14
    s_lshl_b32 s44, s33, 7
    v_add_u32 v15, s44, v0
    v_mul_u32_u24 v15, 1280, v15
    """)

    def mk_roll(ks, wsrds, wstride, extra=None):
        def f():
            if extra:
                extra()
            if PFD and ks + PFD < NK:
                lab = f"L_pf_{a.tag}_{ks}"
                a(f"s_cmp_eq_u32 s32, {ks & 7}")
                a(f"s_cbranch_scc0 {lab}")
                a(f"s_mov_b32 s44, {(ks+PFD)*wstride}")
                for sr in wsrds:
                    a.vmem(f"buffer_load_dword v244, v14, s[{sr}:{sr+3}], s44 offen", "pf", optional=True)
                a.label(lab)
            if PFD and ks % 2 == 0 and (ks + PFD) // 2 + 1 < 10:
                lab = f"L_pfx_{a.tag}_{ks}"
                a(f"s_cmp_eq_u32 s32, {(ks + 1) & 7}")
                a(f"s_cbranch_scc0 {lab}")
                a(f"s_mov_b32 s44, {((ks+PFD)//2+1)*128}")
                a.vmem(f"buffer_load_dword v245, v15, s[28:31], s44 offen", "pf", optional=True)
                a.label(lab)
        return f
    hx = {B2AT: b2_issue, B2AT + 6: b2_finish}
    for bi, (at, k0, nk) in enumerate(PFSCHED):
        hx[at] = (lambda k0=k0, nk=nk, bi=bi: tlb_g(k0, nk, bi))
    hk = {ks: mk_roll(ks, (16, 20), 98304, hx.get(ks)) for ks in range(NK - 1)}
    k1_mainloop(a, 4, 6, dma_g, xaddr_g, waddr_g, ACC, FR, 3, 1, CS, RS, hooks=hk)
    a.stamp(7)
    a("s_mov_b32 s16, 0xffff0000")
    a("s_mov_b32 s17, 0x3acccccd")
    a("v_add_f32 v16, v24, v25")
    a("v_add_f32 v17, v26, v27")
    for v in (16, 17):
        red_g(a, v, 20)
    rowstat_math(a, 16, 20)
    a(f"""
    s_lshl_b32 s44, s36, 2
    s_add_u32 s44, s44, s37
    s_lshl_b32 s44, s44, 8
    s_add_u32 s44, s44, {STAT_LDS}
    v_lshl_add_u32 v20, v6, 4, s44
    ds_write_b128 v20, v[16:19]
    s_mul_i32 s44, s36, 12
    s_mul_i32 s46, s37, 3
    s_add_u32 s44, s44, s46
    s_lshl_b32 s44, s44, 6
    s_add_u32 s44, s44, {CS_LDS}
    v_lshl_add_u32 v20, v2, 4, s44
    ds_write_b128 v20, v[232:235]
    ds_write_b128 v20, v[236:239] offset:64
    ds_write_b128 v20, v[240:243] offset:128
    s_waitcnt lgkmcnt(0)
    s_barrier
    """)
    for mi in range(4):
        a(f"s_add_u32 s44, s37, {mi}")
        a("s_and_b32 s44, s44, 3")
        a("s_lshl_b32 s46, s36, 2")
        a("s_add_u32 s44, s44, s46")
        a("s_lshl_b32 s44, s44, 8")
        a(f"s_add_u32 s44, s44, {STAT_LDS}")
        a("v_lshl_add_u32 v20, v6, 4, s44")
        a(f"ds_read_b128 {vr(128+4*mi,4)}, v20")
    a(f"""
    s_mul_i32 s44, s37, 192
    s_add_u32 s44, s44, {CS_LDS}
    v_lshl_add_u32 v20, v2, 4, s44
    """)
    for i in range(3):
        a(f"ds_read_b128 {vr(144+4*i,4)}, v20 offset:{64*i}")
        a(f"ds_read_b128 {vr(156+4*i,4)}, v20 offset:{768+64*i}")
    a(f"""
    v_lshrrev_b32 v21, 1, v2
    v_lshl_add_u32 v20, v21, 4, v6
    v_lshlrev_b32 v20, 4, v20
    v_and_b32 v21, 1, v2
    v_lshl_add_u32 v20, v21, 3, v20
    s_lshl_b32 s44, s33, 3
    s_lshl_b32 s45, s36, 2
    s_add_u32 s44, s44, s45
    s_mul_i32 s44, s44, {A2_MT}
    s_add_u32 s44, s44, {A2_OFF + 20*1024}
    v_add_u32 v20, s44, v20
    s_mul_i32 s45, s34, 12
    s_mul_i32 s46, s37, 3
    s_add_u32 s45, s45, s46
    s_lshl_b32 s45, s45, 9
    s_add_u32 s46, s45, 512
    s_add_u32 s47, s45, 1024
    """)
    for mi in range(4):
        a(f"s_add_u32 s44, s37, {mi}")
        a("s_and_b32 s44, s44, 3")
        a(f"s_mul_i32 s44, s44, {A2_MT}")
        a(f"v_add_u32 v{24+mi}, s44, v20")
    a("s_waitcnt lgkmcnt(0)")

    def g_epi(swapped):
        for mi in range(4):
            P = 128 + 4 * mi
            for i in range(3):
                g = ACC + 4 * (mi * 6 + (3 + i if swapped else i))
                u = ACC + 4 * (mi * 6 + (i if swapped else 3 + i))
                for h in (0, 2):
                    a(f"v_pk_fma_f32 {vr(g+h,2)}, {vr(144+4*i+h,2)}, {vr(P,2)}, {vr(g+h,2)} op_sel_hi:[1,0,1] neg_lo:[0,1,0] neg_hi:[0,1,0]")
                for h in (0, 2):
                    a(f"v_pk_mul_f32 {vr(g+h,2)}, {vr(g+h,2)}, {vr(P+2,2)} op_sel_hi:[1,0]")
                for e in range(4):
                    a(f"v_exp_f32 v{g+e}, v{g+e}")
                for h in (0, 2):
                    a(f"v_pk_fma_f32 {vr(u+h,2)}, {vr(156+4*i+h,2)}, {vr(P,2)}, {vr(u+h,2)} op_sel_hi:[1,0,1] neg_lo:[0,1,0] neg_hi:[0,1,0]")
                for h in (0, 2):
                    a(f"v_pk_fma_f32 {vr(g+h,2)}, {vr(g+h,2)}, {vr(P+2,2)}, {vr(P+2,2)} op_sel:[0,1,1] op_sel_hi:[1,1,1]")
                for e in range(4):
                    a(f"v_rcp_f32 v{g+e}, v{g+e}")
                a("s_nop 0")
                for h in (0, 2):
                    a(f"v_pk_mul_f32 {vr(g+h,2)}, {vr(g+h,2)}, {vr(u+h,2)}")
                a(f"v_cvt_pk_bf16_f32 v{u}, v{g}, v{g+1}")
                a(f"v_cvt_pk_bf16_f32 v{u+1}, v{g+2}, v{g+3}")
                a(f"buffer_store_dwordx2 {vr(u,2)}, v{24+mi}, s[12:15], s{45+i} offen{ST_FLAGS}")
    a("s_cmp_eq_u32 s36, 0")
    a("s_cbranch_scc0 L_g1_g_sw")
    g_epi(False)
    a("s_branch L_g1_g_end")
    a.label("L_g1_g_sw")
    g_epi(True)
    a.label("L_g1_g_end")
    a.stamp(8, True)
    a.stamp_flush(12, 1, 32)
    a("s_endpgm")

    a.label("L_g1_attn")
    a.tag = "a"
    a.vm = []
    AR_A = 18432
    BR_A = 55296
    BS_A = 15360
    srd(a, 16, 6, 640 * 3840)
    a(f"""
    s_lshl_b32 s42, s32, 10
    s_add_u32 s40, s42, {BR_A}
    s_add_u32 s41, s42, {BR_A+8192}
    s_mul_i32 s45, s34, 160
    """)

    def qkv_off(dst, sInstr):
        a(f"s_lshl_b32 s44, s{sInstr}, 6")
        a(f"v_add_u32 v20, s44, v0")
        divsmall(a, 21, 20, 30)
        a("v_mul_u32_u24 v22, 30, v21")
        a("v_sub_u32 v22, v20, v22")
        divsmall(a, 23, 22, 10)
        a("v_mul_u32_u24 v24, 10, v23")
        a("v_sub_u32 v22, v22, v24")
        a("v_and_b32 v21, 31, v21")
        unswap23(a, 24, 21, 25, 26)
        a("v_mul_u32_u24 v24, 3840, v24")
        a("v_mul_u32_u24 v23, 1280, v23")
        a("v_add_u32 v24, v24, v23")
        a("v_lshl_add_u32 v24, v22, 4, v24")
        a(f"v_add_u32 v{dst}, s45, v24")

    def ajob_off(dst, sJob):
        a("s_lshl_b32 s44, s33, 4")
        a(f"s_add_u32 s44, s44, s{sJob}")
        a("s_max_u32 s44, s44, 2")
        a("s_sub_u32 s44, s44, 2")
        a("s_mul_i32 s44, s44, 10240")
        a(f"v_add_u32 v{dst}, s44, v7")
    qkv_off(12, 32)
    a("s_add_u32 s46, s32, 8")
    a("s_min_u32 s46, s46, 14")
    qkv_off(13, 46)
    ajob_off(10, 32)
    a("s_add_u32 s46, s32, 8")
    ajob_off(11, 46)
    a("s_and_b32 s46, s32, 1")
    a("s_add_u32 s46, s46, 16")
    ajob_off(19, 46)
    a("""
    s_mov_b32 s47, 0
    s_mov_b32 s48, 0
    """)

    def dma_a(st):
        sb = (st & 3) * BS_A
        a(f"s_add_u32 m0, s40, {sb}")
        a("s_nop 0")
        a.vmem("buffer_load_dwordx4 v12, s[16:19], s48 offen lds", ("st", st))
        a("s_cmp_eq_u32 s32, 7")
        lab = f"L_a_s1_{a.tag}_{st}"
        a(f"s_cbranch_scc1 {lab}")
        a(f"s_add_u32 m0, s41, {sb}")
        a("s_nop 0")
        a.vmem("buffer_load_dwordx4 v13, s[16:19], s48 offen lds", ("st", st), optional=True)
        a.label(lab)
        a("s_add_u32 s48, s48, 122880")
        if st % 2 == 0:
            ab = ((st // 2) % 3) * AR_A
            lab = f"L_a_s4_{a.tag}_{st}"
            a("s_cmp_ge_u32 s32, 6")
            a(f"s_cbranch_scc1 {lab}_o")
            a.label(lab)
            a.vm.append((("st", st), True))
            a.ool.append(f"{lab}_o:\ns_add_u32 m0, s42, {ab + 10*1024}\ns_nop 0\nbuffer_load_dwordx4 v19, s[28:31], s47 offen lds\ns_branch {lab}")
            a(f"s_add_u32 m0, s42, {ab}")
            a("s_nop 0")
            a.vmem("buffer_load_dwordx4 v10, s[28:31], s47 offen lds", ("st", st))
            a(f"s_add_u32 m0, s42, {ab+8192}")
            a("s_nop 0")
            a.vmem("buffer_load_dwordx4 v11, s[28:31], s47 offen lds", ("st", st))
            a("s_add_u32 s47, s47, 128")

    a.stamp(1)
    for st in range(4):
        dma_a(st)
    def tlb_a(k0=4, nk=16, tg=0):
        a(f"""
        s_mul_i32 s44, s33, {2*nk}
        s_add_u32 s44, s44, {32*k0}
        v_min_u32 v20, {2*nk-1}, v0
        v_add_u32 v20, s44, v20
        v_mul_u32_u24 v20, 3840, v20
        v_add_u32 v20, s45, v20
        s_mul_i32 s44, s32, 1280
        s_cmp_lt_u32 s32, 3
        s_cbranch_scc0 L_tlb_a0_{a.tag}_{tg}
        """)
        a.vmem("buffer_load_dword v244, v20, s[16:19], s44 offen", "pf", optional=True)
        a.label(f"L_tlb_a0_{a.tag}_{tg}")
        if TLBPF >= 3:
            a(f"""
            s_sub_u32 s44, s32, 3
            s_cmp_lt_u32 s44, 3
            s_cbranch_scc0 L_tlb_a1_{a.tag}_{tg}
            s_mul_i32 s44, s44, 1280
            """)
            a.vmem("buffer_load_dword v244, v20, s[16:19], s44 offen offset:128", "pf", optional=True)
            a.label(f"L_tlb_a1_{a.tag}_{tg}")
    if TLBPF and TLBAT < 0:
        tlb_a()

    def pf_w_a():
        a("""
        s_add_u32 s44, s33, 4
        s_lshl_b32 s44, s44, 5
        s_lshl_b32 s46, s37, 3
        s_add_u32 s44, s44, s46
        v_lshrrev_b32 v20, 3, v0
        v_add_u32 v20, s44, v20
        v_mul_u32_u24 v20, 3840, v20
        v_and_b32 v21, 7, v0
        v_min_u32 v21, 5, v21
        v_lshrrev_b32 v22, 1, v21
        v_mul_u32_u24 v22, 1280, v22
        v_and_b32 v21, 1, v21
        v_lshl_add_u32 v22, v21, 7, v22
        v_add3_u32 v20, v20, v22, s45
        """)
        a.vmem("buffer_load_dword v244, v20, s[16:19], 0 offen", "pf")

    def pf_x_a():
        a("""
        s_lshl_b32 s44, s33, 4
        s_add_u32 s44, s44, s32
        s_add_u32 s44, s44, 8
        s_lshl_b32 s44, s44, 3
        v_lshrrev_b32 v20, 3, v0
        v_add_u32 v20, s44, v20
        v_mul_u32_u24 v20, 1280, v20
        v_and_b32 v21, 7, v0
        v_lshl_add_u32 v20, v21, 7, v20
        """)
        a.vmem("buffer_load_dword v245, v20, s[28:31], 0 offen offset:256", "pf")

    def frag_of(mi, dst):
        a(f"s_add_u32 s44, s37, {mi}")
        a("s_sub_u32 s46, s44, 5")
        a("s_cmp_ge_u32 s44, 5")
        a("s_cselect_b32 s46, s46, s44")
        if mi < 4:
            a("s_and_b32 s44, s44, 3")
            a("s_add_u32 s44, s44, 5")
        else:
            a("s_mov_b32 s44, 4")
        a("s_cmp_eq_u32 s36, 0")
        a(f"s_cselect_b32 s{dst}, s46, s44")

    for mi in range(5):
        frag_of(mi, 44)
        a(f"s_mul_i32 s{70+mi}, s44, {16*488}")
        a("s_lshl_b32 s46, s44, 8")
        a(f"s_add_u32 s{75+mi}, s46, {STAT_LDS}")
        a("s_lshl_b32 s44, s44, 11")
        a(f"v_add_u32 v{XA+mi}, s44, v8")
        a(f"v_xor_b32 v{XA+5+mi}, 64, v{XA+mi}")
    WAa = 220
    a(f"""
    v_mul_u32_u24 v20, 480, v9
    v_lshl_add_u32 v20, v4, 3, v20
    v_add_u32 v20, {BR_A}, v20
    """)
    for j in range(4):
        a("s_lshl_b32 s44, s36, 1")
        a(f"s_add_u32 s44, s44, {j}")
        a("s_and_b32 s44, s44, 3")
        a("s_lshl_b32 s46, s37, 2")
        a("s_add_u32 s44, s44, s46")
        if j in (1, 3):
            a(f"s_mov_b32 s{50 if j == 1 else 51}, s44")
        a("s_lshl_b32 s44, s44, 5")
        a(f"v_add_u32 v{WAa+j}, s44, v20")

    def xaddr_a(mi, ks):
        return XA + 5 * (ks & 1) + mi, ((ks // 2) % 3) * AR_A

    def waddr_a(j, ks):
        return WAa + j, (ks & 3) * BS_A, 3840

    CSa, RSa = 232, 24
    T32 = 32 * 488
    a("""
    v_mul_u32_u24 v21, 488, v6
    v_lshl_add_u32 v21, v2, 3, v21
    """)
    for j in range(4):
        a("s_lshl_b32 s44, s36, 1")
        a(f"s_add_u32 s44, s44, {j}")
        a("s_and_b32 s44, s44, 3")
        a("s_lshl_b32 s46, s37, 2")
        a("s_add_u32 s44, s44, s46")
        a("s_lshl_b32 s46, s44, 5")
        a(f"v_add_u32 v{200+j}, s46, v21")
        a("s_lshl_b32 s44, s44, 6")
        a(f"s_add_u32 s44, s44, {CS_LDS}")
        a(f"v_lshl_add_u32 v{224+j}, v2, 4, s44")
    a(f"""
    v_lshl_add_u32 v20, v6, 1, s36
    v_add_u32 v21, 16, v20
    v_subrev_u32 v22, 16, v20
    v_max_i32 v22, 0, v22
    s_mul_i32 s44, s37, 40
    v_mul_u32_u24 v21, 488, v21
    v_mul_u32_u24 v22, 488, v22
    v_lshl_add_u32 v23, v2, 4, s44
    v_add_u32 v204, v21, v23
    v_add_u32 v205, v22, v23
    v_lshl_add_u32 v20, v2, 2, v3
    v_lshl_add_u32 v20, v20, 1, s36
    v_add_u32 v21, 16, v20
    v_subrev_u32 v22, 16, v20
    v_max_i32 v22, 0, v22
    v_mul_u32_u24 v21, 488, v21
    v_mul_u32_u24 v22, 488, v22
    v_lshl_add_u32 v23, v4, 3, s44
    v_add_u32 v206, v21, v23
    v_add_u32 v207, v22, v23
    s_mul_i32 s44, s34, 80
    s_mul_i32 s46, s37, 20
    s_add_u32 s44, s44, s46
    v_lshl_add_u32 v23, v2, 2, s44
    v_lshrrev_b32 v21, 3, v23
    v_lshlrev_b32 v21, 8, v21
    v_and_b32 v23, 4, v23
    v_lshl_add_u32 v21, v23, 1, v21
    v_lshrrev_b32 v23, 3, v6
    s_lshl_b32 s46, s33, 3
    v_add_u32 v23, s46, v23
    v_mul_u32_u24 v23, {A2_MT}, v23
    v_and_b32 v22, 7, v6
    v_lshl_add_u32 v22, v22, 1, s36
    v_lshl_add_u32 v23, v22, 4, v23
    v_add_u32 v218, v23, v21
    s_add_u32 s44, s44, 16
    s_lshr_b32 s46, s44, 3
    s_lshl_b32 s46, s46, 8
    s_and_b32 s44, s44, 4
    s_lshl_b32 s44, s44, 1
    s_add_u32 s46, s46, s44
    v_add_u32 v219, s46, v23
    v_lshlrev_b32 v20, 2, v2
    v_add_u32 v21, 9, v6
    """)
    for r in range(4):
        a(f"v_add_u32 v22, {r}, v20")
        a(f"v_cmp_ge_u32 s[{80+2*r}:{81+2*r}], v22, v21")
        a(f"v_cmp_le_u32 s[{88+2*r}:{89+2*r}], v22, v6")
        a(f"v_add_u32 v22, 7, v22")
        a(f"v_cmp_ge_u32 s[38:39], v22, v6")
        a("s_nop 1")
        a(f"s_and_b64 s[{88+2*r}:{89+2*r}], s[{88+2*r}:{89+2*r}], s[38:39]")
    a("v_cmp_gt_u32 s[38:39], 3, v2")
    a("v_cmp_gt_u32 s[96:97], 2, v2")
    hx = {B2AT: b2_issue, B2AT + 6: b2_finish}
    for bi, (at, k0, nk) in enumerate(PFSCHED):
        hx[at] = (lambda k0=k0, nk=nk, bi=bi: tlb_a(k0, nk, bi))
    hk = {ks: mk_roll(ks, (16,), 122880, hx.get(ks)) for ks in range(NK - 1)}
    vm0 = list(a.vm)
    a("s_cmp_eq_u32 s36, 0")
    a("s_cbranch_scc0 L_a_loop1")
    a.tag = "a0"
    k1_mainloop(a, 5, 4, dma_a, xaddr_a, waddr_a, ACC, FR, 2, 2, CSa, RSa, hooks=hk, mstat=112, NMM=5, mslots=(0,))
    a("s_branch L_a_loopend")
    a.label("L_a_loop1")
    a.tag = "a1"
    a.vm = vm0
    k1_mainloop(a, 5, 4, dma_a, xaddr_a, waddr_a, ACC, FR, 2, 2, CSa, RSa, hooks=hk, mstat=112, NMM=4, mslots=(0, 4))
    a.label("L_a_loopend")
    a.stamp(7)
    a("s_mov_b32 s16, 0xffff0000")
    a("s_mov_b32 s17, 0x3acccccd")
    a("""
    s_nop 7
    v_lshrrev_b32 v21, 2, v6
    v_cmp_eq_u32 s[40:41], v21, v2
    v_and_b32 v21, 3, v6
    v_cmp_eq_u32 s[42:43], 1, v21
    v_cmp_eq_u32 s[44:45], 2, v21
    v_cmp_eq_u32 s[46:47], 3, v21
    s_nop 1
    """)
    for mi, S in ((0, 12), (1, 16)):
        R0, Q0 = 112 + 8 * mi, 116 + 8 * mi
        a(f"v_mov_b32 v{S}, v{R0}")
        a(f"v_cndmask_b32 v{S+1}, v{Q0}, v{Q0+1}, s[42:43]")
        a(f"v_cndmask_b32 v{S+1}, v{S+1}, v{Q0+2}, s[44:45]")
        a(f"v_cndmask_b32 v{S+1}, v{S+1}, v{Q0+3}, s[46:47]")
        a(f"v_cndmask_b32 v{S+1}, 0, v{S+1}, s[40:41]")
        red_g(a, S + 1, 20)
    rowstat_math(a, 12, 20)
    rowstat_math(a, 16, 20)
    a(f"""
    v_lshl_add_u32 v20, v6, 4, s75
    ds_write_b128 v20, v[12:15]
    s_cmp_eq_u32 s36, 0
    s_cbranch_scc1 L_a_nos1
    v_lshl_add_u32 v20, v6, 4, s79
    ds_write_b128 v20, v[16:19]
    L_a_nos1:
    s_lshl_b32 s44, s37, 2
    s_lshl_b32 s46, s36, 1
    s_add_u32 s44, s44, s46
    s_lshl_b32 s44, s44, 6
    s_add_u32 s44, s44, {CS_LDS}
    v_lshl_add_u32 v20, v2, 4, s44
    ds_write_b128 v20, v[232:235]
    ds_write_b128 v20, v[236:239] offset:64
    s_waitcnt lgkmcnt(0)
    s_barrier
    """)
    a.stamp(9)
    a("v_lshlrev_b32 v21, 4, v6")
    for mi in range(5):
        a(f"v_add_u32 v20, s{75+mi}, v21")
        a(f"ds_read_b64 {vr(128+2*mi,2)}, v20")
    for j in range(4):
        a(f"ds_read_b128 {vr(140+4*j,4)}, v{224+j}")
    a("s_waitcnt lgkmcnt(0)")
    for j in range(4):
        if j in (1, 3):
            a(f"s_cmp_eq_u32 s{50 if j == 1 else 51}, 15")
            a(f"s_cbranch_scc1 L_g1_a_skip{j}")
        for mi in range(5):
            P = 128 + 2 * mi
            acc = ACC + 4 * (mi * 4 + j)
            if mi == 4:
                a("s_cmp_eq_u32 s36, 0")
                a(f"s_cbranch_scc0 L_g1_a_skip{j}")
            for h in (0, 2):
                a(f"v_pk_fma_f32 {vr(acc+h,2)}, {vr(140+4*j+h,2)}, {vr(P,2)}, {vr(acc+h,2)} op_sel_hi:[1,0,1] neg_lo:[0,1,0] neg_hi:[0,1,0]")
            for h in (0, 2):
                a(f"v_pk_mul_f32 {vr(acc+h,2)}, {vr(acc+h,2)}, {vr(P,2)} op_sel:[0,1] op_sel_hi:[1,1]")
            a(f"v_cvt_pk_bf16_f32 v{acc}, v{acc}, v{acc+1}")
            a(f"v_cvt_pk_bf16_f32 v{acc+1}, v{acc+2}, v{acc+3}")
            a(f"v_add_u32 v{acc+2}, s{70+mi}, v{200+j}")
            a(f"ds_write_b64 v{acc+2}, {vr(acc,2)}")
        a.label(f"L_g1_a_skip{j}")
    a("s_waitcnt lgkmcnt(0)")
    a("s_barrier")
    a.stamp(10)
    KF, VT0, VT1, QF, SS, PP, OO = 32, 52, 62, 72, 88, 120, 136
    for qb in range(4):
        a(f"ds_read_b64 {vr(QF+4*qb,2)}, v204 offset:{qb*T32}")
        a(f"ds_read_b64 {vr(QF+4*qb+2,2)}, v204 offset:{qb*T32+8}")
    a(f"ds_read_b64 {vr(KF,2)}, v205 offset:160")
    a(f"ds_read_b64 {vr(KF+2,2)}, v205 offset:168")
    for t in range(4):
        a(f"ds_read_b64 {vr(KF+4+4*t,2)}, v204 offset:{t*T32+160}")
        a(f"ds_read_b64 {vr(KF+4+4*t+2,2)}, v204 offset:{t*T32+168}")
    a(f"ds_read_b64_tr_b16 {vr(VT0,2)}, v207 offset:320")
    a(f"ds_read_b64_tr_b16 {vr(VT1,2)}, v207 offset:352")
    for t in range(4):
        a(f"ds_read_b64_tr_b16 {vr(VT0+2+2*t,2)}, v206 offset:{t*T32+320}")
        a(f"ds_read_b64_tr_b16 {vr(VT1+2+2*t,2)}, v206 offset:{t*T32+352}")
    a("s_cmp_eq_u32 s33, 0")
    for r in range(4):
        a(f"s_cselect_b64 s[{60+2*r}:{61+2*r}], 0, s[{80+2*r}:{81+2*r}]")
    a("""
    s_mov_b32 s18, 0x3ea52b5c
    s_mov_b32 s19, 0x3ea52b5c
    v_mov_b32 v29, 0xff800000
    s_waitcnt lgkmcnt(10)
    """)
    a.stamp(11)
    for qb in range(4):
        q = QF + 4 * qb
        a(f"v_cndmask_b32 v{q}, 0, v{q}, s[38:39]")
        a(f"v_cndmask_b32 v{q+1}, 0, v{q+1}, s[38:39]")
        a(f"v_cndmask_b32 v{q+2}, 0, v{q+2}, s[96:97]")
        a(f"v_cndmask_b32 v{q+3}, 0, v{q+3}, s[96:97]")
    a("s_nop 1")
    for qb in range(4):
        a(f"v_mfma_f32_16x16x32_bf16 {vr(SS+8*qb,4)}, {vr(KF+4*qb,4)}, {vr(QF+4*qb,4)}, 0")
        a(f"v_mfma_f32_16x16x32_bf16 {vr(SS+8*qb+4,4)}, {vr(KF+4*qb+4,4)}, {vr(QF+4*qb,4)}, 0")
    a("s_nop 7")
    for qb in range(4):
        S = SS + 8 * qb
        mb = 60 if qb == 0 else 80
        for r in range(4):
            a(f"v_cndmask_b32 v{S+r}, v29, v{S+r}, s[{mb+2*r}:{mb+1+2*r}]")
            a(f"v_cndmask_b32 v{S+4+r}, v29, v{S+4+r}, s[{88+2*r}:{89+2*r}]")
        mx, t = 24 + (qb & 1) * 2, 25 + (qb & 1) * 2
        a(f"v_max3_f32 v{mx}, v{S}, v{S+1}, v{S+2}")
        a(f"v_max3_f32 v{mx}, v{mx}, v{S+3}, v{S+4}")
        a(f"v_max3_f32 v{mx}, v{mx}, v{S+5}, v{S+6}")
        a(f"v_max_f32 v{mx}, v{mx}, v{S+7}")
        a(f"v_mov_b32 v{t}, v{mx}")
        a("s_nop 1")
        a(f"v_permlane32_swap_b32 v{mx}, v{t}")
        a("s_nop 1")
        a(f"v_max_f32 v{mx}, v{mx}, v{t}")
        a(f"v_mov_b32 v{t}, v{mx}")
        a("s_nop 1")
        a(f"v_permlane16_swap_b32 v{mx}, v{t}")
        a("s_nop 1")
        a(f"v_max_f32 v{mx}, v{mx}, v{t}")
        a(f"v_mul_f32 v{mx}, s18, v{mx}")
        for h in range(0, 8, 2):
            a(f"v_pk_fma_f32 {vr(S+h,2)}, {vr(S+h,2)}, s[18:19], {vr(mx,2)} op_sel_hi:[1,1,0] neg_lo:[0,0,1] neg_hi:[0,0,1]")
        for e in range(8):
            a(f"v_exp_f32 v{S+e}, v{S+e}")
        a("s_nop 0")
        a(f"v_pk_add_f32 {vr(mx,2)}, {vr(S,2)}, {vr(S+2,2)}")
        a(f"v_pk_add_f32 {vr(30,2)}, {vr(S+4,2)}, {vr(S+6,2)}")
        a(f"v_pk_add_f32 {vr(mx,2)}, {vr(mx,2)}, {vr(30,2)}")
        a(f"v_add_f32 v{mx}, v{mx}, v{t}")
        red_g(a, mx, t)
        a(f"v_rcp_f32 v{mx}, v{mx}")
        a("s_nop 0")
        for h in range(0, 8, 2):
            a(f"v_pk_mul_f32 {vr(S+h,2)}, {vr(S+h,2)}, {vr(mx,2)} op_sel_hi:[1,0]")
        for h in range(4):
            a(f"v_cvt_pk_bf16_f32 v{PP+4*qb+h}, v{S+2*h}, v{S+2*h+1}")
    a.stamp(12)
    a("s_waitcnt lgkmcnt(0)")
    a("s_nop 1")
    for qb in range(4):
        a(f"v_mfma_f32_16x16x32_bf16 {vr(OO+8*qb,4)}, {vr(VT0+2*qb,4)}, {vr(PP+4*qb,4)}, 0")
        a(f"v_mfma_f32_16x16x32_bf16 {vr(OO+8*qb+4,4)}, {vr(VT1+2*qb,4)}, {vr(PP+4*qb,4)}, 0")
    a("s_nop 7")
    for qb in range(4):
        O = OO + 8 * qb
        a(f"v_cvt_pk_bf16_f32 v{O}, v{O}, v{O+1}")
        a(f"v_cvt_pk_bf16_f32 v{O+1}, v{O+2}, v{O+3}")
        a(f"v_cvt_pk_bf16_f32 v{O+4}, v{O+4}, v{O+5}")
        a(f"v_cvt_pk_bf16_f32 v{O+5}, v{O+6}, v{O+7}")
        a(f"s_mov_b32 s44, {A2_OFF + qb*2*A2_MT}")
        a(f"buffer_store_dwordx2 {vr(O,2)}, v218, s[12:15], s44 offen{ST_FLAGS}")
    a("s_mov_b64 exec, 0xffff")
    for qb in range(4):
        O = OO + 8 * qb
        a(f"s_mov_b32 s44, {A2_OFF + qb*2*A2_MT}")
        a(f"buffer_store_dwordx2 {vr(O+4,2)}, v219, s[12:15], s44 offen{ST_FLAGS}")
    a("s_mov_b64 exec, -1")
    a.stamp(8, True)
    a.stamp_flush(12, 1, 32)
    a.label("L_g1_done")
    a("s_endpgm")
    for blk in a.ool:
        a(blk)
    a.ool = []


def gen_k2(a):
    a.raw(".p2align 8")
    a.label("g2_kernel")
    a.kidx = 2
    a.vm = []
    a("""
    s_cmp_ge_u32 s2, 256
    s_cbranch_scc1 L_g2_done
    """)
    a.stamp(0)
    a("""
    s_load_dwordx2 s[4:5], s[0:1], 0
    s_load_dwordx2 s[10:11], s[0:1], 56
    s_load_dwordx2 s[28:29], s[0:1], 72
    v_lshrrev_b32 v1, 6, v0
    v_and_b32 v0, 63, v0
    s_nop 0
    v_readfirstlane_b32 s32, v1
    s_and_b32 s33, s2, 7
    s_lshr_b32 s3, s2, 3
    s_and_b32 s34, s3, 7
    s_lshr_b32 s3, s3, 3
    s_lshl_b32 s33, s33, 2
    s_add_u32 s33, s33, s3
    v_lshrrev_b32 v2, 4, v0
    v_lshlrev_b32 v5, 4, v0
    """)
    a(f"""
    s_mul_i32 s40, s32, 10
    s_lshl_b32 s41, s32, 3
    s_add_u32 s41, s41, 4
    s_cmp_lt_u32 s32, 2
    s_cselect_b32 s40, s40, s41
    s_lshl_b32 s47, s40, 10
    s_mul_i32 s48, s34, 68
    s_add_u32 s48, s48, s40
    s_mul_i32 s48, s48, 5120
    s_add_u32 s48, s48, {B2_OFF}
    s_mul_i32 s42, s32, 20480
    s_mul_i32 s45, s34, 160
    """)
    for mi in range(4):
        a(f"s_lshl_b32 s44, s33, 2")
        a(f"s_add_u32 s44, s44, {mi}")
        a(f"s_mul_i32 s44, s44, {A2_MT}")
        if A2_OFF:
            a(f"s_add_u32 s44, s44, {A2_OFF}")
        a(f"v_add_u32 v{10+mi}, s44, v5")
    a("v_add_u32 v14, 4096, v5")
    a("s_waitcnt lgkmcnt(0)")
    srd(a, 12, 28, WS_BYTES)
    srd(a, 20, 4, 2048 * 1280)
    srd(a, 24, 10, 2048 * 1280)
    ACC = 32
    ST = 112

    def issue(st):
        b = ST + 36 * (st & 3)
        for mi in range(4):
            a.vmem(f"buffer_load_dwordx4 {vr(b+4*mi,4)}, v{10+mi}, s[12:15], s47 offen", ("st", st))
        for j in range(4):
            a.vmem(f"buffer_load_dwordx4 {vr(b+16+4*j,4)}, v5, s[12:15], s48 offen offset:{1024*j}", ("st", st))
        a.vmem(f"buffer_load_dwordx4 {vr(b+32,4)}, v14, s[12:15], s48 offen", ("st", st))
        a("s_add_u32 s47, s47, 1024")
        a("s_add_u32 s48, s48, 5120")

    def body(n):
        a.vm = []
        a.stamp(1)
        for st in range(4):
            issue(st)
        a.stamp(2)
        for s in range(n):
            b = ST + 36 * (s & 3)
            a.wait_vm(("st", s))
            if s in (0, 3, 7):
                a.stamp({0: 3, 3: 4, 7: 5}[s])
            for j in range(5):
                for mi in range(4):
                    acc = ACC + 4 * (mi * 5 + j)
                    c = "0" if s == 0 else vr(acc, 4)
                    a(f"v_mfma_f32_16x16x32_bf16 {vr(acc,4)}, {vr(b+16+4*j,4)}, {vr(b+4*mi,4)}, {c}")
            if s + 4 < n:
                issue(s + 4)

    a("s_cmp_lt_u32 s32, 2")
    a("s_cbranch_scc0 L_g2_h")
    body(10)
    a("s_branch L_g2_red")
    a.label("L_g2_h")
    body(8)
    a.label("L_g2_red")
    a.stamp(6)
    for r in range(3):
        a(f"s_add_u32 s40, s32, {8*r}")
        a("s_min_u32 s40, s40, 19")
        a("s_mul_i32 s41, s40, 52")
        a("s_lshr_b32 s41, s41, 8")
        a("s_mul_i32 s43, s41, 5")
        a("s_sub_u32 s43, s40, s43")
        a(f"""
        s_lshl_b32 s44, s33, 6
        s_lshl_b32 s41, s41, 4
        s_add_u32 s44, s44, s41
        v_and_b32 v21, 15, v0
        v_add_u32 v21, s44, v21
        v_mul_u32_u24 v21, 1280, v21
        v_lshl_add_u32 v21, v2, 3, v21
        s_lshl_b32 s43, s43, 5
        s_add_u32 s43, s43, s45
        v_add_u32 v{112+r}, s43, v21
        buffer_load_dwordx2 {vr(116+2*r,2)}, v{112+r}, s[20:23], 0 offen
        """)
    a("v_add_u32 v20, s42, v5")
    for st in range(20):
        a(f"ds_write_b128 v20, {vr(ACC+4*st,4)} offset:{st*1024}")
    a("s_waitcnt lgkmcnt(0)")
    a("s_barrier")
    a.stamp(7, True)
    a.stamp_flush(12, 2, 32)
    a("s_mov_b32 s16, 0xffff0000")
    a("s_lshl_b32 s40, s32, 10")
    a("v_add_u32 v20, s40, v5")
    a("v_add_u32 v21, 40960, v20")
    a("v_add_u32 v22, 81920, v20")
    a("v_add_u32 v23, 122880, v20")
    for r in range(3):
        if r == 2:
            a("s_cmp_ge_u32 s32, 4")
            a("s_cbranch_scc1 L_g2_r2skip")
        for w in range(8):
            base = 128 + 32 * r + 4 * w
            a(f"ds_read_b128 {vr(base,4)}, v{20+(w>>1)} offset:{(w&1)*20480 + r*8192}")
    a.label("L_g2_r2skip")
    a("s_waitcnt vmcnt(0) lgkmcnt(0)")
    for r in range(3):
        if r == 2:
            a("s_cmp_ge_u32 s32, 4")
            a("s_cbranch_scc1 L_g2_done")
        B = 128 + 32 * r
        X = 116 + 2 * r
        for h in (0, 2):
            a(f"v_pk_add_f32 {vr(B+h,2)}, {vr(B+h,2)}, {vr(B+4+h,2)}")
            a(f"v_pk_add_f32 {vr(B+8+h,2)}, {vr(B+8+h,2)}, {vr(B+12+h,2)}")
            a(f"v_pk_add_f32 {vr(B+16+h,2)}, {vr(B+16+h,2)}, {vr(B+20+h,2)}")
            a(f"v_pk_add_f32 {vr(B+24+h,2)}, {vr(B+24+h,2)}, {vr(B+28+h,2)}")
            a(f"v_pk_add_f32 {vr(B+8+h,2)}, {vr(B+8+h,2)}, {vr(B+16+h,2)}")
            a(f"v_pk_add_f32 {vr(B+8+h,2)}, {vr(B+8+h,2)}, {vr(B+24+h,2)}")
        for p in range(2):
            a0, a1, b0, b1 = B + 2 * p, B + 1 + 2 * p, B + 8 + 2 * p, B + 9 + 2 * p
            a(f"v_cvt_pk_bf16_f32 v25, v{a0}, v{a1}")
            a(f"v_cvt_pk_bf16_f32 v26, v{b0}, v{b1}")
            a(f"v_lshlrev_b32 v{a0}, 16, v25")
            a(f"v_and_b32 v{a1}, s16, v25")
            a(f"v_lshlrev_b32 v{b0}, 16, v26")
            a(f"v_and_b32 v{b1}, s16, v26")
            a(f"v_lshlrev_b32 v26, 16, v{X+p}")
            a(f"v_and_b32 v27, s16, v{X+p}")
            a(f"v_pk_add_f32 {vr(a0,2)}, {vr(a0,2)}, v[26:27]")
            a(f"v_cvt_pk_bf16_f32 v25, v{a0}, v{a1}")
            a(f"v_lshlrev_b32 v{a0}, 16, v25")
            a(f"v_and_b32 v{a1}, s16, v25")
            a(f"v_pk_add_f32 {vr(a0,2)}, {vr(a0,2)}, {vr(b0,2)}")
            a(f"v_cvt_pk_bf16_f32 v{B+16+p}, v{a0}, v{a1}")
        a(f"buffer_store_dwordx2 {vr(B+16,2)}, v{112+r}, s[24:27], 0 offen")
    a.label("L_g2_done")
    a("s_endpgm")


def kd(name, vgpr, sgpr=102):
    acc = (vgpr + 3) // 4 * 4
    return f""".p2align 6
.amdhsa_kernel {name}
  .amdhsa_next_free_vgpr {vgpr}
  .amdhsa_next_free_sgpr {sgpr}
  .amdhsa_accum_offset {acc}
  .amdhsa_group_segment_fixed_size 0
  .amdhsa_kernarg_size 80
  .amdhsa_user_sgpr_count 2
  .amdhsa_user_sgpr_kernarg_segment_ptr 1
  .amdhsa_system_sgpr_workgroup_id_x 1
.end_amdhsa_kernel
"""


def main(outpath):
    a = Asm()
    a.raw("; @launch kernel=g1_kernel grid=(256,1,1) block=(512,1,1) lds=163840")
    a.raw("; @launch kernel=g2_kernel grid=(256,1,1) block=(512,1,1) lds=163840")
    a.raw('.amdgcn_target "amdgcn-amd-amdhsa--gfx950"')
    a.raw(".text")
    for k in ("g1_kernel", "g2_kernel"):
        a.raw(f".globl {k}")
        a.raw(f".type {k},@function")
    gen_k1(a)
    gen_k2(a)
    a.label("L_code_end")
    a.raw('.section .rodata,"a"')
    a.raw(kd("g1_kernel", 256))
    a.raw(kd("g2_kernel", 256))
    open(outpath, "w").write(a.text())


if __name__ == "__main__":
    if len(sys.argv) > 2 and sys.argv[2] == "stamp":
        STAMP = True
    main(sys.argv[1] if len(sys.argv) > 1 else f"cdna_kernels/{NAME}.s")
```

```python
import sys, os

NAME = "parallel_sum__sliding_local_dilated__glu_gated_glu__prompt"
A2_OFF = 0
B2_OFF = 9 << 20
WS_BYTES = 16 << 20
A2_MT = 68 * 1024
STAMP = False
DBGSTAMP = os.environ.get("DBGSTAMP", "") == "1"
ST_FLAGS = os.environ.get("STF", "")
B2F = os.environ.get("B2F", " sc0 sc1")
PRIO = int(os.environ.get("PRIO", "0"))
RDT = int(os.environ.get("RDT", "6"))
CODEPF = int(os.environ.get("CODEPF", "1"))
XMAP = int(os.environ.get("XMAP", "0"))
PFD = int(os.environ.get("PFD", "0"))
XP = os.environ.get("XP", "")
TLBPF = int(os.environ.get("TLBPF", "3"))
TLBAT = int(os.environ.get("TLBAT", "0"))
B2AT = int(os.environ.get("B2AT", "9"))
PFSCHED = eval(os.environ.get("PFSCHED", "[(0,4,6),(3,10,5),(6,15,5)]"))


class Asm:
    def __init__(self):
        self.lines = []
        self.vm = []
        self.ool = []

    def __call__(self, s):
        for ln in s.strip("\n").split("\n"):
            ln = ln.strip()
            if ln:
                self.lines.append("    " + ln)

    def label(self, l):
        self.lines.append(l + ":")

    def raw(self, s):
        self.lines.append(s)

    def text(self):
        return "\n".join(l for l in self.lines if l.strip() != "#CHUNK") + "\n"

    def capture(self, fn, *args):
        save = self.lines
        self.lines = []
        fn(*args)
        got = self.lines
        self.lines = save
        chunks, cur = [], []
        for ln in got:
            if ln.strip() == "#CHUNK":
                if cur:
                    chunks.append(cur)
                cur = []
            else:
                cur.append(ln)
        if cur:
            chunks.append(cur)
        return chunks

    def chunk(self):
        self.lines.append("#CHUNK")

    def vmem(self, s, tag, optional=False):
        self(s)
        self.vm.append((tag, optional))
        if not optional:
            self.chunk()

    def vm_count_after(self, tag):
        idx = max([i for i, (t, o) in enumerate(self.vm) if t == tag], default=-1)
        if idx < 0:
            return None
        return sum(1 for (t, o) in self.vm[idx + 1:] if not o)

    def wait_vm(self, tag, lgkm=False):
        n = self.vm_count_after(tag)
        parts = []
        if n is not None:
            assert n < 64
            parts.append(f"vmcnt({n})")
            idx = max([i for i, (t, o) in enumerate(self.vm) if t == tag])
            self.vm = self.vm[idx + 1:]
        if lgkm:
            parts.append("lgkmcnt(0)")
        if parts:
            self("s_waitcnt " + " ".join(parts))

    def stamp(self, n, last=False):
        if not STAMP:
            return
        self("s_memtime s[98:99]")
        self("s_waitcnt lgkmcnt(0)")
        if n == 0:
            self("s_mov_b32 s100, s98")
            self("s_memrealtime s[98:99]")
            self("s_waitcnt lgkmcnt(0)")
            self("s_mov_b32 s101, s98")
            return
        if n == 1:
            self("v_mov_b32 v1, s101")
            self("s_lshl_b32 s101, s2, 3")
            self("s_add_u32 s101, s101, s32")
            self("s_lshl_b32 s101, s101, 6")
            self(f"s_add_u32 s101, s101, {(12+self.kidx)<<20}")
            self("v_mov_b32 v255, 0")
            self("buffer_store_dword v1, v255, s[12:15], s101 offen offset:56")
            self("s_nop 1")
            self("v_mov_b32 v1, s100")
            self("buffer_store_dword v1, v255, s[12:15], s101 offen offset:0")
            self("s_nop 1")
            self.vm.append(("stamp", True)); self.vm.append(("stamp", True))
        self("v_mov_b32 v1, s98")
        self("v_mov_b32 v255, 0")
        self(f"buffer_store_dword v1, v255, s[12:15], s101 offen offset:{4*n}")
        self("s_nop 1")
        self.vm.append(("stamp", True))
        if last:
            self("s_memrealtime s[98:99]")
            self("s_waitcnt lgkmcnt(0)")
            self("v_mov_b32 v1, s98")
            self("buffer_store_dword v1, v255, s[12:15], s101 offen offset:60")
            self("s_nop 1")

    def stamp_flush(self, srd_ws, kidx, swave):
        return


def srd(a, d, base, nbytes):
    a(f"s_mov_b32 s{d}, s{base}")
    a(f"s_mov_b32 s{d+1}, s{base+1}")
    a(f"s_mov_b32 s{d+2}, {nbytes}")
    a(f"s_mov_b32 s{d+3}, 0x00020000")


def vr(b, n):
    return f"v[{b}:{b+n-1}]"


def unswap23(a, dst, src, t0, t1):
    a(f"v_lshrrev_b32 v{t0}, 1, v{src}")
    a(f"v_and_b32 v{t0}, 4, v{t0}")
    a(f"v_lshlrev_b32 v{t1}, 1, v{src}")
    a(f"v_and_b32 v{t1}, 8, v{t1}")
    a(f"v_and_b32 v{dst}, 0x13, v{src}")
    a(f"v_or3_b32 v{dst}, v{dst}, v{t0}, v{t1}")


def divsmall(a, q, p, d, lim=1024):
    m = (65536 + d - 1) // d
    for x in range(lim):
        assert (x * m) >> 16 == x // d, (d, x)
    a(f"v_mul_u32_u24 v{q}, {m}, v{p}")
    a(f"v_lshrrev_b32 v{q}, 16, v{q}")


def sdiv(a, q, p, d, lim):
    m = (65536 + d - 1) // d
    for x in range(lim):
        assert (x * m) >> 16 == x // d, (d, x)
    a(f"s_mul_i32 s{q}, s{p}, {m}")
    a(f"s_lshr_b32 s{q}, s{q}, 16")


def red_g(a, v, t):
    a(f"v_mov_b32 v{t}, v{v}")
    a("s_nop 1")
    a(f"v_permlane32_swap_b32 v{v}, v{t}")
    a("s_nop 1")
    a(f"v_add_f32 v{v}, v{v}, v{t}")
    a(f"v_mov_b32 v{t}, v{v}")
    a("s_nop 1")
    a(f"v_permlane16_swap_b32 v{v}, v{t}")
    a("s_nop 1")
    a(f"v_add_f32 v{v}, v{v}, v{t}")


NK = 20
STAT_LDS = 156 * 1024
CS_LDS = STAT_LDS + 2560
SCR_LDS = 144 * 1024
VONE = 228
TMP = 20


def k1_mainloop(a, NM, NN, dma_fn, xaddr_fn, waddr_fn, ACC, FR, ncs, nrs, CS, RS, hooks=None, mstat=None, skipj=None, NMM=None, mslots=(0,)):
    NMM = NMM or NM
    FS = 4 * NM + 4 * NN

    def xfrag(s, mi):
        return FR + s * FS + 4 * mi

    def wfrag(s, j):
        return FR + s * FS + 4 * NM + 4 * j

    def reads(ks):
        s = ks & 1
        out = []
        for mi in range(NM):
            v, off = xaddr_fn(mi, ks)
            out.append(f"ds_read_b128 {vr(xfrag(s,mi),4)}, v{v} offset:{off}")
        for j in range(NN):
            v, off, dt = waddr_fn(j, ks)
            out.append(f"ds_read_b64_tr_b16 {vr(wfrag(s,j),2)}, v{v} offset:{off}")
            out.append(f"ds_read_b64_tr_b16 {vr(wfrag(s,j)+2,2)}, v{v} offset:{off+dt}")
        return out

    def mfmas(ks):
        s = ks & 1
        out = []
        for j in range(NN):
            grp = []
            for mi in range(NMM):
                acc = ACC + 4 * (mi * NN + j)
                c = "0" if ks == 0 else vr(acc, 4)
                grp.append(f"v_mfma_f32_16x16x32_bf16 {vr(acc,4)}, {vr(wfrag(s,j),4)}, {vr(xfrag(s,mi),4)}, {c}")
            if skipj and j in skipj and "noskip" not in XP:
                lab = f"L_skj_{a.tag}_{ks}_{j}"
                out.append(f"s_cmp_eq_u32 s{skipj[j]}, 15\ns_cbranch_scc1 {lab}\n" + "\n".join(grp) + f"\n{lab}:")
            else:
                out.extend(grp)
        return out

    def stats(ks):
        s = ks & 1
        out = []
        for j in range(ncs):
            c = "0" if ks == 0 else vr(CS + 4 * j, 4)
            out.append(f"v_mfma_f32_16x16x32_bf16 {vr(CS+4*j,4)}, {vr(wfrag(s,j),4)}, {vr(VONE,4)}, {c}")
        valu = []
        if mstat is not None:
            for k, mi in enumerate(mslots):
                R0, Q0 = mstat + 8 * k, mstat + 8 * k + 4
                c0 = "0" if ks == 0 else vr(R0, 4)
                c1 = "0" if ks == 0 else vr(Q0, 4)
                out.append(f"v_mfma_f32_16x16x32_bf16 {vr(R0,4)}, {vr(VONE,4)}, {vr(xfrag(s,mi),4)}, {c0}")
                out.append(f"v_mfma_f32_16x16x32_bf16 {vr(Q0,4)}, {vr(xfrag(s,mi),4)}, {vr(xfrag(s,mi),4)}, {c1}")
            return out, valu
        for mi in range(nrs):
            S0, S1, Q0, Q1 = [RS + 4 * mi + i for i in range(4)]
            for d in range(4):
                x = xfrag(s, mi) + d
                t0, t1 = TMP + 2 * (d & 1), TMP + 2 * (d & 1) + 1
                valu.append(f"v_lshlrev_b32 v{t0}, 16, v{x}")
                valu.append(f"v_and_b32 v{t1}, s69, v{x}")
                if ks == 0 and d == 0:
                    valu.append(f"v_mov_b32 v{S0}, v{t0}")
                    valu.append(f"v_mov_b32 v{S1}, v{t1}")
                    valu.append(f"v_mul_f32 v{Q0}, v{t0}, v{t0}")
                    valu.append(f"v_mul_f32 v{Q1}, v{t1}, v{t1}")
                else:
                    valu.append(f"v_add_f32 v{S0}, v{S0}, v{t0}")
                    valu.append(f"v_add_f32 v{S1}, v{S1}, v{t1}")
                    valu.append(f"v_fmac_f32 v{Q0}, v{t0}, v{t0}")
                    valu.append(f"v_fmac_f32 v{Q1}, v{t1}, v{t1}")
        if "novalu" in XP: valu = []
        if "nocs" in XP: out = []
        return out, valu

    a.stamp(2)
    if PRIO:
        lab = f"L_prio_{a.tag}"
        a(f"s_cmp_eq_u32 s36, {PRIO-1}")
        a(f"s_cbranch_scc0 {lab}")
        a("s_setprio 1")
        a.label(lab)
    a.wait_vm(("st", 0))
    a("s_barrier")
    a.stamp(3)
    for r in reads(0):
        a(r)
    for ks in range(NK):
        if ks + 1 < NK:
            a.wait_vm(("st", ks + 1), lgkm=True)
            a("s_barrier")
            if ks in (4, 10, 16):
                a.stamp({4: 4, 10: 5, 16: 6}[ks])
            if hooks and ks in hooks:
                hooks[ks]()
            dm = a.capture(dma_fn, ks + 4) if ks + 4 < NK else []
            if "nodma" in XP:
                dm = []; a.vm = []
            rd = reads(ks + 1)
            if "nolds" in XP: rd = []
        else:
            a("s_waitcnt lgkmcnt(0)")
            rd = []
            dm = []
        mf = mfmas(ks)
        smf, stt = stats(ks)
        mf = mf + smf
        nr = ns = nd = 0
        L = len(mf)
        for i, m in enumerate(mf):
            a(m)
            while nd < len(dm) and nd < 1 + i * len(dm) // (L - 2):
                a.lines.extend(dm[nd]); nd += 1
            while nr < len(rd) and nr < (i + 1) * len(rd) // max(1, L - RDT):
                a(rd[nr]); nr += 1
            while ns < len(stt) and ns < (i + 1) * len(stt) // L:
                a(stt[ns]); ns += 1
        while nd < len(dm):
            a.lines.extend(dm[nd]); nd += 1
        while nr < len(rd):
            a(rd[nr]); nr += 1
        while ns < len(stt):
            a(stt[ns]); ns += 1


def rowstat_math(a, S, t):
    Q = S + 1
    a(f"v_mul_f32 v{S}, s17, v{S}")
    a(f"v_mul_f32 v{Q}, s17, v{Q}")
    a(f"v_fma_f32 v{Q}, -v{S}, v{S}, v{Q}")
    a(f"v_max_f32 v{Q}, 0, v{Q}")
    a(f"v_cvt_pk_bf16_f32 v{t}, v{S}, v{Q}")
    a(f"v_lshlrev_b32 v{S}, 16, v{t}")
    a(f"v_and_b32 v{Q}, s16, v{t}")
    a(f"v_add_f32 v{Q}, 0x3727c5ac, v{Q}")
    a(f"v_cvt_pk_bf16_f32 v{t}, v{Q}, v{Q}")
    a(f"v_and_b32 v{Q}, s16, v{t}")
    a(f"v_sqrt_f32 v{Q}, v{Q}")
    a("s_nop 0")
    a(f"v_cvt_pk_bf16_f32 v{t}, v{Q}, v{Q}")
    a(f"v_and_b32 v{S+3}, s16, v{t}")
    a(f"v_rcp_f32 v{t}, v{S+3}")
    a("s_nop 0")
    a(f"v_fma_f32 v{Q}, -v{S+3}, v{t}, 1.0")
    a(f"v_fma_f32 v{Q}, v{Q}, v{t}, v{t}")
    a(f"v_mul_f32 v{S+2}, 0xbfb8aa3b, v{Q}")


def gen_k1(a):
    a.raw(".p2align 8")
    a.label("g1_kernel")
    a.kidx = 1
    a("""
    s_cmp_ge_u32 s2, 256
    s_cbranch_scc1 L_g1_done
    """)
    a.stamp(0)
    if CODEPF:
        a("""
        s_getpc_b64 s[90:91]
        L_pc_here:
        s_sub_u32 s90, s90, L_pc_here - g1_kernel
        s_subb_u32 s91, s91, 0
        v_lshlrev_b32 v1, 7, v0
        v_min_u32 v1, L_code_end - g1_kernel - 4, v1
        global_load_dword v254, v1, s[90:91]
        """)
    a("""
    s_load_dwordx4 s[4:7], s[0:1], 0
    s_load_dwordx2 s[52:53], s[0:1], 16
    s_load_dwordx4 s[8:11], s[0:1], 32
    s_load_dwordx2 s[54:55], s[0:1], 48
    s_load_dwordx2 s[56:57], s[0:1], 72
    v_lshrrev_b32 v1, 6, v0
    v_and_b32 v0, 63, v0
    s_nop 0
    v_readfirstlane_b32 s32, v1
    """)
    if XMAP == 0:
        a("""
        s_and_b32 s34, s2, 7
        s_lshr_b32 s3, s2, 3
        s_and_b32 s33, s3, 15
        s_lshr_b32 s3, s3, 4
        """)
    else:
        a("""
        s_lshr_b32 s3, s2, 3
        s_and_b32 s33, s3, 7
        s_and_b32 s34, s2, 1
        s_lshl_b32 s34, s34, 3
        s_add_u32 s33, s33, s34
        s_bfe_u32 s34, s3, 0x10003
        s_and_b32 s35, s2, 6
        s_add_u32 s34, s34, s35
        s_lshr_b32 s3, s3, 4
        """)
    a("""
    s_lshr_b32 s36, s32, 2
    s_and_b32 s37, s32, 3
    v_lshrrev_b32 v2, 4, v0
    v_bfe_u32 v3, v0, 2, 2
    v_and_b32 v4, 3, v0
    v_lshlrev_b32 v5, 4, v0
    v_mov_b32 v228, 0x3f803f80
    v_mov_b32 v229, 0x3f803f80
    v_mov_b32 v230, 0x3f803f80
    v_mov_b32 v231, 0x3f803f80
    s_mov_b32 s69, 0xffff0000
    v_and_b32 v6, 15, v0
    s_waitcnt lgkmcnt(0)
    """)
    srd(a, 12, 56, WS_BYTES)
    srd(a, 28, 4, 2048 * 1280)
    a("""
    v_lshrrev_b32 v20, 3, v0
    v_and_b32 v21, 7, v0
    v_xor_b32 v21, v21, v20
    v_mul_u32_u24 v7, 1280, v20
    v_lshl_add_u32 v7, v21, 4, v7
    """)
    a("""
    v_and_b32 v20, 7, v6
    v_xor_b32 v21, v2, v20
    v_lshlrev_b32 v8, 7, v20
    v_lshl_add_u32 v8, v21, 4, v8
    v_lshrrev_b32 v20, 3, v6
    v_lshl_add_u32 v8, v20, 10, v8
    """)
    a("""
    v_and_b32 v20, 1, v2
    v_lshl_add_u32 v20, v20, 2, v3
    v_lshrrev_b32 v21, 1, v2
    v_lshl_add_u32 v9, v21, 4, v20
    """)

    def b2_issue():
        a("""
        s_mul_i32 s58, s2, 3
        s_add_u32 s58, s58, s32
        s_cmp_lt_u32 s32, 3
        s_cselect_b32 s58, s58, 4095
        s_cmp_lt_u32 s58, 680
        s_cbranch_scc0 L_b2_skip1_%s
        """ % a.tag)
        sdiv(a, 59, 58, 10, 680)
        a("""
        s_mul_i32 s60, s59, 10
        s_sub_u32 s60, s58, s60
        s_cmp_lt_u32 s59, 20
        s_cselect_b32 s64, s52, s54
        s_cselect_b32 s65, s53, s55
        s_mov_b32 s66, 1966080
        s_cselect_b32 s66, 819200, s66
        s_mov_b32 s67, 0x00020000
        s_sub_u32 s61, s59, 20
        s_cmp_lt_u32 s59, 20
        s_cselect_b32 s61, s59, s61
        s_mul_i32 s61, s61, 40960
        s_lshl_b32 s62, s60, 7
        s_add_u32 s61, s61, s62
        s_lshl_b32 s62, s32, 12
        s_add_u32 s62, s62, %d
        v_lshrrev_b32 v20, 3, v0
        v_and_b32 v21, 7, v0
        """ % SCR_LDS)
        for i in range(4):
            a(f"v_add_u32 v22, {8*i}, v20")
            unswap23(a, 23, 22, 246, 247)
            a("v_mul_u32_u24 v23, 1280, v23")
            a("v_lshl_add_u32 v23, v21, 4, v23")
            a(f"s_add_u32 m0, s62, {1024*i}")
            a("s_nop 0")
            a.vmem("buffer_load_dwordx4 v23, s[64:67], s61 offen lds", "b2", optional=True)
        a.label("L_b2_skip1_%s" % a.tag)

    def b2_finish():
        a("s_cmp_lt_u32 s58, 680")
        a("s_cbranch_scc0 L_b2_skip2_%s" % a.tag)
        a("v_lshlrev_b32 v1, 7, v9")
        a("v_lshl_add_u32 v1, v4, 3, v1")
        a("v_add_u32 v1, s62, v1")
        regs = [244, 248, 252, 20]
        for jj in range(4):
            a(f"ds_read_b64_tr_b16 {vr(regs[jj],2)}, v1 offset:{32*jj}")
            a(f"ds_read_b64_tr_b16 {vr(regs[jj]+2,2)}, v1 offset:{32*jj+1024}")
        a("s_waitcnt lgkmcnt(0)")
        for jj in range(4):
            a("s_lshl_b32 s61, s60, 2")
            a(f"s_add_u32 s61, s61, {jj}")
            sdiv(a, 62, 61, 5, 40)
            a("s_mul_i32 s63, s62, 5")
            a("s_sub_u32 s63, s61, s63")
            a("s_mul_i32 s62, s62, 68")
            a("s_add_u32 s62, s62, s59")
            a("s_mul_i32 s62, s62, 5")
            a("s_add_u32 s62, s62, s63")
            a("s_lshl_b32 s62, s62, 10")
            a(f"s_add_u32 s62, s62, {B2_OFF}")
            a.vmem(f"buffer_store_dwordx4 {vr(regs[jj],4)}, v5, s[12:15], s62 offen{B2F}", "b2s", optional=True)
        a("s_nop 4")
        a.label("L_b2_skip2_%s" % a.tag)

    a("s_cmp_eq_u32 s3, 0")
    a("s_cbranch_scc1 L_g1_attn")

    a.tag = "g"
    a.vm = []
    AR_G = 16384
    BR_G = 49152
    BS_G = 24576
    srd(a, 16, 8, 640 * 3072)
    srd(a, 20, 10, 640 * 3072)
    a("""
    s_cmp_lt_u32 s32, 4
    s_cselect_b32 s24, s8, s10
    s_cselect_b32 s25, s9, s11
    s_mov_b32 s26, 1966080
    s_mov_b32 s27, 0x00020000
    s_mov_b32 s43, 12288
    s_cselect_b32 s43, 0, s43
    """)
    a(f"""
    s_lshl_b32 s40, s32, 10
    s_add_u32 s41, s40, {BR_G}
    s_add_u32 s42, s40, {BR_G+12288}
    s_lshl_b32 s44, s37, 10
    s_add_u32 s43, s43, s44
    s_add_u32 s43, s43, {BR_G+8192}
    """)
    a("""
    s_lshl_b32 s44, s33, 4
    s_add_u32 s44, s44, s32
    s_mul_i32 s44, s44, 10240
    v_add_u32 v10, s44, v7
    v_add_u32 v11, 81920, v10
    s_mul_i32 s45, s34, 384
    """)

    def gate_off(dst, sInstr):
        a(f"s_lshl_b32 s44, s{sInstr}, 6")
        a(f"v_add_u32 v20, s44, v0")
        divsmall(a, 21, 20, 48)
        a("v_mul_u32_u24 v22, 48, v21")
        a("v_sub_u32 v22, v20, v22")
        a("v_and_b32 v23, 7, v21")
        a("v_lshlrev_b32 v23, 1, v23")
        a("v_xor_b32 v22, v22, v23")
        a("v_cmp_le_u32 vcc, 24, v22")
        a("s_nop 1")
        a("v_cndmask_b32 v23, 0, 1, vcc")
        a("v_mul_u32_u24 v24, 24, v23")
        a("v_sub_u32 v22, v22, v24")
        a("v_lshl_add_u32 v21, v23, 4, v21")
        unswap23(a, 24, 21, 25, 26)
        a("v_mul_u32_u24 v24, 3072, v24")
        a("v_lshl_add_u32 v24, v22, 4, v24")
        a(f"v_add_u32 v{dst}, s45, v24")
    gate_off(12, 32)
    a("s_add_u32 s46, s37, 8")
    gate_off(13, 46)
    a("s_mov_b32 s47, 0")
    a("s_mov_b32 s48, 0")

    def dma_g(st):
        sb = (st & 3) * BS_G
        if st % 2 == 0:
            ab = ((st // 2) % 3) * AR_G
            a(f"s_add_u32 m0, s40, {ab}")
            a("s_nop 0")
            a.vmem("buffer_load_dwordx4 v10, s[28:31], s47 offen lds", ("st", st))
            a(f"s_add_u32 m0, s40, {ab+8192}")
            a("s_nop 0")
            a.vmem("buffer_load_dwordx4 v11, s[28:31], s47 offen lds", ("st", st))
            a("s_add_u32 s47, s47, 128")
        a(f"s_add_u32 m0, s41, {sb}")
        a("s_nop 0")
        a.vmem("buffer_load_dwordx4 v12, s[16:19], s48 offen lds", ("st", st))
        a(f"s_add_u32 m0, s42, {sb}")
        a("s_nop 0")
        a.vmem("buffer_load_dwordx4 v12, s[20:23], s48 offen lds", ("st", st))
        a(f"s_add_u32 m0, s43, {sb}")
        a("s_nop 0")
        a.vmem("buffer_load_dwordx4 v13, s[24:27], s48 offen lds", ("st", st))
        a("s_add_u32 s48, s48, 98304")

    a.stamp(1)
    for st in range(4):
        dma_g(st)
    def tlb_g(k0=4, nk=16, tg=0):
        a(f"""
        s_mul_i32 s44, s33, {2*nk}
        s_add_u32 s44, s44, {32*k0}
        v_min_u32 v20, {2*nk-1}, v0
        v_add_u32 v20, s44, v20
        v_mul_u32_u24 v20, 3072, v20
        v_add_u32 v20, s45, v20
        """)
        offs = {1: [0], 2: [0, 256], 3: [0, 128, 256]}[TLBPF]
        for li, off in enumerate(offs):
            for mtx, sr in enumerate((16, 20)):
                wv = 2 * li + mtx
                a(f"s_cmp_eq_u32 s32, {wv}")
                a(f"s_cbranch_scc0 L_tlb_g{wv}_{tg}")
                a.vmem(f"buffer_load_dword v244, v20, s[{sr}:{sr+3}], 0 offen offset:{off}", "pf", optional=True)
                a.label(f"L_tlb_g{wv}_{tg}")
    if TLBPF and TLBAT < 0:
        tlb_g()

    def pf_w_g():
        a("""
        s_and_b32 s44, s32, 1
        s_cmp_eq_u32 s44, 0
        s_cselect_b32 s64, s8, s10
        s_cselect_b32 s65, s9, s11
        s_mov_b32 s66, 1966080
        s_mov_b32 s67, 0x00020000
        s_add_u32 s44, s33, 4
        s_lshl_b32 s44, s44, 5
        s_bfe_u32 s46, s32, 0x10001
        s_lshl_b32 s46, s46, 4
        s_add_u32 s44, s44, s46
        v_lshrrev_b32 v20, 2, v0
        v_add_u32 v20, s44, v20
        v_mul_u32_u24 v20, 3072, v20
        v_min_u32 v21, 2, v4
        v_lshl_add_u32 v20, v21, 7, v20
        v_add_u32 v20, s45, v20
        """)
        a.vmem("buffer_load_dword v244, v20, s[64:67], 0 offen", "pf")

    def pf_x_g():
        a("""
        s_lshl_b32 s44, s33, 4
        s_add_u32 s44, s44, s32
        s_lshl_b32 s44, s44, 3
        v_lshrrev_b32 v20, 3, v0
        v_add_u32 v20, s44, v20
        v_mul_u32_u24 v20, 1280, v20
        v_and_b32 v21, 7, v0
        v_lshl_add_u32 v20, v21, 7, v20
        """)
        a.vmem("buffer_load_dword v245, v20, s[28:31], 0 offen offset:256", "pf")

    XA = 208
    for mi in range(4):
        a(f"s_add_u32 s44, s37, {mi}")
        a("s_and_b32 s44, s44, 3")
        a("s_lshl_b32 s46, s36, 2")
        a("s_add_u32 s44, s44, s46")
        a("s_lshl_b32 s44, s44, 11")
        a(f"v_add_u32 v{XA+mi}, s44, v8")
        a(f"v_xor_b32 v{XA+4+mi}, 64, v{XA+mi}")
    WA = 216
    a(f"""
    v_and_b32 v20, 7, v9
    v_lshrrev_b32 v21, 1, v2
    v_mul_u32_u24 v21, 12, v21
    s_mul_i32 s44, s37, 3
    v_add_u32 v21, s44, v21
    v_mul_u32_u24 v22, 768, v20
    v_lshl_add_u32 v22, v4, 3, v22
    v_add_u32 v22, {BR_G}, v22
    s_mul_i32 s44, s36, 12288
    s_sub_u32 s46, 12288, s44
    """)
    for i in range(3):
        a(f"v_add_u32 v23, {i}, v21")
        a("v_xor_b32 v23, v23, v20")
        a(f"v_lshl_add_u32 v23, v23, 5, v22")
        a(f"v_add_u32 v{WA+i}, s44, v23")
        a(f"v_add_u32 v{WA+3+i}, s46, v23")
        a(f"v_add_u32 v{WA+6+i}, {2*BS_G}, v{WA+i}")
        a(f"v_add_u32 v{WA+9+i}, {2*BS_G}, v{WA+3+i}")

    def xaddr_g(mi, ks):
        return XA + 4 * (ks & 1) + mi, ((ks // 2) % 3) * AR_G

    def waddr_g(j, ks):
        slot = ks & 3
        v = WA + (6 if slot >= 2 else 0) + j
        return v, (slot & 1) * BS_G, 6144

    ACC = 32
    FR = 128
    CS, RS = 232, 24
    a("""
    s_lshl_b32 s44, s33, 1
    v_and_b32 v14, 1, v0
    v_add_u32 v14, s44, v14
    v_mul_u32_u24 v14, 3072, v14
    v_bfe_u32 v20, v0, 1, 2
    v_min_u32 v20, 2, v20
    v_lshl_add_u32 v14, v20, 7, v14
    v_add_u32 v14, s45, v14
    s_lshl_b32 s44, s33, 7
    v_add_u32 v15, s44, v0
    v_mul_u32_u24 v15, 1280, v15
    """)

    def mk_roll(ks, wsrds, wstride, extra=None):
        def f():
            if extra:
                extra()
            if PFD and ks + PFD < NK:
                lab = f"L_pf_{a.tag}_{ks}"
                a(f"s_cmp_eq_u32 s32, {ks & 7}")
                a(f"s_cbranch_scc0 {lab}")
                a(f"s_mov_b32 s44, {(ks+PFD)*wstride}")
                for sr in wsrds:
                    a.vmem(f"buffer_load_dword v244, v14, s[{sr}:{sr+3}], s44 offen", "pf", optional=True)
                a.label(lab)
            if PFD and ks % 2 == 0 and (ks + PFD) // 2 + 1 < 10:
                lab = f"L_pfx_{a.tag}_{ks}"
                a(f"s_cmp_eq_u32 s32, {(ks + 1) & 7}")
                a(f"s_cbranch_scc0 {lab}")
                a(f"s_mov_b32 s44, {((ks+PFD)//2+1)*128}")
                a.vmem(f"buffer_load_dword v245, v15, s[28:31], s44 offen", "pf", optional=True)
                a.label(lab)
        return f
    hx = {B2AT: b2_issue, B2AT + 6: b2_finish}
    for bi, (at, k0, nk) in enumerate(PFSCHED):
        hx[at] = (lambda k0=k0, nk=nk, bi=bi: tlb_g(k0, nk, bi))
    hk = {ks: mk_roll(ks, (16, 20), 98304, hx.get(ks)) for ks in range(NK - 1)}
    k1_mainloop(a, 4, 6, dma_g, xaddr_g, waddr_g, ACC, FR, 3, 1, CS, RS, hooks=hk)
    a.stamp(7)
    a("s_mov_b32 s16, 0xffff0000")
    a("s_mov_b32 s17, 0x3acccccd")
    a("v_add_f32 v16, v24, v25")
    a("v_add_f32 v17, v26, v27")
    for v in (16, 17):
        red_g(a, v, 20)
    rowstat_math(a, 16, 20)
    a(f"""
    s_lshl_b32 s44, s36, 2
    s_add_u32 s44, s44, s37
    s_lshl_b32 s44, s44, 8
    s_add_u32 s44, s44, {STAT_LDS}
    v_lshl_add_u32 v20, v6, 4, s44
    ds_write_b128 v20, v[16:19]
    s_mul_i32 s44, s36, 12
    s_mul_i32 s46, s37, 3
    s_add_u32 s44, s44, s46
    s_lshl_b32 s44, s44, 6
    s_add_u32 s44, s44, {CS_LDS}
    v_lshl_add_u32 v20, v2, 4, s44
    ds_write_b128 v20, v[232:235]
    ds_write_b128 v20, v[236:239] offset:64
    ds_write_b128 v20, v[240:243] offset:128
    s_waitcnt lgkmcnt(0)
    s_barrier
    """)
    for mi in range(4):
        a(f"s_add_u32 s44, s37, {mi}")
        a("s_and_b32 s44, s44, 3")
        a("s_lshl_b32 s46, s36, 2")
        a("s_add_u32 s44, s44, s46")
        a("s_lshl_b32 s44, s44, 8")
        a(f"s_add_u32 s44, s44, {STAT_LDS}")
        a("v_lshl_add_u32 v20, v6, 4, s44")
        a(f"ds_read_b128 {vr(128+4*mi,4)}, v20")
    a(f"""
    s_mul_i32 s44, s37, 192
    s_add_u32 s44, s44, {CS_LDS}
    v_lshl_add_u32 v20, v2, 4, s44
    """)
    for i in range(3):
        a(f"ds_read_b128 {vr(144+4*i,4)}, v20 offset:{64*i}")
        a(f"ds_read_b128 {vr(156+4*i,4)}, v20 offset:{768+64*i}")
    a(f"""
    v_lshrrev_b32 v21, 1, v2
    v_lshl_add_u32 v20, v21, 4, v6
    v_lshlrev_b32 v20, 4, v20
    v_and_b32 v21, 1, v2
    v_lshl_add_u32 v20, v21, 3, v20
    s_lshl_b32 s44, s33, 3
    s_lshl_b32 s45, s36, 2
    s_add_u32 s44, s44, s45
    s_mul_i32 s44, s44, {A2_MT}
    s_add_u32 s44, s44, {A2_OFF + 20*1024}
    v_add_u32 v20, s44, v20
    s_mul_i32 s45, s34, 12
    s_mul_i32 s46, s37, 3
    s_add_u32 s45, s45, s46
    s_lshl_b32 s45, s45, 9
    s_add_u32 s46, s45, 512
    s_add_u32 s47, s45, 1024
    """)
    for mi in range(4):
        a(f"s_add_u32 s44, s37, {mi}")
        a("s_and_b32 s44, s44, 3")
        a(f"s_mul_i32 s44, s44, {A2_MT}")
        a(f"v_add_u32 v{24+mi}, s44, v20")
    a("s_waitcnt lgkmcnt(0)")

    def g_epi(swapped):
        for mi in range(4):
            P = 128 + 4 * mi
            for i in range(3):
                g = ACC + 4 * (mi * 6 + (3 + i if swapped else i))
                u = ACC + 4 * (mi * 6 + (i if swapped else 3 + i))
                for h in (0, 2):
                    a(f"v_pk_fma_f32 {vr(g+h,2)}, {vr(144+4*i+h,2)}, {vr(P,2)}, {vr(g+h,2)} op_sel_hi:[1,0,1] neg_lo:[0,1,0] neg_hi:[0,1,0]")
                for h in (0, 2):
                    a(f"v_pk_mul_f32 {vr(g+h,2)}, {vr(g+h,2)}, {vr(P+2,2)} op_sel_hi:[1,0]")
                for e in range(4):
                    a(f"v_exp_f32 v{g+e}, v{g+e}")
                for h in (0, 2):
                    a(f"v_pk_fma_f32 {vr(u+h,2)}, {vr(156+4*i+h,2)}, {vr(P,2)}, {vr(u+h,2)} op_sel_hi:[1,0,1] neg_lo:[0,1,0] neg_hi:[0,1,0]")
                for h in (0, 2):
                    a(f"v_pk_fma_f32 {vr(g+h,2)}, {vr(g+h,2)}, {vr(P+2,2)}, {vr(P+2,2)} op_sel:[0,1,1] op_sel_hi:[1,1,1]")
                for e in range(4):
                    a(f"v_rcp_f32 v{g+e}, v{g+e}")
                a("s_nop 0")
                for h in (0, 2):
                    a(f"v_pk_mul_f32 {vr(g+h,2)}, {vr(g+h,2)}, {vr(u+h,2)}")
                a(f"v_cvt_pk_bf16_f32 v{u}, v{g}, v{g+1}")
                a(f"v_cvt_pk_bf16_f32 v{u+1}, v{g+2}, v{g+3}")
                a(f"buffer_store_dwordx2 {vr(u,2)}, v{24+mi}, s[12:15], s{45+i} offen{ST_FLAGS}")
    a("s_cmp_eq_u32 s36, 0")
    a("s_cbranch_scc0 L_g1_g_sw")
    g_epi(False)
    a("s_branch L_g1_g_end")
    a.label("L_g1_g_sw")
    g_epi(True)
    a.label("L_g1_g_end")
    a.stamp(8, True)
    a.stamp_flush(12, 1, 32)
    a("s_endpgm")

    a.label("L_g1_attn")
    a.tag = "a"
    a.vm = []
    AR_A = 18432
    BR_A = 55296
    BS_A = 15360
    srd(a, 16, 6, 640 * 3840)
    a(f"""
    s_lshl_b32 s42, s32, 10
    s_add_u32 s40, s42, {BR_A}
    s_add_u32 s41, s42, {BR_A+8192}
    s_mul_i32 s45, s34, 160
    """)

    def qkv_off(dst, sInstr):
        a(f"s_lshl_b32 s44, s{sInstr}, 6")
        a(f"v_add_u32 v20, s44, v0")
        divsmall(a, 21, 20, 30)
        a("v_mul_u32_u24 v22, 30, v21")
        a("v_sub_u32 v22, v20, v22")
        divsmall(a, 23, 22, 10)
        a("v_mul_u32_u24 v24, 10, v23")
        a("v_sub_u32 v22, v22, v24")
        a("v_and_b32 v21, 31, v21")
        unswap23(a, 24, 21, 25, 26)
        a("v_mul_u32_u24 v24, 3840, v24")
        a("v_mul_u32_u24 v23, 1280, v23")
        a("v_add_u32 v24, v24, v23")
        a("v_lshl_add_u32 v24, v22, 4, v24")
        a(f"v_add_u32 v{dst}, s45, v24")

    def ajob_off(dst, sJob):
        a("s_lshl_b32 s44, s33, 4")
        a(f"s_add_u32 s44, s44, s{sJob}")
        a("s_max_u32 s44, s44, 2")
        a("s_sub_u32 s44, s44, 2")
        a("s_mul_i32 s44, s44, 10240")
        a(f"v_add_u32 v{dst}, s44, v7")
    qkv_off(12, 32)
    a("s_add_u32 s46, s32, 8")
    a("s_min_u32 s46, s46, 14")
    qkv_off(13, 46)
    ajob_off(10, 32)
    a("s_add_u32 s46, s32, 8")
    ajob_off(11, 46)
    a("s_and_b32 s46, s32, 1")
    a("s_add_u32 s46, s46, 16")
    ajob_off(19, 46)
    a("""
    s_mov_b32 s47, 0
    s_mov_b32 s48, 0
    """)

    def dma_a(st):
        sb = (st & 3) * BS_A
        a(f"s_add_u32 m0, s40, {sb}")
        a("s_nop 0")
        a.vmem("buffer_load_dwordx4 v12, s[16:19], s48 offen lds", ("st", st))
        a("s_cmp_eq_u32 s32, 7")
        lab = f"L_a_s1_{a.tag}_{st}"
        a(f"s_cbranch_scc1 {lab}")
        a(f"s_add_u32 m0, s41, {sb}")
        a("s_nop 0")
        a.vmem("buffer_load_dwordx4 v13, s[16:19], s48 offen lds", ("st", st), optional=True)
        a.label(lab)
        a("s_add_u32 s48, s48, 122880")
        if st % 2 == 0:
            ab = ((st // 2) % 3) * AR_A
            lab = f"L_a_s4_{a.tag}_{st}"
            a("s_cmp_ge_u32 s32, 6")
            a(f"s_cbranch_scc1 {lab}_o")
            a.label(lab)
            a.vm.append((("st", st), True))
            a.ool.append(f"{lab}_o:\ns_add_u32 m0, s42, {ab + 10*1024}\ns_nop 0\nbuffer_load_dwordx4 v19, s[28:31], s47 offen lds\ns_branch {lab}")
            a(f"s_add_u32 m0, s42, {ab}")
            a("s_nop 0")
            a.vmem("buffer_load_dwordx4 v10, s[28:31], s47 offen lds", ("st", st))
            a(f"s_add_u32 m0, s42, {ab+8192}")
            a("s_nop 0")
            a.vmem("buffer_load_dwordx4 v11, s[28:31], s47 offen lds", ("st", st))
            a("s_add_u32 s47, s47, 128")

    a.stamp(1)
    for st in range(4):
        dma_a(st)
    def tlb_a(k0=4, nk=16, tg=0):
        a(f"""
        s_mul_i32 s44, s33, {2*nk}
        s_add_u32 s44, s44, {32*k0}
        v_min_u32 v20, {2*nk-1}, v0
        v_add_u32 v20, s44, v20
        v_mul_u32_u24 v20, 3840, v20
        v_add_u32 v20, s45, v20
        s_mul_i32 s44, s32, 1280
        s_cmp_lt_u32 s32, 3
        s_cbranch_scc0 L_tlb_a0_{a.tag}_{tg}
        """)
        a.vmem("buffer_load_dword v244, v20, s[16:19], s44 offen", "pf", optional=True)
        a.label(f"L_tlb_a0_{a.tag}_{tg}")
        if TLBPF >= 3:
            a(f"""
            s_sub_u32 s44, s32, 3
            s_cmp_lt_u32 s44, 3
            s_cbranch_scc0 L_tlb_a1_{a.tag}_{tg}
            s_mul_i32 s44, s44, 1280
            """)
            a.vmem("buffer_load_dword v244, v20, s[16:19], s44 offen offset:128", "pf", optional=True)
            a.label(f"L_tlb_a1_{a.tag}_{tg}")
    if TLBPF and TLBAT < 0:
        tlb_a()

    def pf_w_a():
        a("""
        s_add_u32 s44, s33, 4
        s_lshl_b32 s44, s44, 5
        s_lshl_b32 s46, s37, 3
        s_add_u32 s44, s44, s46
        v_lshrrev_b32 v20, 3, v0
        v_add_u32 v20, s44, v20
        v_mul_u32_u24 v20, 3840, v20
        v_and_b32 v21, 7, v0
        v_min_u32 v21, 5, v21
        v_lshrrev_b32 v22, 1, v21
        v_mul_u32_u24 v22, 1280, v22
        v_and_b32 v21, 1, v21
        v_lshl_add_u32 v22, v21, 7, v22
        v_add3_u32 v20, v20, v22, s45
        """)
        a.vmem("buffer_load_dword v244, v20, s[16:19], 0 offen", "pf")

    def pf_x_a():
        a("""
        s_lshl_b32 s44, s33, 4
        s_add_u32 s44, s44, s32
        s_add_u32 s44, s44, 8
        s_lshl_b32 s44, s44, 3
        v_lshrrev_b32 v20, 3, v0
        v_add_u32 v20, s44, v20
        v_mul_u32_u24 v20, 1280, v20
        v_and_b32 v21, 7, v0
        v_lshl_add_u32 v20, v21, 7, v20
        """)
        a.vmem("buffer_load_dword v245, v20, s[28:31], 0 offen offset:256", "pf")

    def frag_of(mi, dst):
        a(f"s_add_u32 s44, s37, {mi}")
        a("s_sub_u32 s46, s44, 5")
        a("s_cmp_ge_u32 s44, 5")
        a("s_cselect_b32 s46, s46, s44")
        if mi < 4:
            a("s_and_b32 s44, s44, 3")
            a("s_add_u32 s44, s44, 5")
        else:
            a("s_mov_b32 s44, 4")
        a("s_cmp_eq_u32 s36, 0")
        a(f"s_cselect_b32 s{dst}, s46, s44")

    for mi in range(5):
        frag_of(mi, 44)
        a(f"s_mul_i32 s{70+mi}, s44, {16*488}")
        a("s_lshl_b32 s46, s44, 8")
        a(f"s_add_u32 s{75+mi}, s46, {STAT_LDS}")
        a("s_lshl_b32 s44, s44, 11")
        a(f"v_add_u32 v{XA+mi}, s44, v8")
        a(f"v_xor_b32 v{XA+5+mi}, 64, v{XA+mi}")
    WAa = 220
    a(f"""
    v_mul_u32_u24 v20, 480, v9
    v_lshl_add_u32 v20, v4, 3, v20
    v_add_u32 v20, {BR_A}, v20
    """)
    for j in range(4):
        a("s_lshl_b32 s44, s36, 1")
        a(f"s_add_u32 s44, s44, {j}")
        a("s_and_b32 s44, s44, 3")
        a("s_lshl_b32 s46, s37, 2")
        a("s_add_u32 s44, s44, s46")
        if j in (1, 3):
            a(f"s_mov_b32 s{50 if j == 1 else 51}, s44")
        a("s_lshl_b32 s44, s44, 5")
        a(f"v_add_u32 v{WAa+j}, s44, v20")

    def xaddr_a(mi, ks):
        return XA + 5 * (ks & 1) + mi, ((ks // 2) % 3) * AR_A

    def waddr_a(j, ks):
        return WAa + j, (ks & 3) * BS_A, 3840

    CSa, RSa = 232, 24
    T32 = 32 * 488
    a("""
    v_mul_u32_u24 v21, 488, v6
    v_lshl_add_u32 v21, v2, 3, v21
    """)
    for j in range(4):
        a("s_lshl_b32 s44, s36, 1")
        a(f"s_add_u32 s44, s44, {j}")
        a("s_and_b32 s44, s44, 3")
        a("s_lshl_b32 s46, s37, 2")
        a("s_add_u32 s44, s44, s46")
        a("s_lshl_b32 s46, s44, 5")
        a(f"v_add_u32 v{200+j}, s46, v21")
        a("s_lshl_b32 s44, s44, 6")
        a(f"s_add_u32 s44, s44, {CS_LDS}")
        a(f"v_lshl_add_u32 v{224+j}, v2, 4, s44")
    a(f"""
    v_lshl_add_u32 v20, v6, 1, s36
    v_add_u32 v21, 16, v20
    v_subrev_u32 v22, 16, v20
    v_max_i32 v22, 0, v22
    s_mul_i32 s44, s37, 40
    v_mul_u32_u24 v21, 488, v21
    v_mul_u32_u24 v22, 488, v22
    v_lshl_add_u32 v23, v2, 4, s44
    v_add_u32 v204, v21, v23
    v_add_u32 v205, v22, v23
    v_lshl_add_u32 v20, v2, 2, v3
    v_lshl_add_u32 v20, v20, 1, s36
    v_add_u32 v21, 16, v20
    v_subrev_u32 v22, 16, v20
    v_max_i32 v22, 0, v22
    v_mul_u32_u24 v21, 488, v21
    v_mul_u32_u24 v22, 488, v22
    v_lshl_add_u32 v23, v4, 3, s44
    v_add_u32 v206, v21, v23
    v_add_u32 v207, v22, v23
    s_mul_i32 s44, s34, 80
    s_mul_i32 s46, s37, 20
    s_add_u32 s44, s44, s46
    v_lshl_add_u32 v23, v2, 2, s44
    v_lshrrev_b32 v21, 3, v23
    v_lshlrev_b32 v21, 8, v21
    v_and_b32 v23, 4, v23
    v_lshl_add_u32 v21, v23, 1, v21
    v_lshrrev_b32 v23, 3, v6
    s_lshl_b32 s46, s33, 3
    v_add_u32 v23, s46, v23
    v_mul_u32_u24 v23, {A2_MT}, v23
    v_and_b32 v22, 7, v6
    v_lshl_add_u32 v22, v22, 1, s36
    v_lshl_add_u32 v23, v22, 4, v23
    v_add_u32 v218, v23, v21
    s_add_u32 s44, s44, 16
    s_lshr_b32 s46, s44, 3
    s_lshl_b32 s46, s46, 8
    s_and_b32 s44, s44, 4
    s_lshl_b32 s44, s44, 1
    s_add_u32 s46, s46, s44
    v_add_u32 v219, s46, v23
    v_lshlrev_b32 v20, 2, v2
    v_add_u32 v21, 9, v6
    """)
    for r in range(4):
        a(f"v_add_u32 v22, {r}, v20")
        a(f"v_cmp_ge_u32 s[{80+2*r}:{81+2*r}], v22, v21")
        a(f"v_cmp_le_u32 s[{88+2*r}:{89+2*r}], v22, v6")
        a(f"v_add_u32 v22, 7, v22")
        a(f"v_cmp_ge_u32 s[38:39], v22, v6")
        a("s_nop 1")
        a(f"s_and_b64 s[{88+2*r}:{89+2*r}], s[{88+2*r}:{89+2*r}], s[38:39]")
    a("v_cmp_gt_u32 s[38:39], 3, v2")
    a("v_cmp_gt_u32 s[96:97], 2, v2")
    hx = {B2AT: b2_issue, B2AT + 6: b2_finish}
    for bi, (at, k0, nk) in enumerate(PFSCHED):
        hx[at] = (lambda k0=k0, nk=nk, bi=bi: tlb_a(k0, nk, bi))
    hk = {ks: mk_roll(ks, (16,), 122880, hx.get(ks)) for ks in range(NK - 1)}
    vm0 = list(a.vm)
    a("s_cmp_eq_u32 s36, 0")
    a("s_cbranch_scc0 L_a_loop1")
    a.tag = "a0"
    k1_mainloop(a, 5, 4, dma_a, xaddr_a, waddr_a, ACC, FR, 2, 2, CSa, RSa, hooks=hk, mstat=112, NMM=5, mslots=(0,))
    a("s_branch L_a_loopend")
    a.label("L_a_loop1")
    a.tag = "a1"
    a.vm = vm0
    k1_mainloop(a, 5, 4, dma_a, xaddr_a, waddr_a, ACC, FR, 2, 2, CSa, RSa, hooks=hk, mstat=112, NMM=4, mslots=(0, 4))
    a.label("L_a_loopend")
    a.stamp(7)
    a("s_mov_b32 s16, 0xffff0000")
    a("s_mov_b32 s17, 0x3acccccd")
    a("""
    s_nop 7
    v_lshrrev_b32 v21, 2, v6
    v_cmp_eq_u32 s[40:41], v21, v2
    v_and_b32 v21, 3, v6
    v_cmp_eq_u32 s[42:43], 1, v21
    v_cmp_eq_u32 s[44:45], 2, v21
    v_cmp_eq_u32 s[46:47], 3, v21
    s_nop 1
    """)
    for mi, S in ((0, 12), (1, 16)):
        R0, Q0 = 112 + 8 * mi, 116 + 8 * mi
        a(f"v_mov_b32 v{S}, v{R0}")
        a(f"v_cndmask_b32 v{S+1}, v{Q0}, v{Q0+1}, s[42:43]")
        a(f"v_cndmask_b32 v{S+1}, v{S+1}, v{Q0+2}, s[44:45]")
        a(f"v_cndmask_b32 v{S+1}, v{S+1}, v{Q0+3}, s[46:47]")
        a(f"v_cndmask_b32 v{S+1}, 0, v{S+1}, s[40:41]")
        red_g(a, S + 1, 20)
    rowstat_math(a, 12, 20)
    rowstat_math(a, 16, 20)
    a(f"""
    v_lshl_add_u32 v20, v6, 4, s75
    ds_write_b128 v20, v[12:15]
    s_cmp_eq_u32 s36, 0
    s_cbranch_scc1 L_a_nos1
    v_lshl_add_u32 v20, v6, 4, s79
    ds_write_b128 v20, v[16:19]
    L_a_nos1:
    s_lshl_b32 s44, s37, 2
    s_lshl_b32 s46, s36, 1
    s_add_u32 s44, s44, s46
    s_lshl_b32 s44, s44, 6
    s_add_u32 s44, s44, {CS_LDS}
    v_lshl_add_u32 v20, v2, 4, s44
    ds_write_b128 v20, v[232:235]
    ds_write_b128 v20, v[236:239] offset:64
    s_waitcnt lgkmcnt(0)
    s_barrier
    """)
    a.stamp(9)
    a("v_lshlrev_b32 v21, 4, v6")
    for mi in range(5):
        a(f"v_add_u32 v20, s{75+mi}, v21")
        a(f"ds_read_b64 {vr(128+2*mi,2)}, v20")
    for j in range(4):
        a(f"ds_read_b128 {vr(140+4*j,4)}, v{224+j}")
    a("s_waitcnt lgkmcnt(0)")
    for j in range(4):
        if j in (1, 3):
            a(f"s_cmp_eq_u32 s{50 if j == 1 else 51}, 15")
            a(f"s_cbranch_scc1 L_g1_a_skip{j}")
        for mi in range(5):
            P = 128 + 2 * mi
            acc = ACC + 4 * (mi * 4 + j)
            if mi == 4:
                a("s_cmp_eq_u32 s36, 0")
                a(f"s_cbranch_scc0 L_g1_a_skip{j}")
            for h in (0, 2):
                a(f"v_pk_fma_f32 {vr(acc+h,2)}, {vr(140+4*j+h,2)}, {vr(P,2)}, {vr(acc+h,2)} op_sel_hi:[1,0,1] neg_lo:[0,1,0] neg_hi:[0,1,0]")
            for h in (0, 2):
                a(f"v_pk_mul_f32 {vr(acc+h,2)}, {vr(acc+h,2)}, {vr(P,2)} op_sel:[0,1] op_sel_hi:[1,1]")
            a(f"v_cvt_pk_bf16_f32 v{acc}, v{acc}, v{acc+1}")
            a(f"v_cvt_pk_bf16_f32 v{acc+1}, v{acc+2}, v{acc+3}")
            a(f"v_add_u32 v{acc+2}, s{70+mi}, v{200+j}")
            a(f"ds_write_b64 v{acc+2}, {vr(acc,2)}")
        a.label(f"L_g1_a_skip{j}")
    a("s_waitcnt lgkmcnt(0)")
    a("s_barrier")
    a.stamp(10)
    KF, VT0, VT1, QF, SS, PP, OO = 32, 52, 62, 72, 88, 120, 136
    for qb in range(4):
        a(f"ds_read_b64 {vr(QF+4*qb,2)}, v204 offset:{qb*T32}")
        a(f"ds_read_b64 {vr(QF+4*qb+2,2)}, v204 offset:{qb*T32+8}")
    a(f"ds_read_b64 {vr(KF,2)}, v205 offset:160")
    a(f"ds_read_b64 {vr(KF+2,2)}, v205 offset:168")
    for t in range(4):
        a(f"ds_read_b64 {vr(KF+4+4*t,2)}, v204 offset:{t*T32+160}")
        a(f"ds_read_b64 {vr(KF+4+4*t+2,2)}, v204 offset:{t*T32+168}")
    a(f"ds_read_b64_tr_b16 {vr(VT0,2)}, v207 offset:320")
    a(f"ds_read_b64_tr_b16 {vr(VT1,2)}, v207 offset:352")
    for t in range(4):
        a(f"ds_read_b64_tr_b16 {vr(VT0+2+2*t,2)}, v206 offset:{t*T32+320}")
        a(f"ds_read_b64_tr_b16 {vr(VT1+2+2*t,2)}, v206 offset:{t*T32+352}")
    a("s_cmp_eq_u32 s33, 0")
    for r in range(4):
        a(f"s_cselect_b64 s[{60+2*r}:{61+2*r}], 0, s[{80+2*r}:{81+2*r}]")
    a("""
    s_mov_b32 s18, 0x3ea52b5c
    s_mov_b32 s19, 0x3ea52b5c
    v_mov_b32 v29, 0xff800000
    s_waitcnt lgkmcnt(10)
    """)
    a.stamp(11)
    for qb in range(4):
        q = QF + 4 * qb
        a(f"v_cndmask_b32 v{q}, 0, v{q}, s[38:39]")
        a(f"v_cndmask_b32 v{q+1}, 0, v{q+1}, s[38:39]")
        a(f"v_cndmask_b32 v{q+2}, 0, v{q+2}, s[96:97]")
        a(f"v_cndmask_b32 v{q+3}, 0, v{q+3}, s[96:97]")
    a("s_nop 1")
    for qb in range(4):
        a(f"v_mfma_f32_16x16x32_bf16 {vr(SS+8*qb,4)}, {vr(KF+4*qb,4)}, {vr(QF+4*qb,4)}, 0")
        a(f"v_mfma_f32_16x16x32_bf16 {vr(SS+8*qb+4,4)}, {vr(KF+4*qb+4,4)}, {vr(QF+4*qb,4)}, 0")
    a("s_nop 7")
    for qb in range(4):
        S = SS + 8 * qb
        mb = 60 if qb == 0 else 80
        for r in range(4):
            a(f"v_cndmask_b32 v{S+r}, v29, v{S+r}, s[{mb+2*r}:{mb+1+2*r}]")
            a(f"v_cndmask_b32 v{S+4+r}, v29, v{S+4+r}, s[{88+2*r}:{89+2*r}]")
        mx, t = 24 + (qb & 1) * 2, 25 + (qb & 1) * 2
        a(f"v_max3_f32 v{mx}, v{S}, v{S+1}, v{S+2}")
        a(f"v_max3_f32 v{mx}, v{mx}, v{S+3}, v{S+4}")
        a(f"v_max3_f32 v{mx}, v{mx}, v{S+5}, v{S+6}")
        a(f"v_max_f32 v{mx}, v{mx}, v{S+7}")
        a(f"v_mov_b32 v{t}, v{mx}")
        a("s_nop 1")
        a(f"v_permlane32_swap_b32 v{mx}, v{t}")
        a("s_nop 1")
        a(f"v_max_f32 v{mx}, v{mx}, v{t}")
        a(f"v_mov_b32 v{t}, v{mx}")
        a("s_nop 1")
        a(f"v_permlane16_swap_b32 v{mx}, v{t}")
        a("s_nop 1")
        a(f"v_max_f32 v{mx}, v{mx}, v{t}")
        a(f"v_mul_f32 v{mx}, s18, v{mx}")
        for h in range(0, 8, 2):
            a(f"v_pk_fma_f32 {vr(S+h,2)}, {vr(S+h,2)}, s[18:19], {vr(mx,2)} op_sel_hi:[1,1,0] neg_lo:[0,0,1] neg_hi:[0,0,1]")
        for e in range(8):
            a(f"v_exp_f32 v{S+e}, v{S+e}")
        a("s_nop 0")
        a(f"v_pk_add_f32 {vr(mx,2)}, {vr(S,2)}, {vr(S+2,2)}")
        a(f"v_pk_add_f32 {vr(30,2)}, {vr(S+4,2)}, {vr(S+6,2)}")
        a(f"v_pk_add_f32 {vr(mx,2)}, {vr(mx,2)}, {vr(30,2)}")
        a(f"v_add_f32 v{mx}, v{mx}, v{t}")
        red_g(a, mx, t)
        a(f"v_rcp_f32 v{mx}, v{mx}")
        a("s_nop 0")
        for h in range(0, 8, 2):
            a(f"v_pk_mul_f32 {vr(S+h,2)}, {vr(S+h,2)}, {vr(mx,2)} op_sel_hi:[1,0]")
        for h in range(4):
            a(f"v_cvt_pk_bf16_f32 v{PP+4*qb+h}, v{S+2*h}, v{S+2*h+1}")
    a.stamp(12)
    a("s_waitcnt lgkmcnt(0)")
    a("s_nop 1")
    for qb in range(4):
        a(f"v_mfma_f32_16x16x32_bf16 {vr(OO+8*qb,4)}, {vr(VT0+2*qb,4)}, {vr(PP+4*qb,4)}, 0")
        a(f"v_mfma_f32_16x16x32_bf16 {vr(OO+8*qb+4,4)}, {vr(VT1+2*qb,4)}, {vr(PP+4*qb,4)}, 0")
    a("s_nop 7")
    for qb in range(4):
        O = OO + 8 * qb
        a(f"v_cvt_pk_bf16_f32 v{O}, v{O}, v{O+1}")
        a(f"v_cvt_pk_bf16_f32 v{O+1}, v{O+2}, v{O+3}")
        a(f"v_cvt_pk_bf16_f32 v{O+4}, v{O+4}, v{O+5}")
        a(f"v_cvt_pk_bf16_f32 v{O+5}, v{O+6}, v{O+7}")
        a(f"s_mov_b32 s44, {A2_OFF + qb*2*A2_MT}")
        a(f"buffer_store_dwordx2 {vr(O,2)}, v218, s[12:15], s44 offen{ST_FLAGS}")
    a("s_mov_b64 exec, 0xffff")
    for qb in range(4):
        O = OO + 8 * qb
        a(f"s_mov_b32 s44, {A2_OFF + qb*2*A2_MT}")
        a(f"buffer_store_dwordx2 {vr(O+4,2)}, v219, s[12:15], s44 offen{ST_FLAGS}")
    a("s_mov_b64 exec, -1")
    a.stamp(8, True)
    a.stamp_flush(12, 1, 32)
    a.label("L_g1_done")
    a("s_endpgm")
    for blk in a.ool:
        a(blk)
    a.ool = []


def gen_k2(a):
    a.raw(".p2align 8")
    a.label("g2_kernel")
    a.kidx = 2
    a.vm = []
    a("""
    s_cmp_ge_u32 s2, 256
    s_cbranch_scc1 L_g2_done
    """)
    a.stamp(0)
    a("""
    s_load_dwordx2 s[4:5], s[0:1], 0
    s_load_dwordx2 s[10:11], s[0:1], 56
    s_load_dwordx2 s[28:29], s[0:1], 72
    v_lshrrev_b32 v1, 6, v0
    v_and_b32 v0, 63, v0
    s_nop 0
    v_readfirstlane_b32 s32, v1
    s_and_b32 s33, s2, 7
    s_lshr_b32 s3, s2, 3
    s_and_b32 s34, s3, 7
    s_lshr_b32 s3, s3, 3
    s_lshl_b32 s33, s33, 2
    s_add_u32 s33, s33, s3
    v_lshrrev_b32 v2, 4, v0
    v_lshlrev_b32 v5, 4, v0
    """)
    a(f"""
    s_mul_i32 s40, s32, 10
    s_lshl_b32 s41, s32, 3
    s_add_u32 s41, s41, 4
    s_cmp_lt_u32 s32, 2
    s_cselect_b32 s40, s40, s41
    s_lshl_b32 s47, s40, 10
    s_mul_i32 s48, s34, 68
    s_add_u32 s48, s48, s40
    s_mul_i32 s48, s48, 5120
    s_add_u32 s48, s48, {B2_OFF}
    s_mul_i32 s42, s32, 20480
    s_mul_i32 s45, s34, 160
    """)
    for mi in range(4):
        a(f"s_lshl_b32 s44, s33, 2")
        a(f"s_add_u32 s44, s44, {mi}")
        a(f"s_mul_i32 s44, s44, {A2_MT}")
        if A2_OFF:
            a(f"s_add_u32 s44, s44, {A2_OFF}")
        a(f"v_add_u32 v{10+mi}, s44, v5")
    a("v_add_u32 v14, 4096, v5")
    a("s_waitcnt lgkmcnt(0)")
    srd(a, 12, 28, WS_BYTES)
    srd(a, 20, 4, 2048 * 1280)
    srd(a, 24, 10, 2048 * 1280)
    ACC = 32
    ST = 112

    def issue(st):
        b = ST + 36 * (st & 3)
        for mi in range(4):
            a.vmem(f"buffer_load_dwordx4 {vr(b+4*mi,4)}, v{10+mi}, s[12:15], s47 offen", ("st", st))
        for j in range(4):
            a.vmem(f"buffer_load_dwordx4 {vr(b+16+4*j,4)}, v5, s[12:15], s48 offen offset:{1024*j}", ("st", st))
        a.vmem(f"buffer_load_dwordx4 {vr(b+32,4)}, v14, s[12:15], s48 offen", ("st", st))
        a("s_add_u32 s47, s47, 1024")
        a("s_add_u32 s48, s48, 5120")

    def body(n):
        a.vm = []
        a.stamp(1)
        for st in range(4):
            issue(st)
        a.stamp(2)
        for s in range(n):
            b = ST + 36 * (s & 3)
            a.wait_vm(("st", s))
            if s in (0, 3, 7):
                a.stamp({0: 3, 3: 4, 7: 5}[s])
            for j in range(5):
                for mi in range(4):
                    acc = ACC + 4 * (mi * 5 + j)
                    c = "0" if s == 0 else vr(acc, 4)
                    a(f"v_mfma_f32_16x16x32_bf16 {vr(acc,4)}, {vr(b+16+4*j,4)}, {vr(b+4*mi,4)}, {c}")
            if s + 4 < n:
                issue(s + 4)

    a("s_cmp_lt_u32 s32, 2")
    a("s_cbranch_scc0 L_g2_h")
    body(10)
    a("s_branch L_g2_red")
    a.label("L_g2_h")
    body(8)
    a.label("L_g2_red")
    a.stamp(6)
    for r in range(3):
        a(f"s_add_u32 s40, s32, {8*r}")
        a("s_min_u32 s40, s40, 19")
        a("s_mul_i32 s41, s40, 52")
        a("s_lshr_b32 s41, s41, 8")
        a("s_mul_i32 s43, s41, 5")
        a("s_sub_u32 s43, s40, s43")
        a(f"""
        s_lshl_b32 s44, s33, 6
        s_lshl_b32 s41, s41, 4
        s_add_u32 s44, s44, s41
        v_and_b32 v21, 15, v0
        v_add_u32 v21, s44, v21
        v_mul_u32_u24 v21, 1280, v21
        v_lshl_add_u32 v21, v2, 3, v21
        s_lshl_b32 s43, s43, 5
        s_add_u32 s43, s43, s45
        v_add_u32 v{112+r}, s43, v21
        buffer_load_dwordx2 {vr(116+2*r,2)}, v{112+r}, s[20:23], 0 offen
        """)
    a("v_add_u32 v20, s42, v5")
    for st in range(20):
        a(f"ds_write_b128 v20, {vr(ACC+4*st,4)} offset:{st*1024}")
    a("s_waitcnt lgkmcnt(0)")
    a("s_barrier")
    a.stamp(7, True)
    a.stamp_flush(12, 2, 32)
    a("s_mov_b32 s16, 0xffff0000")
    a("s_lshl_b32 s40, s32, 10")
    a("v_add_u32 v20, s40, v5")
    a("v_add_u32 v21, 40960, v20")
    a("v_add_u32 v22, 81920, v20")
    a("v_add_u32 v23, 122880, v20")
    for r in range(3):
        if r == 2:
            a("s_cmp_ge_u32 s32, 4")
            a("s_cbranch_scc1 L_g2_r2skip")
        for w in range(8):
            base = 128 + 32 * r + 4 * w
            a(f"ds_read_b128 {vr(base,4)}, v{20+(w>>1)} offset:{(w&1)*20480 + r*8192}")
    a.label("L_g2_r2skip")
    a("s_waitcnt vmcnt(0) lgkmcnt(0)")
    for r in range(3):
        if r == 2:
            a("s_cmp_ge_u32 s32, 4")
            a("s_cbranch_scc1 L_g2_done")
        B = 128 + 32 * r
        X = 116 + 2 * r
        for h in (0, 2):
            a(f"v_pk_add_f32 {vr(B+h,2)}, {vr(B+h,2)}, {vr(B+4+h,2)}")
            a(f"v_pk_add_f32 {vr(B+8+h,2)}, {vr(B+8+h,2)}, {vr(B+12+h,2)}")
            a(f"v_pk_add_f32 {vr(B+16+h,2)}, {vr(B+16+h,2)}, {vr(B+20+h,2)}")
            a(f"v_pk_add_f32 {vr(B+24+h,2)}, {vr(B+24+h,2)}, {vr(B+28+h,2)}")
            a(f"v_pk_add_f32 {vr(B+8+h,2)}, {vr(B+8+h,2)}, {vr(B+16+h,2)}")
            a(f"v_pk_add_f32 {vr(B+8+h,2)}, {vr(B+8+h,2)}, {vr(B+24+h,2)}")
        for p in range(2):
            a0, a1, b0, b1 = B + 2 * p, B + 1 + 2 * p, B + 8 + 2 * p, B + 9 + 2 * p
            a(f"v_cvt_pk_bf16_f32 v25, v{a0}, v{a1}")
            a(f"v_cvt_pk_bf16_f32 v26, v{b0}, v{b1}")
            a(f"v_lshlrev_b32 v{a0}, 16, v25")
            a(f"v_and_b32 v{a1}, s16, v25")
            a(f"v_lshlrev_b32 v{b0}, 16, v26")
            a(f"v_and_b32 v{b1}, s16, v26")
            a(f"v_lshlrev_b32 v26, 16, v{X+p}")
            a(f"v_and_b32 v27, s16, v{X+p}")
            a(f"v_pk_add_f32 {vr(a0,2)}, {vr(a0,2)}, v[26:27]")
            a(f"v_cvt_pk_bf16_f32 v25, v{a0}, v{a1}")
            a(f"v_lshlrev_b32 v{a0}, 16, v25")
            a(f"v_and_b32 v{a1}, s16, v25")
            a(f"v_pk_add_f32 {vr(a0,2)}, {vr(a0,2)}, {vr(b0,2)}")
            a(f"v_cvt_pk_bf16_f32 v{B+16+p}, v{a0}, v{a1}")
        a(f"buffer_store_dwordx2 {vr(B+16,2)}, v{112+r}, s[24:27], 0 offen")
    a.label("L_g2_done")
    a("s_endpgm")


def kd(name, vgpr, sgpr=102):
    acc = (vgpr + 3) // 4 * 4
    return f""".p2align 6
.amdhsa_kernel {name}
  .amdhsa_next_free_vgpr {vgpr}
  .amdhsa_next_free_sgpr {sgpr}
  .amdhsa_accum_offset {acc}
  .amdhsa_group_segment_fixed_size 0
  .amdhsa_kernarg_size 80
  .amdhsa_user_sgpr_count 2
  .amdhsa_user_sgpr_kernarg_segment_ptr 1
  .amdhsa_system_sgpr_workgroup_id_x 1
.end_amdhsa_kernel
"""


def main(outpath):
    a = Asm()
    a.raw("; @launch kernel=g1_kernel grid=(256,1,1) block=(512,1,1) lds=163840")
    a.raw("; @launch kernel=g2_kernel grid=(256,1,1) block=(512,1,1) lds=163840")
    a.raw('.amdgcn_target "amdgcn-amd-amdhsa--gfx950"')
    a.raw(".text")
    for k in ("g1_kernel", "g2_kernel"):
        a.raw(f".globl {k}")
        a.raw(f".type {k},@function")
    gen_k1(a)
    gen_k2(a)
    a.label("L_code_end")
    a.raw('.section .rodata,"a"')
    a.raw(kd("g1_kernel", 256))
    a.raw(kd("g2_kernel", 256))
    open(outpath, "w").write(a.text())


if __name__ == "__main__":
    if len(sys.argv) > 2 and sys.argv[2] == "stamp":
        STAMP = True
    main(sys.argv[1] if len(sys.argv) > 1 else f"cdna_kernels/{NAME}.s")
```

```python
import sys, os

NAME = "parallel_sum__sliding_local_dilated__glu_gated_glu__prompt"
A2_OFF = 0
B2_OFF = 9 << 20
WS_BYTES = 16 << 20
A2_MT = 68 * 1024
STAMP = False
DBGSTAMP = os.environ.get("DBGSTAMP", "") == "1"
ST_FLAGS = os.environ.get("STF", "")
B2F = os.environ.get("B2F", " sc0 sc1")
PRIO = int(os.environ.get("PRIO", "0"))
RDT = int(os.environ.get("RDT", "6"))
CODEPF = int(os.environ.get("CODEPF", "1"))
XMAP = int(os.environ.get("XMAP", "1"))
PFD = int(os.environ.get("PFD", "0"))
XP = os.environ.get("XP", "")
TLBPF = int(os.environ.get("TLBPF", "3"))
TLBAT = int(os.environ.get("TLBAT", "0"))
B2AT = int(os.environ.get("B2AT", "9"))
PFSCHED = eval(os.environ.get("PFSCHED", "[(0,4,6),(3,10,5),(6,15,5)]"))


class Asm:
    def __init__(self):
        self.lines = []
        self.vm = []
        self.ool = []

    def __call__(self, s):
        for ln in s.strip("\n").split("\n"):
            ln = ln.strip()
            if ln:
                self.lines.append("    " + ln)

    def label(self, l):
        self.lines.append(l + ":")

    def raw(self, s):
        self.lines.append(s)

    def text(self):
        return "\n".join(l for l in self.lines if l.strip() != "#CHUNK") + "\n"

    def capture(self, fn, *args):
        save = self.lines
        self.lines = []
        fn(*args)
        got = self.lines
        self.lines = save
        chunks, cur = [], []
        for ln in got:
            if ln.strip() == "#CHUNK":
                if cur:
                    chunks.append(cur)
                cur = []
            else:
                cur.append(ln)
        if cur:
            chunks.append(cur)
        return chunks

    def chunk(self):
        self.lines.append("#CHUNK")

    def vmem(self, s, tag, optional=False):
        self(s)
        self.vm.append((tag, optional))
        if not optional:
            self.chunk()

    def vm_count_after(self, tag):
        idx = max([i for i, (t, o) in enumerate(self.vm) if t == tag], default=-1)
        if idx < 0:
            return None
        return sum(1 for (t, o) in self.vm[idx + 1:] if not o)

    def wait_vm(self, tag, lgkm=False):
        n = self.vm_count_after(tag)
        parts = []
        if n is not None:
            assert n < 64
            parts.append(f"vmcnt({n})")
            idx = max([i for i, (t, o) in enumerate(self.vm) if t == tag])
            self.vm = self.vm[idx + 1:]
        if lgkm:
            parts.append("lgkmcnt(0)")
        if parts:
            self("s_waitcnt " + " ".join(parts))

    def stamp(self, n, last=False):
        if not STAMP:
            return
        self("s_memtime s[98:99]")
        self("s_waitcnt lgkmcnt(0)")
        if n == 0:
            self("s_mov_b32 s100, s98")
            self("s_memrealtime s[98:99]")
            self("s_waitcnt lgkmcnt(0)")
            self("s_mov_b32 s101, s98")
            return
        if n == 1:
            self("v_mov_b32 v1, s101")
            self("s_lshl_b32 s101, s2, 3")
            self("s_add_u32 s101, s101, s32")
            self("s_lshl_b32 s101, s101, 6")
            self(f"s_add_u32 s101, s101, {(12+self.kidx)<<20}")
            self("v_mov_b32 v255, 0")
            self("buffer_store_dword v1, v255, s[12:15], s101 offen offset:56")
            self("s_nop 1")
            self("v_mov_b32 v1, s100")
            self("buffer_store_dword v1, v255, s[12:15], s101 offen offset:0")
            self("s_nop 1")
            self.vm.append(("stamp", True)); self.vm.append(("stamp", True))
        self("v_mov_b32 v1, s98")
        self("v_mov_b32 v255, 0")
        self(f"buffer_store_dword v1, v255, s[12:15], s101 offen offset:{4*n}")
        self("s_nop 1")
        self.vm.append(("stamp", True))
        if last:
            self("s_memrealtime s[98:99]")
            self("s_waitcnt lgkmcnt(0)")
            self("v_mov_b32 v1, s98")
            self("buffer_store_dword v1, v255, s[12:15], s101 offen offset:60")
            self("s_nop 1")

    def stamp_flush(self, srd_ws, kidx, swave):
        return


def srd(a, d, base, nbytes):
    a(f"s_mov_b32 s{d}, s{base}")
    a(f"s_mov_b32 s{d+1}, s{base+1}")
    a(f"s_mov_b32 s{d+2}, {nbytes}")
    a(f"s_mov_b32 s{d+3}, 0x00020000")


def vr(b, n):
    return f"v[{b}:{b+n-1}]"


def unswap23(a, dst, src, t0, t1):
    a(f"v_lshrrev_b32 v{t0}, 1, v{src}")
    a(f"v_and_b32 v{t0}, 4, v{t0}")
    a(f"v_lshlrev_b32 v{t1}, 1, v{src}")
    a(f"v_and_b32 v{t1}, 8, v{t1}")
    a(f"v_and_b32 v{dst}, 0x13, v{src}")
    a(f"v_or3_b32 v{dst}, v{dst}, v{t0}, v{t1}")


def divsmall(a, q, p, d, lim=1024):
    m = (65536 + d - 1) // d
    for x in range(lim):
        assert (x * m) >> 16 == x // d, (d, x)
    a(f"v_mul_u32_u24 v{q}, {m}, v{p}")
    a(f"v_lshrrev_b32 v{q}, 16, v{q}")


def sdiv(a, q, p, d, lim):
    m = (65536 + d - 1) // d
    for x in range(lim):
        assert (x * m) >> 16 == x // d, (d, x)
    a(f"s_mul_i32 s{q}, s{p}, {m}")
    a(f"s_lshr_b32 s{q}, s{q}, 16")


def red_g(a, v, t):
    a(f"v_mov_b32 v{t}, v{v}")
    a("s_nop 1")
    a(f"v_permlane32_swap_b32 v{v}, v{t}")
    a("s_nop 1")
    a(f"v_add_f32 v{v}, v{v}, v{t}")
    a(f"v_mov_b32 v{t}, v{v}")
    a("s_nop 1")
    a(f"v_permlane16_swap_b32 v{v}, v{t}")
    a("s_nop 1")
    a(f"v_add_f32 v{v}, v{v}, v{t}")


NK = 20
STAT_LDS = 156 * 1024
CS_LDS = STAT_LDS + 2560
SCR_LDS = 144 * 1024
VONE = 228
TMP = 20


def k1_mainloop(a, NM, NN, dma_fn, xaddr_fn, waddr_fn, ACC, FR, ncs, nrs, CS, RS, hooks=None, mstat=None, skipj=None, NMM=None, mslots=(0,)):
    NMM = NMM or NM
    FS = 4 * NM + 4 * NN

    def xfrag(s, mi):
        return FR + s * FS + 4 * mi

    def wfrag(s, j):
        return FR + s * FS + 4 * NM + 4 * j

    def reads(ks):
        s = ks & 1
        out = []
        for mi in range(NM):
            v, off = xaddr_fn(mi, ks)
            out.append(f"ds_read_b128 {vr(xfrag(s,mi),4)}, v{v} offset:{off}")
        for j in range(NN):
            v, off, dt = waddr_fn(j, ks)
            out.append(f"ds_read_b64_tr_b16 {vr(wfrag(s,j),2)}, v{v} offset:{off}")
            out.append(f"ds_read_b64_tr_b16 {vr(wfrag(s,j)+2,2)}, v{v} offset:{off+dt}")
        return out

    def mfmas(ks):
        s = ks & 1
        out = []
        for j in range(NN):
            grp = []
            for mi in range(NMM):
                acc = ACC + 4 * (mi * NN + j)
                c = "0" if ks == 0 else vr(acc, 4)
                grp.append(f"v_mfma_f32_16x16x32_bf16 {vr(acc,4)}, {vr(wfrag(s,j),4)}, {vr(xfrag(s,mi),4)}, {c}")
            if skipj and j in skipj and "noskip" not in XP:
                lab = f"L_skj_{a.tag}_{ks}_{j}"
                out.append(f"s_cmp_eq_u32 s{skipj[j]}, 15\ns_cbranch_scc1 {lab}\n" + "\n".join(grp) + f"\n{lab}:")
            else:
                out.extend(grp)
        return out

    def stats(ks):
        s = ks & 1
        out = []
        for j in range(ncs):
            c = "0" if ks == 0 else vr(CS + 4 * j, 4)
            out.append(f"v_mfma_f32_16x16x32_bf16 {vr(CS+4*j,4)}, {vr(wfrag(s,j),4)}, {vr(VONE,4)}, {c}")
        valu = []
        if mstat is not None:
            for k, mi in enumerate(mslots):
                R0, Q0 = mstat + 8 * k, mstat + 8 * k + 4
                c0 = "0" if ks == 0 else vr(R0, 4)
                c1 = "0" if ks == 0 else vr(Q0, 4)
                out.append(f"v_mfma_f32_16x16x32_bf16 {vr(R0,4)}, {vr(VONE,4)}, {vr(xfrag(s,mi),4)}, {c0}")
                out.append(f"v_mfma_f32_16x16x32_bf16 {vr(Q0,4)}, {vr(xfrag(s,mi),4)}, {vr(xfrag(s,mi),4)}, {c1}")
            return out, valu
        for mi in range(nrs):
            S0, S1, Q0, Q1 = [RS + 4 * mi + i for i in range(4)]
            for d in range(4):
                x = xfrag(s, mi) + d
                t0, t1 = TMP + 2 * (d & 1), TMP + 2 * (d & 1) + 1
                valu.append(f"v_lshlrev_b32 v{t0}, 16, v{x}")
                valu.append(f"v_and_b32 v{t1}, s69, v{x}")
                if ks == 0 and d == 0:
                    valu.append(f"v_mov_b32 v{S0}, v{t0}")
                    valu.append(f"v_mov_b32 v{S1}, v{t1}")
                    valu.append(f"v_mul_f32 v{Q0}, v{t0}, v{t0}")
                    valu.append(f"v_mul_f32 v{Q1}, v{t1}, v{t1}")
                else:
                    valu.append(f"v_add_f32 v{S0}, v{S0}, v{t0}")
                    valu.append(f"v_add_f32 v{S1}, v{S1}, v{t1}")
                    valu.append(f"v_fmac_f32 v{Q0}, v{t0}, v{t0}")
                    valu.append(f"v_fmac_f32 v{Q1}, v{t1}, v{t1}")
        if "novalu" in XP: valu = []
        if "nocs" in XP: out = []
        return out, valu

    a.stamp(2)
    if PRIO:
        lab = f"L_prio_{a.tag}"
        a(f"s_cmp_eq_u32 s36, {PRIO-1}")
        a(f"s_cbranch_scc0 {lab}")
        a("s_setprio 1")
        a.label(lab)
    a.wait_vm(("st", 0))
    a("s_barrier")
    a.stamp(3)
    for r in reads(0):
        a(r)
    for ks in range(NK):
        if ks + 1 < NK:
            a.wait_vm(("st", ks + 1), lgkm=True)
            a("s_barrier")
            if ks in (4, 10, 16):
                a.stamp({4: 4, 10: 5, 16: 6}[ks])
            if hooks and ks in hooks:
                hooks[ks]()
            dm = a.capture(dma_fn, ks + 4) if ks + 4 < NK else []
            if "nodma" in XP:
                dm = []; a.vm = []
            rd = reads(ks + 1)
            if "nolds" in XP: rd = []
        else:
            a("s_waitcnt lgkmcnt(0)")
            rd = []
            dm = []
        mf = mfmas(ks)
        smf, stt = stats(ks)
        mf = mf + smf
        nr = ns = nd = 0
        L = len(mf)
        for i, m in enumerate(mf):
            a(m)
            while nd < len(dm) and nd < 1 + i * len(dm) // (L - 2):
                a.lines.extend(dm[nd]); nd += 1
            while nr < len(rd) and nr < (i + 1) * len(rd) // max(1, L - RDT):
                a(rd[nr]); nr += 1
            while ns < len(stt) and ns < (i + 1) * len(stt) // L:
                a(stt[ns]); ns += 1
        while nd < len(dm):
            a.lines.extend(dm[nd]); nd += 1
        while nr < len(rd):
            a(rd[nr]); nr += 1
        while ns < len(stt):
            a(stt[ns]); ns += 1


def rowstat_math(a, S, t):
    Q = S + 1
    a(f"v_mul_f32 v{S}, s17, v{S}")
    a(f"v_mul_f32 v{Q}, s17, v{Q}")
    a(f"v_fma_f32 v{Q}, -v{S}, v{S}, v{Q}")
    a(f"v_max_f32 v{Q}, 0, v{Q}")
    a(f"v_cvt_pk_bf16_f32 v{t}, v{S}, v{Q}")
    a(f"v_lshlrev_b32 v{S}, 16, v{t}")
    a(f"v_and_b32 v{Q}, s16, v{t}")
    a(f"v_add_f32 v{Q}, 0x3727c5ac, v{Q}")
    a(f"v_cvt_pk_bf16_f32 v{t}, v{Q}, v{Q}")
    a(f"v_and_b32 v{Q}, s16, v{t}")
    a(f"v_sqrt_f32 v{Q}, v{Q}")
    a("s_nop 0")
    a(f"v_cvt_pk_bf16_f32 v{t}, v{Q}, v{Q}")
    a(f"v_and_b32 v{S+3}, s16, v{t}")
    a(f"v_rcp_f32 v{t}, v{S+3}")
    a("s_nop 0")
    a(f"v_fma_f32 v{Q}, -v{S+3}, v{t}, 1.0")
    a(f"v_fma_f32 v{Q}, v{Q}, v{t}, v{t}")
    a(f"v_mul_f32 v{S+2}, 0xbfb8aa3b, v{Q}")


def gen_k1(a):
    a.raw(".p2align 8")
    a.label("g1_kernel")
    a.kidx = 1
    a("""
    s_cmp_ge_u32 s2, 256
    s_cbranch_scc1 L_g1_done
    """)
    a.stamp(0)
    if CODEPF:
        a("""
        s_getpc_b64 s[90:91]
        L_pc_here:
        s_sub_u32 s90, s90, L_pc_here - g1_kernel
        s_subb_u32 s91, s91, 0
        v_lshlrev_b32 v1, 7, v0
        v_min_u32 v1, L_code_end - g1_kernel - 4, v1
        global_load_dword v254, v1, s[90:91]
        """)
    a("""
    s_load_dwordx4 s[4:7], s[0:1], 0
    s_load_dwordx2 s[52:53], s[0:1], 16
    s_load_dwordx4 s[8:11], s[0:1], 32
    s_load_dwordx2 s[54:55], s[0:1], 48
    s_load_dwordx2 s[56:57], s[0:1], 72
    v_lshrrev_b32 v1, 6, v0
    v_and_b32 v0, 63, v0
    s_nop 0
    v_readfirstlane_b32 s32, v1
    """)
    if XMAP == 0:
        a("""
        s_and_b32 s34, s2, 7
        s_lshr_b32 s3, s2, 3
        s_and_b32 s33, s3, 15
        s_lshr_b32 s3, s3, 4
        """)
    else:
        nmb = 4 - XMAP
        nb = 1 << XMAP
        a(f"""
        s_lshr_b32 s3, s2, 3
        s_and_b32 s33, s3, {(1<<nmb)-1}
        s_and_b32 s34, s2, {nb-1}
        s_lshl_b32 s34, s34, {nmb}
        s_add_u32 s33, s33, s34
        s_bfe_u32 s34, s3, {(XMAP<<16)|nmb}
        s_and_b32 s35, s2, {7 & ~(nb-1)}
        s_add_u32 s34, s34, s35
        s_lshr_b32 s3, s3, 4
        """)
    a("""
    s_lshr_b32 s36, s32, 2
    s_and_b32 s37, s32, 3
    v_lshrrev_b32 v2, 4, v0
    v_bfe_u32 v3, v0, 2, 2
    v_and_b32 v4, 3, v0
    v_lshlrev_b32 v5, 4, v0
    v_mov_b32 v228, 0x3f803f80
    v_mov_b32 v229, 0x3f803f80
    v_mov_b32 v230, 0x3f803f80
    v_mov_b32 v231, 0x3f803f80
    s_mov_b32 s69, 0xffff0000
    v_and_b32 v6, 15, v0
    s_waitcnt lgkmcnt(0)
    """)
    srd(a, 12, 56, WS_BYTES)
    srd(a, 28, 4, 2048 * 1280)
    a("""
    v_lshrrev_b32 v20, 3, v0
    v_and_b32 v21, 7, v0
    v_xor_b32 v21, v21, v20
    v_mul_u32_u24 v7, 1280, v20
    v_lshl_add_u32 v7, v21, 4, v7
    """)
    a("""
    v_and_b32 v20, 7, v6
    v_xor_b32 v21, v2, v20
    v_lshlrev_b32 v8, 7, v20
    v_lshl_add_u32 v8, v21, 4, v8
    v_lshrrev_b32 v20, 3, v6
    v_lshl_add_u32 v8, v20, 10, v8
    """)
    a("""
    v_and_b32 v20, 1, v2
    v_lshl_add_u32 v20, v20, 2, v3
    v_lshrrev_b32 v21, 1, v2
    v_lshl_add_u32 v9, v21, 4, v20
    """)

    def b2_issue():
        a("""
        s_mul_i32 s58, s2, 3
        s_add_u32 s58, s58, s32
        s_cmp_lt_u32 s32, 3
        s_cselect_b32 s58, s58, 4095
        s_cmp_lt_u32 s58, 680
        s_cbranch_scc0 L_b2_skip1_%s
        """ % a.tag)
        sdiv(a, 59, 58, 10, 680)
        a("""
        s_mul_i32 s60, s59, 10
        s_sub_u32 s60, s58, s60
        s_cmp_lt_u32 s59, 20
        s_cselect_b32 s64, s52, s54
        s_cselect_b32 s65, s53, s55
        s_mov_b32 s66, 1966080
        s_cselect_b32 s66, 819200, s66
        s_mov_b32 s67, 0x00020000
        s_sub_u32 s61, s59, 20
        s_cmp_lt_u32 s59, 20
        s_cselect_b32 s61, s59, s61
        s_mul_i32 s61, s61, 40960
        s_lshl_b32 s62, s60, 7
        s_add_u32 s61, s61, s62
        s_lshl_b32 s62, s32, 12
        s_add_u32 s62, s62, %d
        v_lshrrev_b32 v20, 3, v0
        v_and_b32 v21, 7, v0
        """ % SCR_LDS)
        for i in range(4):
            a(f"v_add_u32 v22, {8*i}, v20")
            unswap23(a, 23, 22, 246, 247)
            a("v_mul_u32_u24 v23, 1280, v23")
            a("v_lshl_add_u32 v23, v21, 4, v23")
            a(f"s_add_u32 m0, s62, {1024*i}")
            a("s_nop 0")
            a.vmem("buffer_load_dwordx4 v23, s[64:67], s61 offen lds", "b2", optional=True)
        a.label("L_b2_skip1_%s" % a.tag)

    def b2_finish():
        a("s_cmp_lt_u32 s58, 680")
        a("s_cbranch_scc0 L_b2_skip2_%s" % a.tag)
        a("v_lshlrev_b32 v1, 7, v9")
        a("v_lshl_add_u32 v1, v4, 3, v1")
        a("v_add_u32 v1, s62, v1")
        regs = [244, 248, 252, 20]
        for jj in range(4):
            a(f"ds_read_b64_tr_b16 {vr(regs[jj],2)}, v1 offset:{32*jj}")
            a(f"ds_read_b64_tr_b16 {vr(regs[jj]+2,2)}, v1 offset:{32*jj+1024}")
        a("s_waitcnt lgkmcnt(0)")
        for jj in range(4):
            a("s_lshl_b32 s61, s60, 2")
            a(f"s_add_u32 s61, s61, {jj}")
            sdiv(a, 62, 61, 5, 40)
            a("s_mul_i32 s63, s62, 5")
            a("s_sub_u32 s63, s61, s63")
            a("s_mul_i32 s62, s62, 68")
            a("s_add_u32 s62, s62, s59")
            a("s_mul_i32 s62, s62, 5")
            a("s_add_u32 s62, s62, s63")
            a("s_lshl_b32 s62, s62, 10")
            a(f"s_add_u32 s62, s62, {B2_OFF}")
            a.vmem(f"buffer_store_dwordx4 {vr(regs[jj],4)}, v5, s[12:15], s62 offen{B2F}", "b2s", optional=True)
        a("s_nop 4")
        a.label("L_b2_skip2_%s" % a.tag)

    a("s_cmp_eq_u32 s3, 0")
    a("s_cbranch_scc1 L_g1_attn")

    a.tag = "g"
    a.vm = []
    AR_G = 16384
    BR_G = 49152
    BS_G = 24576
    srd(a, 16, 8, 640 * 3072)
    srd(a, 20, 10, 640 * 3072)
    a("""
    s_cmp_lt_u32 s32, 4
    s_cselect_b32 s24, s8, s10
    s_cselect_b32 s25, s9, s11
    s_mov_b32 s26, 1966080
    s_mov_b32 s27, 0x00020000
    s_mov_b32 s43, 12288
    s_cselect_b32 s43, 0, s43
    """)
    a(f"""
    s_lshl_b32 s40, s32, 10
    s_add_u32 s41, s40, {BR_G}
    s_add_u32 s42, s40, {BR_G+12288}
    s_lshl_b32 s44, s37, 10
    s_add_u32 s43, s43, s44
    s_add_u32 s43, s43, {BR_G+8192}
    """)
    a("""
    s_lshl_b32 s44, s33, 4
    s_add_u32 s44, s44, s32
    s_mul_i32 s44, s44, 10240
    v_add_u32 v10, s44, v7
    v_add_u32 v11, 81920, v10
    s_mul_i32 s45, s34, 384
    """)

    def gate_off(dst, sInstr):
        a(f"s_lshl_b32 s44, s{sInstr}, 6")
        a(f"v_add_u32 v20, s44, v0")
        divsmall(a, 21, 20, 48)
        a("v_mul_u32_u24 v22, 48, v21")
        a("v_sub_u32 v22, v20, v22")
        a("v_and_b32 v23, 7, v21")
        a("v_lshlrev_b32 v23, 1, v23")
        a("v_xor_b32 v22, v22, v23")
        a("v_cmp_le_u32 vcc, 24, v22")
        a("s_nop 1")
        a("v_cndmask_b32 v23, 0, 1, vcc")
        a("v_mul_u32_u24 v24, 24, v23")
        a("v_sub_u32 v22, v22, v24")
        a("v_lshl_add_u32 v21, v23, 4, v21")
        unswap23(a, 24, 21, 25, 26)
        a("v_mul_u32_u24 v24, 3072, v24")
        a("v_lshl_add_u32 v24, v22, 4, v24")
        a(f"v_add_u32 v{dst}, s45, v24")
    gate_off(12, 32)
    a("s_add_u32 s46, s37, 8")
    gate_off(13, 46)
    a("s_mov_b32 s47, 0")
    a("s_mov_b32 s48, 0")

    def dma_g(st):
        sb = (st & 3) * BS_G
        if st % 2 == 0:
            ab = ((st // 2) % 3) * AR_G
            a(f"s_add_u32 m0, s40, {ab}")
            a("s_nop 0")
            a.vmem("buffer_load_dwordx4 v10, s[28:31], s47 offen lds", ("st", st))
            a(f"s_add_u32 m0, s40, {ab+8192}")
            a("s_nop 0")
            a.vmem("buffer_load_dwordx4 v11, s[28:31], s47 offen lds", ("st", st))
            a("s_add_u32 s47, s47, 128")
        a(f"s_add_u32 m0, s41, {sb}")
        a("s_nop 0")
        a.vmem("buffer_load_dwordx4 v12, s[16:19], s48 offen lds", ("st", st))
        a(f"s_add_u32 m0, s42, {sb}")
        a("s_nop 0")
        a.vmem("buffer_load_dwordx4 v12, s[20:23], s48 offen lds", ("st", st))
        a(f"s_add_u32 m0, s43, {sb}")
        a("s_nop 0")
        a.vmem("buffer_load_dwordx4 v13, s[24:27], s48 offen lds", ("st", st))
        a("s_add_u32 s48, s48, 98304")

    a.stamp(1)
    for st in range(4):
        dma_g(st)
    def tlb_g(k0=4, nk=16, tg=0):
        a(f"""
        s_mul_i32 s44, s33, {2*nk}
        s_add_u32 s44, s44, {32*k0}
        v_min_u32 v20, {2*nk-1}, v0
        v_add_u32 v20, s44, v20
        v_mul_u32_u24 v20, 3072, v20
        v_add_u32 v20, s45, v20
        """)
        offs = {1: [0], 2: [0, 256], 3: [0, 128, 256]}[TLBPF]
        for li, off in enumerate(offs):
            for mtx, sr in enumerate((16, 20)):
                wv = 2 * li + mtx
                a(f"s_cmp_eq_u32 s32, {wv}")
                a(f"s_cbranch_scc0 L_tlb_g{wv}_{tg}")
                a.vmem(f"buffer_load_dword v244, v20, s[{sr}:{sr+3}], 0 offen offset:{off}", "pf", optional=True)
                a.label(f"L_tlb_g{wv}_{tg}")
    if TLBPF and TLBAT < 0:
        tlb_g()

    def pf_w_g():
        a("""
        s_and_b32 s44, s32, 1
        s_cmp_eq_u32 s44, 0
        s_cselect_b32 s64, s8, s10
        s_cselect_b32 s65, s9, s11
        s_mov_b32 s66, 1966080
        s_mov_b32 s67, 0x00020000
        s_add_u32 s44, s33, 4
        s_lshl_b32 s44, s44, 5
        s_bfe_u32 s46, s32, 0x10001
        s_lshl_b32 s46, s46, 4
        s_add_u32 s44, s44, s46
        v_lshrrev_b32 v20, 2, v0
        v_add_u32 v20, s44, v20
        v_mul_u32_u24 v20, 3072, v20
        v_min_u32 v21, 2, v4
        v_lshl_add_u32 v20, v21, 7, v20
        v_add_u32 v20, s45, v20
        """)
        a.vmem("buffer_load_dword v244, v20, s[64:67], 0 offen", "pf")

    def pf_x_g():
        a("""
        s_lshl_b32 s44, s33, 4
        s_add_u32 s44, s44, s32
        s_lshl_b32 s44, s44, 3
        v_lshrrev_b32 v20, 3, v0
        v_add_u32 v20, s44, v20
        v_mul_u32_u24 v20, 1280, v20
        v_and_b32 v21, 7, v0
        v_lshl_add_u32 v20, v21, 7, v20
        """)
        a.vmem("buffer_load_dword v245, v20, s[28:31], 0 offen offset:256", "pf")

    XA = 208
    for mi in range(4):
        a(f"s_add_u32 s44, s37, {mi}")
        a("s_and_b32 s44, s44, 3")
        a("s_lshl_b32 s46, s36, 2")
        a("s_add_u32 s44, s44, s46")
        a("s_lshl_b32 s44, s44, 11")
        a(f"v_add_u32 v{XA+mi}, s44, v8")
        a(f"v_xor_b32 v{XA+4+mi}, 64, v{XA+mi}")
    WA = 216
    a(f"""
    v_and_b32 v20, 7, v9
    v_lshrrev_b32 v21, 1, v2
    v_mul_u32_u24 v21, 12, v21
    s_mul_i32 s44, s37, 3
    v_add_u32 v21, s44, v21
    v_mul_u32_u24 v22, 768, v20
    v_lshl_add_u32 v22, v4, 3, v22
    v_add_u32 v22, {BR_G}, v22
    s_mul_i32 s44, s36, 12288
    s_sub_u32 s46, 12288, s44
    """)
    for i in range(3):
        a(f"v_add_u32 v23, {i}, v21")
        a("v_xor_b32 v23, v23, v20")
        a(f"v_lshl_add_u32 v23, v23, 5, v22")
        a(f"v_add_u32 v{WA+i}, s44, v23")
        a(f"v_add_u32 v{WA+3+i}, s46, v23")
        a(f"v_add_u32 v{WA+6+i}, {2*BS_G}, v{WA+i}")
        a(f"v_add_u32 v{WA+9+i}, {2*BS_G}, v{WA+3+i}")

    def xaddr_g(mi, ks):
        return XA + 4 * (ks & 1) + mi, ((ks // 2) % 3) * AR_G

    def waddr_g(j, ks):
        slot = ks & 3
        v = WA + (6 if slot >= 2 else 0) + j
        return v, (slot & 1) * BS_G, 6144

    ACC = 32
    FR = 128
    CS, RS = 232, 24
    a("""
    s_lshl_b32 s44, s33, 1
    v_and_b32 v14, 1, v0
    v_add_u32 v14, s44, v14
    v_mul_u32_u24 v14, 3072, v14
    v_bfe_u32 v20, v0, 1, 2
    v_min_u32 v20, 2, v20
    v_lshl_add_u32 v14, v20, 7, v14
    v_add_u32 v14, s45, v14
    s_lshl_b32 s44, s33, 7
    v_add_u32 v15, s44, v0
    v_mul_u32_u24 v15, 1280, v15
    """)

    def mk_roll(ks, wsrds, wstride, extra=None):
        def f():
            if extra:
                extra()
            if PFD and ks + PFD < NK:
                lab = f"L_pf_{a.tag}_{ks}"
                a(f"s_cmp_eq_u32 s32, {ks & 7}")
                a(f"s_cbranch_scc0 {lab}")
                a(f"s_mov_b32 s44, {(ks+PFD)*wstride}")
                for sr in wsrds:
                    a.vmem(f"buffer_load_dword v244, v14, s[{sr}:{sr+3}], s44 offen", "pf", optional=True)
                a.label(lab)
            if PFD and ks % 2 == 0 and (ks + PFD) // 2 + 1 < 10:
                lab = f"L_pfx_{a.tag}_{ks}"
                a(f"s_cmp_eq_u32 s32, {(ks + 1) & 7}")
                a(f"s_cbranch_scc0 {lab}")
                a(f"s_mov_b32 s44, {((ks+PFD)//2+1)*128}")
                a.vmem(f"buffer_load_dword v245, v15, s[28:31], s44 offen", "pf", optional=True)
                a.label(lab)
        return f
    hx = {B2AT: b2_issue, B2AT + 6: b2_finish}
    for bi, (at, k0, nk) in enumerate(PFSCHED):
        hx[at] = (lambda k0=k0, nk=nk, bi=bi: tlb_g(k0, nk, bi))
    hk = {ks: mk_roll(ks, (16, 20), 98304, hx.get(ks)) for ks in range(NK - 1)}
    k1_mainloop(a, 4, 6, dma_g, xaddr_g, waddr_g, ACC, FR, 3, 1, CS, RS, hooks=hk)
    a.stamp(7)
    a("s_mov_b32 s16, 0xffff0000")
    a("s_mov_b32 s17, 0x3acccccd")
    a("v_add_f32 v16, v24, v25")
    a("v_add_f32 v17, v26, v27")
    for v in (16, 17):
        red_g(a, v, 20)
    rowstat_math(a, 16, 20)
    a(f"""
    s_lshl_b32 s44, s36, 2
    s_add_u32 s44, s44, s37
    s_lshl_b32 s44, s44, 8
    s_add_u32 s44, s44, {STAT_LDS}
    v_lshl_add_u32 v20, v6, 4, s44
    ds_write_b128 v20, v[16:19]
    s_mul_i32 s44, s36, 12
    s_mul_i32 s46, s37, 3
    s_add_u32 s44, s44, s46
    s_lshl_b32 s44, s44, 6
    s_add_u32 s44, s44, {CS_LDS}
    v_lshl_add_u32 v20, v2, 4, s44
    ds_write_b128 v20, v[232:235]
    ds_write_b128 v20, v[236:239] offset:64
    ds_write_b128 v20, v[240:243] offset:128
    s_waitcnt lgkmcnt(0)
    s_barrier
    """)
    for mi in range(4):
        a(f"s_add_u32 s44, s37, {mi}")
        a("s_and_b32 s44, s44, 3")
        a("s_lshl_b32 s46, s36, 2")
        a("s_add_u32 s44, s44, s46")
        a("s_lshl_b32 s44, s44, 8")
        a(f"s_add_u32 s44, s44, {STAT_LDS}")
        a("v_lshl_add_u32 v20, v6, 4, s44")
        a(f"ds_read_b128 {vr(128+4*mi,4)}, v20")
    a(f"""
    s_mul_i32 s44, s37, 192
    s_add_u32 s44, s44, {CS_LDS}
    v_lshl_add_u32 v20, v2, 4, s44
    """)
    for i in range(3):
        a(f"ds_read_b128 {vr(144+4*i,4)}, v20 offset:{64*i}")
        a(f"ds_read_b128 {vr(156+4*i,4)}, v20 offset:{768+64*i}")
    a(f"""
    v_lshrrev_b32 v21, 1, v2
    v_lshl_add_u32 v20, v21, 4, v6
    v_lshlrev_b32 v20, 4, v20
    v_and_b32 v21, 1, v2
    v_lshl_add_u32 v20, v21, 3, v20
    s_lshl_b32 s44, s33, 3
    s_lshl_b32 s45, s36, 2
    s_add_u32 s44, s44, s45
    s_mul_i32 s44, s44, {A2_MT}
    s_add_u32 s44, s44, {A2_OFF + 20*1024}
    v_add_u32 v20, s44, v20
    s_mul_i32 s45, s34, 12
    s_mul_i32 s46, s37, 3
    s_add_u32 s45, s45, s46
    s_lshl_b32 s45, s45, 9
    s_add_u32 s46, s45, 512
    s_add_u32 s47, s45, 1024
    """)
    for mi in range(4):
        a(f"s_add_u32 s44, s37, {mi}")
        a("s_and_b32 s44, s44, 3")
        a(f"s_mul_i32 s44, s44, {A2_MT}")
        a(f"v_add_u32 v{24+mi}, s44, v20")
    a("s_waitcnt lgkmcnt(0)")

    def g_epi(swapped):
        for mi in range(4):
            P = 128 + 4 * mi
            for i in range(3):
                g = ACC + 4 * (mi * 6 + (3 + i if swapped else i))
                u = ACC + 4 * (mi * 6 + (i if swapped else 3 + i))
                for h in (0, 2):
                    a(f"v_pk_fma_f32 {vr(g+h,2)}, {vr(144+4*i+h,2)}, {vr(P,2)}, {vr(g+h,2)} op_sel_hi:[1,0,1] neg_lo:[0,1,0] neg_hi:[0,1,0]")
                for h in (0, 2):
                    a(f"v_pk_mul_f32 {vr(g+h,2)}, {vr(g+h,2)}, {vr(P+2,2)} op_sel_hi:[1,0]")
                for e in range(4):
                    a(f"v_exp_f32 v{g+e}, v{g+e}")
                for h in (0, 2):
                    a(f"v_pk_fma_f32 {vr(u+h,2)}, {vr(156+4*i+h,2)}, {vr(P,2)}, {vr(u+h,2)} op_sel_hi:[1,0,1] neg_lo:[0,1,0] neg_hi:[0,1,0]")
                for h in (0, 2):
                    a(f"v_pk_fma_f32 {vr(g+h,2)}, {vr(g+h,2)}, {vr(P+2,2)}, {vr(P+2,2)} op_sel:[0,1,1] op_sel_hi:[1,1,1]")
                for e in range(4):
                    a(f"v_rcp_f32 v{g+e}, v{g+e}")
                a("s_nop 0")
                for h in (0, 2):
                    a(f"v_pk_mul_f32 {vr(g+h,2)}, {vr(g+h,2)}, {vr(u+h,2)}")
                a(f"v_cvt_pk_bf16_f32 v{u}, v{g}, v{g+1}")
                a(f"v_cvt_pk_bf16_f32 v{u+1}, v{g+2}, v{g+3}")
                a(f"buffer_store_dwordx2 {vr(u,2)}, v{24+mi}, s[12:15], s{45+i} offen{ST_FLAGS}")
    a("s_cmp_eq_u32 s36, 0")
    a("s_cbranch_scc0 L_g1_g_sw")
    g_epi(False)
    a("s_branch L_g1_g_end")
    a.label("L_g1_g_sw")
    g_epi(True)
    a.label("L_g1_g_end")
    a.stamp(8, True)
    a.stamp_flush(12, 1, 32)
    a("s_endpgm")

    a.label("L_g1_attn")
    a.tag = "a"
    a.vm = []
    AR_A = 18432
    BR_A = 55296
    BS_A = 15360
    srd(a, 16, 6, 640 * 3840)
    a(f"""
    s_lshl_b32 s42, s32, 10
    s_add_u32 s40, s42, {BR_A}
    s_add_u32 s41, s42, {BR_A+8192}
    s_mul_i32 s45, s34, 160
    """)

    def qkv_off(dst, sInstr):
        a(f"s_lshl_b32 s44, s{sInstr}, 6")
        a(f"v_add_u32 v20, s44, v0")
        divsmall(a, 21, 20, 30)
        a("v_mul_u32_u24 v22, 30, v21")
        a("v_sub_u32 v22, v20, v22")
        divsmall(a, 23, 22, 10)
        a("v_mul_u32_u24 v24, 10, v23")
        a("v_sub_u32 v22, v22, v24")
        a("v_and_b32 v21, 31, v21")
        unswap23(a, 24, 21, 25, 26)
        a("v_mul_u32_u24 v24, 3840, v24")
        a("v_mul_u32_u24 v23, 1280, v23")
        a("v_add_u32 v24, v24, v23")
        a("v_lshl_add_u32 v24, v22, 4, v24")
        a(f"v_add_u32 v{dst}, s45, v24")

    def ajob_off(dst, sJob):
        a("s_lshl_b32 s44, s33, 4")
        a(f"s_add_u32 s44, s44, s{sJob}")
        a("s_max_u32 s44, s44, 2")
        a("s_sub_u32 s44, s44, 2")
        a("s_mul_i32 s44, s44, 10240")
        a(f"v_add_u32 v{dst}, s44, v7")
    qkv_off(12, 32)
    a("s_add_u32 s46, s32, 8")
    a("s_min_u32 s46, s46, 14")
    qkv_off(13, 46)
    ajob_off(10, 32)
    a("s_add_u32 s46, s32, 8")
    ajob_off(11, 46)
    a("s_and_b32 s46, s32, 1")
    a("s_add_u32 s46, s46, 16")
    ajob_off(19, 46)
    a("""
    s_mov_b32 s47, 0
    s_mov_b32 s48, 0
    """)

    def dma_a(st):
        sb = (st & 3) * BS_A
        a(f"s_add_u32 m0, s40, {sb}")
        a("s_nop 0")
        a.vmem("buffer_load_dwordx4 v12, s[16:19], s48 offen lds", ("st", st))
        a("s_cmp_eq_u32 s32, 7")
        lab = f"L_a_s1_{a.tag}_{st}"
        a(f"s_cbranch_scc1 {lab}")
        a(f"s_add_u32 m0, s41, {sb}")
        a("s_nop 0")
        a.vmem("buffer_load_dwordx4 v13, s[16:19], s48 offen lds", ("st", st), optional=True)
        a.label(lab)
        a("s_add_u32 s48, s48, 122880")
        if st % 2 == 0:
            ab = ((st // 2) % 3) * AR_A
            lab = f"L_a_s4_{a.tag}_{st}"
            a("s_cmp_ge_u32 s32, 6")
            a(f"s_cbranch_scc1 {lab}_o")
            a.label(lab)
            a.vm.append((("st", st), True))
            a.ool.append(f"{lab}_o:\ns_add_u32 m0, s42, {ab + 10*1024}\ns_nop 0\nbuffer_load_dwordx4 v19, s[28:31], s47 offen lds\ns_branch {lab}")
            a(f"s_add_u32 m0, s42, {ab}")
            a("s_nop 0")
            a.vmem("buffer_load_dwordx4 v10, s[28:31], s47 offen lds", ("st", st))
            a(f"s_add_u32 m0, s42, {ab+8192}")
            a("s_nop 0")
            a.vmem("buffer_load_dwordx4 v11, s[28:31], s47 offen lds", ("st", st))
            a("s_add_u32 s47, s47, 128")

    a.stamp(1)
    for st in range(4):
        dma_a(st)
    def tlb_a(k0=4, nk=16, tg=0):
        a(f"""
        s_mul_i32 s44, s33, {2*nk}
        s_add_u32 s44, s44, {32*k0}
        v_min_u32 v20, {2*nk-1}, v0
        v_add_u32 v20, s44, v20
        v_mul_u32_u24 v20, 3840, v20
        v_add_u32 v20, s45, v20
        s_mul_i32 s44, s32, 1280
        s_cmp_lt_u32 s32, 3
        s_cbranch_scc0 L_tlb_a0_{a.tag}_{tg}
        """)
        a.vmem("buffer_load_dword v244, v20, s[16:19], s44 offen", "pf", optional=True)
        a.label(f"L_tlb_a0_{a.tag}_{tg}")
        if TLBPF >= 3:
            a(f"""
            s_sub_u32 s44, s32, 3
            s_cmp_lt_u32 s44, 3
            s_cbranch_scc0 L_tlb_a1_{a.tag}_{tg}
            s_mul_i32 s44, s44, 1280
            """)
            a.vmem("buffer_load_dword v244, v20, s[16:19], s44 offen offset:128", "pf", optional=True)
            a.label(f"L_tlb_a1_{a.tag}_{tg}")
    if TLBPF and TLBAT < 0:
        tlb_a()

    def pf_w_a():
        a("""
        s_add_u32 s44, s33, 4
        s_lshl_b32 s44, s44, 5
        s_lshl_b32 s46, s37, 3
        s_add_u32 s44, s44, s46
        v_lshrrev_b32 v20, 3, v0
        v_add_u32 v20, s44, v20
        v_mul_u32_u24 v20, 3840, v20
        v_and_b32 v21, 7, v0
        v_min_u32 v21, 5, v21
        v_lshrrev_b32 v22, 1, v21
        v_mul_u32_u24 v22, 1280, v22
        v_and_b32 v21, 1, v21
        v_lshl_add_u32 v22, v21, 7, v22
        v_add3_u32 v20, v20, v22, s45
        """)
        a.vmem("buffer_load_dword v244, v20, s[16:19], 0 offen", "pf")

    def pf_x_a():
        a("""
        s_lshl_b32 s44, s33, 4
        s_add_u32 s44, s44, s32
        s_add_u32 s44, s44, 8
        s_lshl_b32 s44, s44, 3
        v_lshrrev_b32 v20, 3, v0
        v_add_u32 v20, s44, v20
        v_mul_u32_u24 v20, 1280, v20
        v_and_b32 v21, 7, v0
        v_lshl_add_u32 v20, v21, 7, v20
        """)
        a.vmem("buffer_load_dword v245, v20, s[28:31], 0 offen offset:256", "pf")

    def frag_of(mi, dst):
        a(f"s_add_u32 s44, s37, {mi}")
        a("s_sub_u32 s46, s44, 5")
        a("s_cmp_ge_u32 s44, 5")
        a("s_cselect_b32 s46, s46, s44")
        if mi < 4:
            a("s_and_b32 s44, s44, 3")
            a("s_add_u32 s44, s44, 5")
        else:
            a("s_mov_b32 s44, 4")
        a("s_cmp_eq_u32 s36, 0")
        a(f"s_cselect_b32 s{dst}, s46, s44")

    for mi in range(5):
        frag_of(mi, 44)
        a(f"s_mul_i32 s{70+mi}, s44, {16*488}")
        a("s_lshl_b32 s46, s44, 8")
        a(f"s_add_u32 s{75+mi}, s46, {STAT_LDS}")
        a("s_lshl_b32 s44, s44, 11")
        a(f"v_add_u32 v{XA+mi}, s44, v8")
        a(f"v_xor_b32 v{XA+5+mi}, 64, v{XA+mi}")
    WAa = 220
    a(f"""
    v_mul_u32_u24 v20, 480, v9
    v_lshl_add_u32 v20, v4, 3, v20
    v_add_u32 v20, {BR_A}, v20
    """)
    for j in range(4):
        a("s_lshl_b32 s44, s36, 1")
        a(f"s_add_u32 s44, s44, {j}")
        a("s_and_b32 s44, s44, 3")
        a("s_lshl_b32 s46, s37, 2")
        a("s_add_u32 s44, s44, s46")
        if j in (1, 3):
            a(f"s_mov_b32 s{50 if j == 1 else 51}, s44")
        a("s_lshl_b32 s44, s44, 5")
        a(f"v_add_u32 v{WAa+j}, s44, v20")

    def xaddr_a(mi, ks):
        return XA + 5 * (ks & 1) + mi, ((ks // 2) % 3) * AR_A

    def waddr_a(j, ks):
        return WAa + j, (ks & 3) * BS_A, 3840

    CSa, RSa = 232, 24
    T32 = 32 * 488
    a("""
    v_mul_u32_u24 v21, 488, v6
    v_lshl_add_u32 v21, v2, 3, v21
    """)
    for j in range(4):
        a("s_lshl_b32 s44, s36, 1")
        a(f"s_add_u32 s44, s44, {j}")
        a("s_and_b32 s44, s44, 3")
        a("s_lshl_b32 s46, s37, 2")
        a("s_add_u32 s44, s44, s46")
        a("s_lshl_b32 s46, s44, 5")
        a(f"v_add_u32 v{200+j}, s46, v21")
        a("s_lshl_b32 s44, s44, 6")
        a(f"s_add_u32 s44, s44, {CS_LDS}")
        a(f"v_lshl_add_u32 v{224+j}, v2, 4, s44")
    a(f"""
    v_lshl_add_u32 v20, v6, 1, s36
    v_add_u32 v21, 16, v20
    v_subrev_u32 v22, 16, v20
    v_max_i32 v22, 0, v22
    s_mul_i32 s44, s37, 40
    v_mul_u32_u24 v21, 488, v21
    v_mul_u32_u24 v22, 488, v22
    v_lshl_add_u32 v23, v2, 4, s44
    v_add_u32 v204, v21, v23
    v_add_u32 v205, v22, v23
    v_lshl_add_u32 v20, v2, 2, v3
    v_lshl_add_u32 v20, v20, 1, s36
    v_add_u32 v21, 16, v20
    v_subrev_u32 v22, 16, v20
    v_max_i32 v22, 0, v22
    v_mul_u32_u24 v21, 488, v21
    v_mul_u32_u24 v22, 488, v22
    v_lshl_add_u32 v23, v4, 3, s44
    v_add_u32 v206, v21, v23
    v_add_u32 v207, v22, v23
    s_mul_i32 s44, s34, 80
    s_mul_i32 s46, s37, 20
    s_add_u32 s44, s44, s46
    v_lshl_add_u32 v23, v2, 2, s44
    v_lshrrev_b32 v21, 3, v23
    v_lshlrev_b32 v21, 8, v21
    v_and_b32 v23, 4, v23
    v_lshl_add_u32 v21, v23, 1, v21
    v_lshrrev_b32 v23, 3, v6
    s_lshl_b32 s46, s33, 3
    v_add_u32 v23, s46, v23
    v_mul_u32_u24 v23, {A2_MT}, v23
    v_and_b32 v22, 7, v6
    v_lshl_add_u32 v22, v22, 1, s36
    v_lshl_add_u32 v23, v22, 4, v23
    v_add_u32 v218, v23, v21
    s_add_u32 s44, s44, 16
    s_lshr_b32 s46, s44, 3
    s_lshl_b32 s46, s46, 8
    s_and_b32 s44, s44, 4
    s_lshl_b32 s44, s44, 1
    s_add_u32 s46, s46, s44
    v_add_u32 v219, s46, v23
    v_lshlrev_b32 v20, 2, v2
    v_add_u32 v21, 9, v6
    """)
    for r in range(4):
        a(f"v_add_u32 v22, {r}, v20")
        a(f"v_cmp_ge_u32 s[{80+2*r}:{81+2*r}], v22, v21")
        a(f"v_cmp_le_u32 s[{88+2*r}:{89+2*r}], v22, v6")
        a(f"v_add_u32 v22, 7, v22")
        a(f"v_cmp_ge_u32 s[38:39], v22, v6")
        a("s_nop 1")
        a(f"s_and_b64 s[{88+2*r}:{89+2*r}], s[{88+2*r}:{89+2*r}], s[38:39]")
    a("v_cmp_gt_u32 s[38:39], 3, v2")
    a("v_cmp_gt_u32 s[96:97], 2, v2")
    hx = {B2AT: b2_issue, B2AT + 6: b2_finish}
    for bi, (at, k0, nk) in enumerate(PFSCHED):
        hx[at] = (lambda k0=k0, nk=nk, bi=bi: tlb_a(k0, nk, bi))
    hk = {ks: mk_roll(ks, (16,), 122880, hx.get(ks)) for ks in range(NK - 1)}
    vm0 = list(a.vm)
    a("s_cmp_eq_u32 s36, 0")
    a("s_cbranch_scc0 L_a_loop1")
    a.tag = "a0"
    k1_mainloop(a, 5, 4, dma_a, xaddr_a, waddr_a, ACC, FR, 2, 2, CSa, RSa, hooks=hk, mstat=112, NMM=5, mslots=(0,))
    a("s_branch L_a_loopend")
    a.label("L_a_loop1")
    a.tag = "a1"
    a.vm = vm0
    k1_mainloop(a, 5, 4, dma_a, xaddr_a, waddr_a, ACC, FR, 2, 2, CSa, RSa, hooks=hk, mstat=112, NMM=4, mslots=(0, 4))
    a.label("L_a_loopend")
    a.stamp(7)
    a("s_mov_b32 s16, 0xffff0000")
    a("s_mov_b32 s17, 0x3acccccd")
    a("""
    s_nop 7
    v_lshrrev_b32 v21, 2, v6
    v_cmp_eq_u32 s[40:41], v21, v2
    v_and_b32 v21, 3, v6
    v_cmp_eq_u32 s[42:43], 1, v21
    v_cmp_eq_u32 s[44:45], 2, v21
    v_cmp_eq_u32 s[46:47], 3, v21
    s_nop 1
    """)
    for mi, S in ((0, 12), (1, 16)):
        R0, Q0 = 112 + 8 * mi, 116 + 8 * mi
        a(f"v_mov_b32 v{S}, v{R0}")
        a(f"v_cndmask_b32 v{S+1}, v{Q0}, v{Q0+1}, s[42:43]")
        a(f"v_cndmask_b32 v{S+1}, v{S+1}, v{Q0+2}, s[44:45]")
        a(f"v_cndmask_b32 v{S+1}, v{S+1}, v{Q0+3}, s[46:47]")
        a(f"v_cndmask_b32 v{S+1}, 0, v{S+1}, s[40:41]")
        red_g(a, S + 1, 20)
    rowstat_math(a, 12, 20)
    rowstat_math(a, 16, 20)
    a(f"""
    v_lshl_add_u32 v20, v6, 4, s75
    ds_write_b128 v20, v[12:15]
    s_cmp_eq_u32 s36, 0
    s_cbranch_scc1 L_a_nos1
    v_lshl_add_u32 v20, v6, 4, s79
    ds_write_b128 v20, v[16:19]
    L_a_nos1:
    s_lshl_b32 s44, s37, 2
    s_lshl_b32 s46, s36, 1
    s_add_u32 s44, s44, s46
    s_lshl_b32 s44, s44, 6
    s_add_u32 s44, s44, {CS_LDS}
    v_lshl_add_u32 v20, v2, 4, s44
    ds_write_b128 v20, v[232:235]
    ds_write_b128 v20, v[236:239] offset:64
    s_waitcnt lgkmcnt(0)
    s_barrier
    """)
    a.stamp(9)
    a("v_lshlrev_b32 v21, 4, v6")
    for mi in range(5):
        a(f"v_add_u32 v20, s{75+mi}, v21")
        a(f"ds_read_b64 {vr(128+2*mi,2)}, v20")
    for j in range(4):
        a(f"ds_read_b128 {vr(140+4*j,4)}, v{224+j}")
    a("s_waitcnt lgkmcnt(0)")
    for j in range(4):
        if j in (1, 3):
            a(f"s_cmp_eq_u32 s{50 if j == 1 else 51}, 15")
            a(f"s_cbranch_scc1 L_g1_a_skip{j}")
        for mi in range(5):
            P = 128 + 2 * mi
            acc = ACC + 4 * (mi * 4 + j)
            if mi == 4:
                a("s_cmp_eq_u32 s36, 0")
                a(f"s_cbranch_scc0 L_g1_a_skip{j}")
            for h in (0, 2):
                a(f"v_pk_fma_f32 {vr(acc+h,2)}, {vr(140+4*j+h,2)}, {vr(P,2)}, {vr(acc+h,2)} op_sel_hi:[1,0,1] neg_lo:[0,1,0] neg_hi:[0,1,0]")
            for h in (0, 2):
                a(f"v_pk_mul_f32 {vr(acc+h,2)}, {vr(acc+h,2)}, {vr(P,2)} op_sel:[0,1] op_sel_hi:[1,1]")
            a(f"v_cvt_pk_bf16_f32 v{acc}, v{acc}, v{acc+1}")
            a(f"v_cvt_pk_bf16_f32 v{acc+1}, v{acc+2}, v{acc+3}")
            a(f"v_add_u32 v{acc+2}, s{70+mi}, v{200+j}")
            a(f"ds_write_b64 v{acc+2}, {vr(acc,2)}")
        a.label(f"L_g1_a_skip{j}")
    a("s_waitcnt lgkmcnt(0)")
    a("s_barrier")
    a.stamp(10)
    KF, VT0, VT1, QF, SS, PP, OO = 32, 52, 62, 72, 88, 120, 136
    for qb in range(4):
        a(f"ds_read_b64 {vr(QF+4*qb,2)}, v204 offset:{qb*T32}")
        a(f"ds_read_b64 {vr(QF+4*qb+2,2)}, v204 offset:{qb*T32+8}")
    a(f"ds_read_b64 {vr(KF,2)}, v205 offset:160")
    a(f"ds_read_b64 {vr(KF+2,2)}, v205 offset:168")
    for t in range(4):
        a(f"ds_read_b64 {vr(KF+4+4*t,2)}, v204 offset:{t*T32+160}")
        a(f"ds_read_b64 {vr(KF+4+4*t+2,2)}, v204 offset:{t*T32+168}")
    a(f"ds_read_b64_tr_b16 {vr(VT0,2)}, v207 offset:320")
    a(f"ds_read_b64_tr_b16 {vr(VT1,2)}, v207 offset:352")
    for t in range(4):
        a(f"ds_read_b64_tr_b16 {vr(VT0+2+2*t,2)}, v206 offset:{t*T32+320}")
        a(f"ds_read_b64_tr_b16 {vr(VT1+2+2*t,2)}, v206 offset:{t*T32+352}")
    a("s_cmp_eq_u32 s33, 0")
    for r in range(4):
        a(f"s_cselect_b64 s[{60+2*r}:{61+2*r}], 0, s[{80+2*r}:{81+2*r}]")
    a("""
    s_mov_b32 s18, 0x3ea52b5c
    s_mov_b32 s19, 0x3ea52b5c
    v_mov_b32 v29, 0xff800000
    s_waitcnt lgkmcnt(10)
    """)
    a.stamp(11)
    for qb in range(4):
        q = QF + 4 * qb
        a(f"v_cndmask_b32 v{q}, 0, v{q}, s[38:39]")
        a(f"v_cndmask_b32 v{q+1}, 0, v{q+1}, s[38:39]")
        a(f"v_cndmask_b32 v{q+2}, 0, v{q+2}, s[96:97]")
        a(f"v_cndmask_b32 v{q+3}, 0, v{q+3}, s[96:97]")
    a("s_nop 1")
    for qb in range(4):
        a(f"v_mfma_f32_16x16x32_bf16 {vr(SS+8*qb,4)}, {vr(KF+4*qb,4)}, {vr(QF+4*qb,4)}, 0")
        a(f"v_mfma_f32_16x16x32_bf16 {vr(SS+8*qb+4,4)}, {vr(KF+4*qb+4,4)}, {vr(QF+4*qb,4)}, 0")
    a("s_nop 7")
    for qb in range(4):
        S = SS + 8 * qb
        mb = 60 if qb == 0 else 80
        for r in range(4):
            a(f"v_cndmask_b32 v{S+r}, v29, v{S+r}, s[{mb+2*r}:{mb+1+2*r}]")
            a(f"v_cndmask_b32 v{S+4+r}, v29, v{S+4+r}, s[{88+2*r}:{89+2*r}]")
        mx, t = 24 + (qb & 1) * 2, 25 + (qb & 1) * 2
        a(f"v_max3_f32 v{mx}, v{S}, v{S+1}, v{S+2}")
        a(f"v_max3_f32 v{mx}, v{mx}, v{S+3}, v{S+4}")
        a(f"v_max3_f32 v{mx}, v{mx}, v{S+5}, v{S+6}")
        a(f"v_max_f32 v{mx}, v{mx}, v{S+7}")
        a(f"v_mov_b32 v{t}, v{mx}")
        a("s_nop 1")
        a(f"v_permlane32_swap_b32 v{mx}, v{t}")
        a("s_nop 1")
        a(f"v_max_f32 v{mx}, v{mx}, v{t}")
        a(f"v_mov_b32 v{t}, v{mx}")
        a("s_nop 1")
        a(f"v_permlane16_swap_b32 v{mx}, v{t}")
        a("s_nop 1")
        a(f"v_max_f32 v{mx}, v{mx}, v{t}")
        a(f"v_mul_f32 v{mx}, s18, v{mx}")
        for h in range(0, 8, 2):
            a(f"v_pk_fma_f32 {vr(S+h,2)}, {vr(S+h,2)}, s[18:19], {vr(mx,2)} op_sel_hi:[1,1,0] neg_lo:[0,0,1] neg_hi:[0,0,1]")
        for e in range(8):
            a(f"v_exp_f32 v{S+e}, v{S+e}")
        a("s_nop 0")
        a(f"v_pk_add_f32 {vr(mx,2)}, {vr(S,2)}, {vr(S+2,2)}")
        a(f"v_pk_add_f32 {vr(30,2)}, {vr(S+4,2)}, {vr(S+6,2)}")
        a(f"v_pk_add_f32 {vr(mx,2)}, {vr(mx,2)}, {vr(30,2)}")
        a(f"v_add_f32 v{mx}, v{mx}, v{t}")
        red_g(a, mx, t)
        a(f"v_rcp_f32 v{mx}, v{mx}")
        a("s_nop 0")
        for h in range(0, 8, 2):
            a(f"v_pk_mul_f32 {vr(S+h,2)}, {vr(S+h,2)}, {vr(mx,2)} op_sel_hi:[1,0]")
        for h in range(4):
            a(f"v_cvt_pk_bf16_f32 v{PP+4*qb+h}, v{S+2*h}, v{S+2*h+1}")
    a.stamp(12)
    a("s_waitcnt lgkmcnt(0)")
    a("s_nop 1")
    for qb in range(4):
        a(f"v_mfma_f32_16x16x32_bf16 {vr(OO+8*qb,4)}, {vr(VT0+2*qb,4)}, {vr(PP+4*qb,4)}, 0")
        a(f"v_mfma_f32_16x16x32_bf16 {vr(OO+8*qb+4,4)}, {vr(VT1+2*qb,4)}, {vr(PP+4*qb,4)}, 0")
    a("s_nop 7")
    for qb in range(4):
        O = OO + 8 * qb
        a(f"v_cvt_pk_bf16_f32 v{O}, v{O}, v{O+1}")
        a(f"v_cvt_pk_bf16_f32 v{O+1}, v{O+2}, v{O+3}")
        a(f"v_cvt_pk_bf16_f32 v{O+4}, v{O+4}, v{O+5}")
        a(f"v_cvt_pk_bf16_f32 v{O+5}, v{O+6}, v{O+7}")
        a(f"s_mov_b32 s44, {A2_OFF + qb*2*A2_MT}")
        a(f"buffer_store_dwordx2 {vr(O,2)}, v218, s[12:15], s44 offen{ST_FLAGS}")
    a("s_mov_b64 exec, 0xffff")
    for qb in range(4):
        O = OO + 8 * qb
        a(f"s_mov_b32 s44, {A2_OFF + qb*2*A2_MT}")
        a(f"buffer_store_dwordx2 {vr(O+4,2)}, v219, s[12:15], s44 offen{ST_FLAGS}")
    a("s_mov_b64 exec, -1")
    a.stamp(8, True)
    a.stamp_flush(12, 1, 32)
    a.label("L_g1_done")
    a("s_endpgm")
    for blk in a.ool:
        a(blk)
    a.ool = []


def gen_k2(a):
    a.raw(".p2align 8")
    a.label("g2_kernel")
    a.kidx = 2
    a.vm = []
    a("""
    s_cmp_ge_u32 s2, 256
    s_cbranch_scc1 L_g2_done
    """)
    a.stamp(0)
    a("""
    s_load_dwordx2 s[4:5], s[0:1], 0
    s_load_dwordx2 s[10:11], s[0:1], 56
    s_load_dwordx2 s[28:29], s[0:1], 72
    v_lshrrev_b32 v1, 6, v0
    v_and_b32 v0, 63, v0
    s_nop 0
    v_readfirstlane_b32 s32, v1
    s_and_b32 s33, s2, 7
    s_lshr_b32 s3, s2, 3
    s_and_b32 s34, s3, 7
    s_lshr_b32 s3, s3, 3
    s_lshl_b32 s33, s33, 2
    s_add_u32 s33, s33, s3
    v_lshrrev_b32 v2, 4, v0
    v_lshlrev_b32 v5, 4, v0
    """)
    a(f"""
    s_mul_i32 s40, s32, 10
    s_lshl_b32 s41, s32, 3
    s_add_u32 s41, s41, 4
    s_cmp_lt_u32 s32, 2
    s_cselect_b32 s40, s40, s41
    s_lshl_b32 s47, s40, 10
    s_mul_i32 s48, s34, 68
    s_add_u32 s48, s48, s40
    s_mul_i32 s48, s48, 5120
    s_add_u32 s48, s48, {B2_OFF}
    s_mul_i32 s42, s32, 20480
    s_mul_i32 s45, s34, 160
    """)
    for mi in range(4):
        a(f"s_lshl_b32 s44, s33, 2")
        a(f"s_add_u32 s44, s44, {mi}")
        a(f"s_mul_i32 s44, s44, {A2_MT}")
        if A2_OFF:
            a(f"s_add_u32 s44, s44, {A2_OFF}")
        a(f"v_add_u32 v{10+mi}, s44, v5")
    a("v_add_u32 v14, 4096, v5")
    a("s_waitcnt lgkmcnt(0)")
    srd(a, 12, 28, WS_BYTES)
    srd(a, 20, 4, 2048 * 1280)
    srd(a, 24, 10, 2048 * 1280)
    ACC = 32
    ST = 112

    def issue(st):
        b = ST + 36 * (st & 3)
        for mi in range(4):
            a.vmem(f"buffer_load_dwordx4 {vr(b+4*mi,4)}, v{10+mi}, s[12:15], s47 offen", ("st", st))
        for j in range(4):
            a.vmem(f"buffer_load_dwordx4 {vr(b+16+4*j,4)}, v5, s[12:15], s48 offen offset:{1024*j}", ("st", st))
        a.vmem(f"buffer_load_dwordx4 {vr(b+32,4)}, v14, s[12:15], s48 offen", ("st", st))
        a("s_add_u32 s47, s47, 1024")
        a("s_add_u32 s48, s48, 5120")

    def body(n):
        a.vm = []
        a.stamp(1)
        for st in range(4):
            issue(st)
        a.stamp(2)
        for s in range(n):
            b = ST + 36 * (s & 3)
            a.wait_vm(("st", s))
            if s in (0, 3, 7):
                a.stamp({0: 3, 3: 4, 7: 5}[s])
            for j in range(5):
                for mi in range(4):
                    acc = ACC + 4 * (mi * 5 + j)
                    c = "0" if s == 0 else vr(acc, 4)
                    a(f"v_mfma_f32_16x16x32_bf16 {vr(acc,4)}, {vr(b+16+4*j,4)}, {vr(b+4*mi,4)}, {c}")
            if s + 4 < n:
                issue(s + 4)

    a("s_cmp_lt_u32 s32, 2")
    a("s_cbranch_scc0 L_g2_h")
    body(10)
    a("s_branch L_g2_red")
    a.label("L_g2_h")
    body(8)
    a.label("L_g2_red")
    a.stamp(6)
    for r in range(3):
        a(f"s_add_u32 s40, s32, {8*r}")
        a("s_min_u32 s40, s40, 19")
        a("s_mul_i32 s41, s40, 52")
        a("s_lshr_b32 s41, s41, 8")
        a("s_mul_i32 s43, s41, 5")
        a("s_sub_u32 s43, s40, s43")
        a(f"""
        s_lshl_b32 s44, s33, 6
        s_lshl_b32 s41, s41, 4
        s_add_u32 s44, s44, s41
        v_and_b32 v21, 15, v0
        v_add_u32 v21, s44, v21
        v_mul_u32_u24 v21, 1280, v21
        v_lshl_add_u32 v21, v2, 3, v21
        s_lshl_b32 s43, s43, 5
        s_add_u32 s43, s43, s45
        v_add_u32 v{112+r}, s43, v21
        buffer_load_dwordx2 {vr(116+2*r,2)}, v{112+r}, s[20:23], 0 offen
        """)
    a("v_add_u32 v20, s42, v5")
    for st in range(20):
        a(f"ds_write_b128 v20, {vr(ACC+4*st,4)} offset:{st*1024}")
    a("s_waitcnt lgkmcnt(0)")
    a("s_barrier")
    a.stamp(7, True)
    a.stamp_flush(12, 2, 32)
    a("s_mov_b32 s16, 0xffff0000")
    a("s_lshl_b32 s40, s32, 10")
    a("v_add_u32 v20, s40, v5")
    a("v_add_u32 v21, 40960, v20")
    a("v_add_u32 v22, 81920, v20")
    a("v_add_u32 v23, 122880, v20")
    for r in range(3):
        if r == 2:
            a("s_cmp_ge_u32 s32, 4")
            a("s_cbranch_scc1 L_g2_r2skip")
        for w in range(8):
            base = 128 + 32 * r + 4 * w
            a(f"ds_read_b128 {vr(base,4)}, v{20+(w>>1)} offset:{(w&1)*20480 + r*8192}")
    a.label("L_g2_r2skip")
    a("s_waitcnt vmcnt(0) lgkmcnt(0)")
    for r in range(3):
        if r == 2:
            a("s_cmp_ge_u32 s32, 4")
            a("s_cbranch_scc1 L_g2_done")
        B = 128 + 32 * r
        X = 116 + 2 * r
        for h in (0, 2):
            a(f"v_pk_add_f32 {vr(B+h,2)}, {vr(B+h,2)}, {vr(B+4+h,2)}")
            a(f"v_pk_add_f32 {vr(B+8+h,2)}, {vr(B+8+h,2)}, {vr(B+12+h,2)}")
            a(f"v_pk_add_f32 {vr(B+16+h,2)}, {vr(B+16+h,2)}, {vr(B+20+h,2)}")
            a(f"v_pk_add_f32 {vr(B+24+h,2)}, {vr(B+24+h,2)}, {vr(B+28+h,2)}")
            a(f"v_pk_add_f32 {vr(B+8+h,2)}, {vr(B+8+h,2)}, {vr(B+16+h,2)}")
            a(f"v_pk_add_f32 {vr(B+8+h,2)}, {vr(B+8+h,2)}, {vr(B+24+h,2)}")
        for p in range(2):
            a0, a1, b0, b1 = B + 2 * p, B + 1 + 2 * p, B + 8 + 2 * p, B + 9 + 2 * p
            a(f"v_cvt_pk_bf16_f32 v25, v{a0}, v{a1}")
            a(f"v_cvt_pk_bf16_f32 v26, v{b0}, v{b1}")
            a(f"v_lshlrev_b32 v{a0}, 16, v25")
            a(f"v_and_b32 v{a1}, s16, v25")
            a(f"v_lshlrev_b32 v{b0}, 16, v26")
            a(f"v_and_b32 v{b1}, s16, v26")
            a(f"v_lshlrev_b32 v26, 16, v{X+p}")
            a(f"v_and_b32 v27, s16, v{X+p}")
            a(f"v_pk_add_f32 {vr(a0,2)}, {vr(a0,2)}, v[26:27]")
            a(f"v_cvt_pk_bf16_f32 v25, v{a0}, v{a1}")
            a(f"v_lshlrev_b32 v{a0}, 16, v25")
            a(f"v_and_b32 v{a1}, s16, v25")
            a(f"v_pk_add_f32 {vr(a0,2)}, {vr(a0,2)}, {vr(b0,2)}")
            a(f"v_cvt_pk_bf16_f32 v{B+16+p}, v{a0}, v{a1}")
        a(f"buffer_store_dwordx2 {vr(B+16,2)}, v{112+r}, s[24:27], 0 offen")
    a.label("L_g2_done")
    a("s_endpgm")


def kd(name, vgpr, sgpr=102):
    acc = (vgpr + 3) // 4 * 4
    return f""".p2align 6
.amdhsa_kernel {name}
  .amdhsa_next_free_vgpr {vgpr}
  .amdhsa_next_free_sgpr {sgpr}
  .amdhsa_accum_offset {acc}
  .amdhsa_group_segment_fixed_size 0
  .amdhsa_kernarg_size 80
  .amdhsa_user_sgpr_count 2
  .amdhsa_user_sgpr_kernarg_segment_ptr 1
  .amdhsa_system_sgpr_workgroup_id_x 1
.end_amdhsa_kernel
"""


def main(outpath):
    a = Asm()
    a.raw("; @launch kernel=g1_kernel grid=(256,1,1) block=(512,1,1) lds=163840")
    a.raw("; @launch kernel=g2_kernel grid=(256,1,1) block=(512,1,1) lds=163840")
    a.raw('.amdgcn_target "amdgcn-amd-amdhsa--gfx950"')
    a.raw(".text")
    for k in ("g1_kernel", "g2_kernel"):
        a.raw(f".globl {k}")
        a.raw(f".type {k},@function")
    gen_k1(a)
    gen_k2(a)
    a.label("L_code_end")
    a.raw('.section .rodata,"a"')
    a.raw(kd("g1_kernel", 256))
    a.raw(kd("g2_kernel", 256))
    open(outpath, "w").write(a.text())


if __name__ == "__main__":
    if len(sys.argv) > 2 and sys.argv[2] == "stamp":
        STAMP = True
    main(sys.argv[1] if len(sys.argv) > 1 else f"cdna_kernels/{NAME}.s")
```

```python
import sys, os

NAME = "parallel_sum__sliding_local_dilated__glu_gated_glu__prompt"
A2_OFF = 0
B2_OFF = 9 << 20
WS_BYTES = 16 << 20
A2_MT = 68 * 1024
STAMP = False
DBGSTAMP = os.environ.get("DBGSTAMP", "") == "1"
ST_FLAGS = os.environ.get("STF", "")
B2F = os.environ.get("B2F", " sc0 sc1")
PRIO = int(os.environ.get("PRIO", "0"))
RDT = int(os.environ.get("RDT", "6"))
CODEPF = int(os.environ.get("CODEPF", "1"))
XMAP = int(os.environ.get("XMAP", "1"))
AFIRST = int(os.environ.get("AFIRST", "1"))
PFD = int(os.environ.get("PFD", "0"))
XP = os.environ.get("XP", "")
TLBPF = int(os.environ.get("TLBPF", "3"))
TLBAT = int(os.environ.get("TLBAT", "0"))
B2AT = int(os.environ.get("B2AT", "9"))
PFSCHED = eval(os.environ.get("PFSCHED", "[(0,4,6),(3,10,5),(6,15,5)]"))


class Asm:
    def __init__(self):
        self.lines = []
        self.vm = []
        self.ool = []

    def __call__(self, s):
        for ln in s.strip("\n").split("\n"):
            ln = ln.strip()
            if ln:
                self.lines.append("    " + ln)

    def label(self, l):
        self.lines.append(l + ":")

    def raw(self, s):
        self.lines.append(s)

    def text(self):
        return "\n".join(l for l in self.lines if l.strip() != "#CHUNK") + "\n"

    def capture(self, fn, *args):
        save = self.lines
        self.lines = []
        fn(*args)
        got = self.lines
        self.lines = save
        chunks, cur = [], []
        for ln in got:
            if ln.strip() == "#CHUNK":
                if cur:
                    chunks.append(cur)
                cur = []
            else:
                cur.append(ln)
        if cur:
            chunks.append(cur)
        return chunks

    def chunk(self):
        self.lines.append("#CHUNK")

    def vmem(self, s, tag, optional=False):
        self(s)
        self.vm.append((tag, optional))
        if not optional:
            self.chunk()

    def vm_count_after(self, tag):
        idx = max([i for i, (t, o) in enumerate(self.vm) if t == tag], default=-1)
        if idx < 0:
            return None
        return sum(1 for (t, o) in self.vm[idx + 1:] if not o)

    def wait_vm(self, tag, lgkm=False):
        n = self.vm_count_after(tag)
        parts = []
        if n is not None:
            assert n < 64
            parts.append(f"vmcnt({n})")
            idx = max([i for i, (t, o) in enumerate(self.vm) if t == tag])
            self.vm = self.vm[idx + 1:]
        if lgkm:
            parts.append("lgkmcnt(0)")
        if parts:
            self("s_waitcnt " + " ".join(parts))

    def stamp(self, n, last=False):
        if not STAMP:
            return
        self("s_memtime s[98:99]")
        self("s_waitcnt lgkmcnt(0)")
        if n == 0:
            self("s_mov_b32 s100, s98")
            self("s_memrealtime s[98:99]")
            self("s_waitcnt lgkmcnt(0)")
            self("s_mov_b32 s101, s98")
            return
        if n == 1:
            self("v_mov_b32 v1, s101")
            self("s_lshl_b32 s101, s2, 3")
            self("s_add_u32 s101, s101, s32")
            self("s_lshl_b32 s101, s101, 6")
            self(f"s_add_u32 s101, s101, {(12+self.kidx)<<20}")
            self("v_mov_b32 v255, 0")
            self("buffer_store_dword v1, v255, s[12:15], s101 offen offset:56")
            self("s_nop 1")
            self("v_mov_b32 v1, s100")
            self("buffer_store_dword v1, v255, s[12:15], s101 offen offset:0")
            self("s_nop 1")
            self.vm.append(("stamp", True)); self.vm.append(("stamp", True))
        self("v_mov_b32 v1, s98")
        self("v_mov_b32 v255, 0")
        self(f"buffer_store_dword v1, v255, s[12:15], s101 offen offset:{4*n}")
        self("s_nop 1")
        self.vm.append(("stamp", True))
        if last:
            self("s_memrealtime s[98:99]")
            self("s_waitcnt lgkmcnt(0)")
            self("v_mov_b32 v1, s98")
            self("buffer_store_dword v1, v255, s[12:15], s101 offen offset:60")
            self("s_nop 1")

    def stamp_flush(self, srd_ws, kidx, swave):
        return


def srd(a, d, base, nbytes):
    a(f"s_mov_b32 s{d}, s{base}")
    a(f"s_mov_b32 s{d+1}, s{base+1}")
    a(f"s_mov_b32 s{d+2}, {nbytes}")
    a(f"s_mov_b32 s{d+3}, 0x00020000")


def vr(b, n):
    return f"v[{b}:{b+n-1}]"


def unswap23(a, dst, src, t0, t1):
    a(f"v_lshrrev_b32 v{t0}, 1, v{src}")
    a(f"v_and_b32 v{t0}, 4, v{t0}")
    a(f"v_lshlrev_b32 v{t1}, 1, v{src}")
    a(f"v_and_b32 v{t1}, 8, v{t1}")
    a(f"v_and_b32 v{dst}, 0x13, v{src}")
    a(f"v_or3_b32 v{dst}, v{dst}, v{t0}, v{t1}")


def divsmall(a, q, p, d, lim=1024):
    m = (65536 + d - 1) // d
    for x in range(lim):
        assert (x * m) >> 16 == x // d, (d, x)
    a(f"v_mul_u32_u24 v{q}, {m}, v{p}")
    a(f"v_lshrrev_b32 v{q}, 16, v{q}")


def sdiv(a, q, p, d, lim):
    m = (65536 + d - 1) // d
    for x in range(lim):
        assert (x * m) >> 16 == x // d, (d, x)
    a(f"s_mul_i32 s{q}, s{p}, {m}")
    a(f"s_lshr_b32 s{q}, s{q}, 16")


def red_g(a, v, t):
    a(f"v_mov_b32 v{t}, v{v}")
    a("s_nop 1")
    a(f"v_permlane32_swap_b32 v{v}, v{t}")
    a("s_nop 1")
    a(f"v_add_f32 v{v}, v{v}, v{t}")
    a(f"v_mov_b32 v{t}, v{v}")
    a("s_nop 1")
    a(f"v_permlane16_swap_b32 v{v}, v{t}")
    a("s_nop 1")
    a(f"v_add_f32 v{v}, v{v}, v{t}")


NK = 20
STAT_LDS = 156 * 1024
CS_LDS = STAT_LDS + 2560
SCR_LDS = 144 * 1024
VONE = 228
TMP = 20


def k1_mainloop(a, NM, NN, dma_fn, xaddr_fn, waddr_fn, ACC, FR, ncs, nrs, CS, RS, hooks=None, mstat=None, skipj=None, NMM=None, mslots=(0,)):
    NMM = NMM or NM
    FS = 4 * NM + 4 * NN

    def xfrag(s, mi):
        return FR + s * FS + 4 * mi

    def wfrag(s, j):
        return FR + s * FS + 4 * NM + 4 * j

    def reads(ks):
        s = ks & 1
        out = []
        for mi in range(NM):
            v, off = xaddr_fn(mi, ks)
            out.append(f"ds_read_b128 {vr(xfrag(s,mi),4)}, v{v} offset:{off}")
        for j in range(NN):
            v, off, dt = waddr_fn(j, ks)
            out.append(f"ds_read_b64_tr_b16 {vr(wfrag(s,j),2)}, v{v} offset:{off}")
            out.append(f"ds_read_b64_tr_b16 {vr(wfrag(s,j)+2,2)}, v{v} offset:{off+dt}")
        return out

    def mfmas(ks):
        s = ks & 1
        out = []
        for j in range(NN):
            grp = []
            for mi in range(NMM):
                acc = ACC + 4 * (mi * NN + j)
                c = "0" if ks == 0 else vr(acc, 4)
                grp.append(f"v_mfma_f32_16x16x32_bf16 {vr(acc,4)}, {vr(wfrag(s,j),4)}, {vr(xfrag(s,mi),4)}, {c}")
            if skipj and j in skipj and "noskip" not in XP:
                lab = f"L_skj_{a.tag}_{ks}_{j}"
                out.append(f"s_cmp_eq_u32 s{skipj[j]}, 15\ns_cbranch_scc1 {lab}\n" + "\n".join(grp) + f"\n{lab}:")
            else:
                out.extend(grp)
        return out

    def stats(ks):
        s = ks & 1
        out = []
        for j in range(ncs):
            c = "0" if ks == 0 else vr(CS + 4 * j, 4)
            out.append(f"v_mfma_f32_16x16x32_bf16 {vr(CS+4*j,4)}, {vr(wfrag(s,j),4)}, {vr(VONE,4)}, {c}")
        valu = []
        if mstat is not None:
            for k, mi in enumerate(mslots):
                R0, Q0 = mstat + 8 * k, mstat + 8 * k + 4
                c0 = "0" if ks == 0 else vr(R0, 4)
                c1 = "0" if ks == 0 else vr(Q0, 4)
                out.append(f"v_mfma_f32_16x16x32_bf16 {vr(R0,4)}, {vr(VONE,4)}, {vr(xfrag(s,mi),4)}, {c0}")
                out.append(f"v_mfma_f32_16x16x32_bf16 {vr(Q0,4)}, {vr(xfrag(s,mi),4)}, {vr(xfrag(s,mi),4)}, {c1}")
            return out, valu
        for mi in range(nrs):
            S0, S1, Q0, Q1 = [RS + 4 * mi + i for i in range(4)]
            for d in range(4):
                x = xfrag(s, mi) + d
                t0, t1 = TMP + 2 * (d & 1), TMP + 2 * (d & 1) + 1
                valu.append(f"v_lshlrev_b32 v{t0}, 16, v{x}")
                valu.append(f"v_and_b32 v{t1}, s69, v{x}")
                if ks == 0 and d == 0:
                    valu.append(f"v_mov_b32 v{S0}, v{t0}")
                    valu.append(f"v_mov_b32 v{S1}, v{t1}")
                    valu.append(f"v_mul_f32 v{Q0}, v{t0}, v{t0}")
                    valu.append(f"v_mul_f32 v{Q1}, v{t1}, v{t1}")
                else:
                    valu.append(f"v_add_f32 v{S0}, v{S0}, v{t0}")
                    valu.append(f"v_add_f32 v{S1}, v{S1}, v{t1}")
                    valu.append(f"v_fmac_f32 v{Q0}, v{t0}, v{t0}")
                    valu.append(f"v_fmac_f32 v{Q1}, v{t1}, v{t1}")
        if "novalu" in XP: valu = []
        if "nocs" in XP: out = []
        return out, valu

    a.stamp(2)
    if PRIO:
        lab = f"L_prio_{a.tag}"
        a(f"s_cmp_eq_u32 s36, {PRIO-1}")
        a(f"s_cbranch_scc0 {lab}")
        a("s_setprio 1")
        a.label(lab)
    a.wait_vm(("st", 0))
    a("s_barrier")
    a.stamp(3)
    for r in reads(0):
        a(r)
    for ks in range(NK):
        if ks + 1 < NK:
            a.wait_vm(("st", ks + 1), lgkm=True)
            a("s_barrier")
            if ks in (4, 10, 16):
                a.stamp({4: 4, 10: 5, 16: 6}[ks])
            if hooks and ks in hooks:
                hooks[ks]()
            dm = a.capture(dma_fn, ks + 4) if ks + 4 < NK else []
            if "nodma" in XP:
                dm = []; a.vm = []
            rd = reads(ks + 1)
            if "nolds" in XP: rd = []
        else:
            a("s_waitcnt lgkmcnt(0)")
            rd = []
            dm = []
        mf = mfmas(ks)
        smf, stt = stats(ks)
        mf = mf + smf
        nr = ns = nd = 0
        L = len(mf)
        for i, m in enumerate(mf):
            a(m)
            while nd < len(dm) and nd < 1 + i * len(dm) // (L - 2):
                a.lines.extend(dm[nd]); nd += 1
            while nr < len(rd) and nr < (i + 1) * len(rd) // max(1, L - RDT):
                a(rd[nr]); nr += 1
            while ns < len(stt) and ns < (i + 1) * len(stt) // L:
                a(stt[ns]); ns += 1
        while nd < len(dm):
            a.lines.extend(dm[nd]); nd += 1
        while nr < len(rd):
            a(rd[nr]); nr += 1
        while ns < len(stt):
            a(stt[ns]); ns += 1


def rowstat_math(a, S, t):
    Q = S + 1
    a(f"v_mul_f32 v{S}, s17, v{S}")
    a(f"v_mul_f32 v{Q}, s17, v{Q}")
    a(f"v_fma_f32 v{Q}, -v{S}, v{S}, v{Q}")
    a(f"v_max_f32 v{Q}, 0, v{Q}")
    a(f"v_cvt_pk_bf16_f32 v{t}, v{S}, v{Q}")
    a(f"v_lshlrev_b32 v{S}, 16, v{t}")
    a(f"v_and_b32 v{Q}, s16, v{t}")
    a(f"v_add_f32 v{Q}, 0x3727c5ac, v{Q}")
    a(f"v_cvt_pk_bf16_f32 v{t}, v{Q}, v{Q}")
    a(f"v_and_b32 v{Q}, s16, v{t}")
    a(f"v_sqrt_f32 v{Q}, v{Q}")
    a("s_nop 0")
    a(f"v_cvt_pk_bf16_f32 v{t}, v{Q}, v{Q}")
    a(f"v_and_b32 v{S+3}, s16, v{t}")
    a(f"v_rcp_f32 v{t}, v{S+3}")
    a("s_nop 0")
    a(f"v_fma_f32 v{Q}, -v{S+3}, v{t}, 1.0")
    a(f"v_fma_f32 v{Q}, v{Q}, v{t}, v{t}")
    a(f"v_mul_f32 v{S+2}, 0xbfb8aa3b, v{Q}")


def gen_k1(a):
    a.raw(".p2align 8")
    a.label("g1_kernel")
    a.kidx = 1
    a("""
    s_cmp_ge_u32 s2, 256
    s_cbranch_scc1 L_g1_done
    """)
    a.stamp(0)
    if CODEPF:
        a("""
        s_getpc_b64 s[90:91]
        L_pc_here:
        s_sub_u32 s90, s90, L_pc_here - g1_kernel
        s_subb_u32 s91, s91, 0
        v_lshlrev_b32 v1, 7, v0
        v_min_u32 v1, L_code_end - g1_kernel - 4, v1
        global_load_dword v254, v1, s[90:91]
        """)
    a("""
    s_load_dwordx4 s[4:7], s[0:1], 0
    s_load_dwordx2 s[52:53], s[0:1], 16
    s_load_dwordx4 s[8:11], s[0:1], 32
    s_load_dwordx2 s[54:55], s[0:1], 48
    s_load_dwordx2 s[56:57], s[0:1], 72
    v_lshrrev_b32 v1, 6, v0
    v_and_b32 v0, 63, v0
    s_nop 0
    v_readfirstlane_b32 s32, v1
    """)
    if XMAP == 0:
        a("""
        s_and_b32 s34, s2, 7
        s_lshr_b32 s3, s2, 3
        s_and_b32 s33, s3, 15
        s_lshr_b32 s3, s3, 4
        """)
    else:
        nmb = 4 - XMAP
        nb = 1 << XMAP
        a(f"""
        s_lshr_b32 s3, s2, 3
        s_and_b32 s33, s3, {(1<<nmb)-1}
        s_and_b32 s34, s2, {nb-1}
        s_lshl_b32 s34, s34, {nmb}
        s_add_u32 s33, s33, s34
        s_bfe_u32 s34, s3, {(XMAP<<16)|nmb}
        s_and_b32 s35, s2, {7 & ~(nb-1)}
        s_add_u32 s34, s34, s35
        s_lshr_b32 s3, s3, 4
        """)
    a("""
    s_lshr_b32 s36, s32, 2
    s_and_b32 s37, s32, 3
    v_lshrrev_b32 v2, 4, v0
    v_bfe_u32 v3, v0, 2, 2
    v_and_b32 v4, 3, v0
    v_lshlrev_b32 v5, 4, v0
    v_mov_b32 v228, 0x3f803f80
    v_mov_b32 v229, 0x3f803f80
    v_mov_b32 v230, 0x3f803f80
    v_mov_b32 v231, 0x3f803f80
    s_mov_b32 s69, 0xffff0000
    v_and_b32 v6, 15, v0
    s_waitcnt lgkmcnt(0)
    """)
    srd(a, 12, 56, WS_BYTES)
    srd(a, 28, 4, 2048 * 1280)
    a("""
    v_lshrrev_b32 v20, 3, v0
    v_and_b32 v21, 7, v0
    v_xor_b32 v21, v21, v20
    v_mul_u32_u24 v7, 1280, v20
    v_lshl_add_u32 v7, v21, 4, v7
    """)
    a("""
    v_and_b32 v20, 7, v6
    v_xor_b32 v21, v2, v20
    v_lshlrev_b32 v8, 7, v20
    v_lshl_add_u32 v8, v21, 4, v8
    v_lshrrev_b32 v20, 3, v6
    v_lshl_add_u32 v8, v20, 10, v8
    """)
    a("""
    v_and_b32 v20, 1, v2
    v_lshl_add_u32 v20, v20, 2, v3
    v_lshrrev_b32 v21, 1, v2
    v_lshl_add_u32 v9, v21, 4, v20
    """)

    def b2_issue():
        a("""
        s_mul_i32 s58, s2, 3
        s_add_u32 s58, s58, s32
        s_cmp_lt_u32 s32, 3
        s_cselect_b32 s58, s58, 4095
        s_cmp_lt_u32 s58, 680
        s_cbranch_scc0 L_b2_skip1_%s
        """ % a.tag)
        sdiv(a, 59, 58, 10, 680)
        a("""
        s_mul_i32 s60, s59, 10
        s_sub_u32 s60, s58, s60
        s_cmp_lt_u32 s59, 20
        s_cselect_b32 s64, s52, s54
        s_cselect_b32 s65, s53, s55
        s_mov_b32 s66, 1966080
        s_cselect_b32 s66, 819200, s66
        s_mov_b32 s67, 0x00020000
        s_sub_u32 s61, s59, 20
        s_cmp_lt_u32 s59, 20
        s_cselect_b32 s61, s59, s61
        s_mul_i32 s61, s61, 40960
        s_lshl_b32 s62, s60, 7
        s_add_u32 s61, s61, s62
        s_lshl_b32 s62, s32, 12
        s_add_u32 s62, s62, %d
        v_lshrrev_b32 v20, 3, v0
        v_and_b32 v21, 7, v0
        """ % SCR_LDS)
        for i in range(4):
            a(f"v_add_u32 v22, {8*i}, v20")
            unswap23(a, 23, 22, 246, 247)
            a("v_mul_u32_u24 v23, 1280, v23")
            a("v_lshl_add_u32 v23, v21, 4, v23")
            a(f"s_add_u32 m0, s62, {1024*i}")
            a("s_nop 0")
            a.vmem("buffer_load_dwordx4 v23, s[64:67], s61 offen lds", "b2", optional=True)
        a.label("L_b2_skip1_%s" % a.tag)

    def b2_finish():
        a("s_cmp_lt_u32 s58, 680")
        a("s_cbranch_scc0 L_b2_skip2_%s" % a.tag)
        a("v_lshlrev_b32 v1, 7, v9")
        a("v_lshl_add_u32 v1, v4, 3, v1")
        a("v_add_u32 v1, s62, v1")
        regs = [244, 248, 252, 20]
        for jj in range(4):
            a(f"ds_read_b64_tr_b16 {vr(regs[jj],2)}, v1 offset:{32*jj}")
            a(f"ds_read_b64_tr_b16 {vr(regs[jj]+2,2)}, v1 offset:{32*jj+1024}")
        a("s_waitcnt lgkmcnt(0)")
        for jj in range(4):
            a("s_lshl_b32 s61, s60, 2")
            a(f"s_add_u32 s61, s61, {jj}")
            sdiv(a, 62, 61, 5, 40)
            a("s_mul_i32 s63, s62, 5")
            a("s_sub_u32 s63, s61, s63")
            a("s_mul_i32 s62, s62, 68")
            a("s_add_u32 s62, s62, s59")
            a("s_mul_i32 s62, s62, 5")
            a("s_add_u32 s62, s62, s63")
            a("s_lshl_b32 s62, s62, 10")
            a(f"s_add_u32 s62, s62, {B2_OFF}")
            a.vmem(f"buffer_store_dwordx4 {vr(regs[jj],4)}, v5, s[12:15], s62 offen{B2F}", "b2s", optional=True)
        a("s_nop 4")
        a.label("L_b2_skip2_%s" % a.tag)

    if AFIRST:
        a("s_cmp_eq_u32 s3, 0")
        a("s_cbranch_scc0 L_g1_glu")
        main_lines = a.lines
        a.lines = []
        a.label("L_g1_glu")
    else:
        a("s_cmp_eq_u32 s3, 0")
        a("s_cbranch_scc1 L_g1_attn")

    a.tag = "g"
    a.vm = []
    AR_G = 16384
    BR_G = 49152
    BS_G = 24576
    srd(a, 16, 8, 640 * 3072)
    srd(a, 20, 10, 640 * 3072)
    a("""
    s_cmp_lt_u32 s32, 4
    s_cselect_b32 s24, s8, s10
    s_cselect_b32 s25, s9, s11
    s_mov_b32 s26, 1966080
    s_mov_b32 s27, 0x00020000
    s_mov_b32 s43, 12288
    s_cselect_b32 s43, 0, s43
    """)
    a(f"""
    s_lshl_b32 s40, s32, 10
    s_add_u32 s41, s40, {BR_G}
    s_add_u32 s42, s40, {BR_G+12288}
    s_lshl_b32 s44, s37, 10
    s_add_u32 s43, s43, s44
    s_add_u32 s43, s43, {BR_G+8192}
    """)
    a("""
    s_lshl_b32 s44, s33, 4
    s_add_u32 s44, s44, s32
    s_mul_i32 s44, s44, 10240
    v_add_u32 v10, s44, v7
    v_add_u32 v11, 81920, v10
    s_mul_i32 s45, s34, 384
    """)

    def gate_off(dst, sInstr):
        a(f"s_lshl_b32 s44, s{sInstr}, 6")
        a(f"v_add_u32 v20, s44, v0")
        divsmall(a, 21, 20, 48)
        a("v_mul_u32_u24 v22, 48, v21")
        a("v_sub_u32 v22, v20, v22")
        a("v_and_b32 v23, 7, v21")
        a("v_lshlrev_b32 v23, 1, v23")
        a("v_xor_b32 v22, v22, v23")
        a("v_cmp_le_u32 vcc, 24, v22")
        a("s_nop 1")
        a("v_cndmask_b32 v23, 0, 1, vcc")
        a("v_mul_u32_u24 v24, 24, v23")
        a("v_sub_u32 v22, v22, v24")
        a("v_lshl_add_u32 v21, v23, 4, v21")
        unswap23(a, 24, 21, 25, 26)
        a("v_mul_u32_u24 v24, 3072, v24")
        a("v_lshl_add_u32 v24, v22, 4, v24")
        a(f"v_add_u32 v{dst}, s45, v24")
    gate_off(12, 32)
    a("s_add_u32 s46, s37, 8")
    gate_off(13, 46)
    a("s_mov_b32 s47, 0")
    a("s_mov_b32 s48, 0")

    def dma_g(st):
        sb = (st & 3) * BS_G
        if st % 2 == 0:
            ab = ((st // 2) % 3) * AR_G
            a(f"s_add_u32 m0, s40, {ab}")
            a("s_nop 0")
            a.vmem("buffer_load_dwordx4 v10, s[28:31], s47 offen lds", ("st", st))
            a(f"s_add_u32 m0, s40, {ab+8192}")
            a("s_nop 0")
            a.vmem("buffer_load_dwordx4 v11, s[28:31], s47 offen lds", ("st", st))
            a("s_add_u32 s47, s47, 128")
        a(f"s_add_u32 m0, s41, {sb}")
        a("s_nop 0")
        a.vmem("buffer_load_dwordx4 v12, s[16:19], s48 offen lds", ("st", st))
        a(f"s_add_u32 m0, s42, {sb}")
        a("s_nop 0")
        a.vmem("buffer_load_dwordx4 v12, s[20:23], s48 offen lds", ("st", st))
        a(f"s_add_u32 m0, s43, {sb}")
        a("s_nop 0")
        a.vmem("buffer_load_dwordx4 v13, s[24:27], s48 offen lds", ("st", st))
        a("s_add_u32 s48, s48, 98304")

    a.stamp(1)
    for st in range(4):
        dma_g(st)
    def tlb_g(k0=4, nk=16, tg=0):
        a(f"""
        s_mul_i32 s44, s33, {2*nk}
        s_add_u32 s44, s44, {32*k0}
        v_min_u32 v20, {2*nk-1}, v0
        v_add_u32 v20, s44, v20
        v_mul_u32_u24 v20, 3072, v20
        v_add_u32 v20, s45, v20
        """)
        offs = {1: [0], 2: [0, 256], 3: [0, 128, 256]}[TLBPF]
        for li, off in enumerate(offs):
            for mtx, sr in enumerate((16, 20)):
                wv = 2 * li + mtx
                a(f"s_cmp_eq_u32 s32, {wv}")
                a(f"s_cbranch_scc0 L_tlb_g{wv}_{tg}")
                a.vmem(f"buffer_load_dword v244, v20, s[{sr}:{sr+3}], 0 offen offset:{off}", "pf", optional=True)
                a.label(f"L_tlb_g{wv}_{tg}")
    if TLBPF and TLBAT < 0:
        tlb_g()

    def pf_w_g():
        a("""
        s_and_b32 s44, s32, 1
        s_cmp_eq_u32 s44, 0
        s_cselect_b32 s64, s8, s10
        s_cselect_b32 s65, s9, s11
        s_mov_b32 s66, 1966080
        s_mov_b32 s67, 0x00020000
        s_add_u32 s44, s33, 4
        s_lshl_b32 s44, s44, 5
        s_bfe_u32 s46, s32, 0x10001
        s_lshl_b32 s46, s46, 4
        s_add_u32 s44, s44, s46
        v_lshrrev_b32 v20, 2, v0
        v_add_u32 v20, s44, v20
        v_mul_u32_u24 v20, 3072, v20
        v_min_u32 v21, 2, v4
        v_lshl_add_u32 v20, v21, 7, v20
        v_add_u32 v20, s45, v20
        """)
        a.vmem("buffer_load_dword v244, v20, s[64:67], 0 offen", "pf")

    def pf_x_g():
        a("""
        s_lshl_b32 s44, s33, 4
        s_add_u32 s44, s44, s32
        s_lshl_b32 s44, s44, 3
        v_lshrrev_b32 v20, 3, v0
        v_add_u32 v20, s44, v20
        v_mul_u32_u24 v20, 1280, v20
        v_and_b32 v21, 7, v0
        v_lshl_add_u32 v20, v21, 7, v20
        """)
        a.vmem("buffer_load_dword v245, v20, s[28:31], 0 offen offset:256", "pf")

    XA = 208
    for mi in range(4):
        a(f"s_add_u32 s44, s37, {mi}")
        a("s_and_b32 s44, s44, 3")
        a("s_lshl_b32 s46, s36, 2")
        a("s_add_u32 s44, s44, s46")
        a("s_lshl_b32 s44, s44, 11")
        a(f"v_add_u32 v{XA+mi}, s44, v8")
        a(f"v_xor_b32 v{XA+4+mi}, 64, v{XA+mi}")
    WA = 216
    a(f"""
    v_and_b32 v20, 7, v9
    v_lshrrev_b32 v21, 1, v2
    v_mul_u32_u24 v21, 12, v21
    s_mul_i32 s44, s37, 3
    v_add_u32 v21, s44, v21
    v_mul_u32_u24 v22, 768, v20
    v_lshl_add_u32 v22, v4, 3, v22
    v_add_u32 v22, {BR_G}, v22
    s_mul_i32 s44, s36, 12288
    s_sub_u32 s46, 12288, s44
    """)
    for i in range(3):
        a(f"v_add_u32 v23, {i}, v21")
        a("v_xor_b32 v23, v23, v20")
        a(f"v_lshl_add_u32 v23, v23, 5, v22")
        a(f"v_add_u32 v{WA+i}, s44, v23")
        a(f"v_add_u32 v{WA+3+i}, s46, v23")
        a(f"v_add_u32 v{WA+6+i}, {2*BS_G}, v{WA+i}")
        a(f"v_add_u32 v{WA+9+i}, {2*BS_G}, v{WA+3+i}")

    def xaddr_g(mi, ks):
        return XA + 4 * (ks & 1) + mi, ((ks // 2) % 3) * AR_G

    def waddr_g(j, ks):
        slot = ks & 3
        v = WA + (6 if slot >= 2 else 0) + j
        return v, (slot & 1) * BS_G, 6144

    ACC = 32
    FR = 128
    CS, RS = 232, 24
    a("""
    s_lshl_b32 s44, s33, 1
    v_and_b32 v14, 1, v0
    v_add_u32 v14, s44, v14
    v_mul_u32_u24 v14, 3072, v14
    v_bfe_u32 v20, v0, 1, 2
    v_min_u32 v20, 2, v20
    v_lshl_add_u32 v14, v20, 7, v14
    v_add_u32 v14, s45, v14
    s_lshl_b32 s44, s33, 7
    v_add_u32 v15, s44, v0
    v_mul_u32_u24 v15, 1280, v15
    """)

    def mk_roll(ks, wsrds, wstride, extra=None):
        def f():
            if extra:
                extra()
            if PFD and ks + PFD < NK:
                lab = f"L_pf_{a.tag}_{ks}"
                a(f"s_cmp_eq_u32 s32, {ks & 7}")
                a(f"s_cbranch_scc0 {lab}")
                a(f"s_mov_b32 s44, {(ks+PFD)*wstride}")
                for sr in wsrds:
                    a.vmem(f"buffer_load_dword v244, v14, s[{sr}:{sr+3}], s44 offen", "pf", optional=True)
                a.label(lab)
            if PFD and ks % 2 == 0 and (ks + PFD) // 2 + 1 < 10:
                lab = f"L_pfx_{a.tag}_{ks}"
                a(f"s_cmp_eq_u32 s32, {(ks + 1) & 7}")
                a(f"s_cbranch_scc0 {lab}")
                a(f"s_mov_b32 s44, {((ks+PFD)//2+1)*128}")
                a.vmem(f"buffer_load_dword v245, v15, s[28:31], s44 offen", "pf", optional=True)
                a.label(lab)
        return f
    hx = {B2AT: b2_issue, B2AT + 6: b2_finish}
    for bi, (at, k0, nk) in enumerate(PFSCHED):
        hx[at] = (lambda k0=k0, nk=nk, bi=bi: tlb_g(k0, nk, bi))
    hk = {ks: mk_roll(ks, (16, 20), 98304, hx.get(ks)) for ks in range(NK - 1)}
    k1_mainloop(a, 4, 6, dma_g, xaddr_g, waddr_g, ACC, FR, 3, 1, CS, RS, hooks=hk)
    a.stamp(7)
    a("s_mov_b32 s16, 0xffff0000")
    a("s_mov_b32 s17, 0x3acccccd")
    a("v_add_f32 v16, v24, v25")
    a("v_add_f32 v17, v26, v27")
    for v in (16, 17):
        red_g(a, v, 20)
    rowstat_math(a, 16, 20)
    a(f"""
    s_lshl_b32 s44, s36, 2
    s_add_u32 s44, s44, s37
    s_lshl_b32 s44, s44, 8
    s_add_u32 s44, s44, {STAT_LDS}
    v_lshl_add_u32 v20, v6, 4, s44
    ds_write_b128 v20, v[16:19]
    s_mul_i32 s44, s36, 12
    s_mul_i32 s46, s37, 3
    s_add_u32 s44, s44, s46
    s_lshl_b32 s44, s44, 6
    s_add_u32 s44, s44, {CS_LDS}
    v_lshl_add_u32 v20, v2, 4, s44
    ds_write_b128 v20, v[232:235]
    ds_write_b128 v20, v[236:239] offset:64
    ds_write_b128 v20, v[240:243] offset:128
    s_waitcnt lgkmcnt(0)
    s_barrier
    """)
    for mi in range(4):
        a(f"s_add_u32 s44, s37, {mi}")
        a("s_and_b32 s44, s44, 3")
        a("s_lshl_b32 s46, s36, 2")
        a("s_add_u32 s44, s44, s46")
        a("s_lshl_b32 s44, s44, 8")
        a(f"s_add_u32 s44, s44, {STAT_LDS}")
        a("v_lshl_add_u32 v20, v6, 4, s44")
        a(f"ds_read_b128 {vr(128+4*mi,4)}, v20")
    a(f"""
    s_mul_i32 s44, s37, 192
    s_add_u32 s44, s44, {CS_LDS}
    v_lshl_add_u32 v20, v2, 4, s44
    """)
    for i in range(3):
        a(f"ds_read_b128 {vr(144+4*i,4)}, v20 offset:{64*i}")
        a(f"ds_read_b128 {vr(156+4*i,4)}, v20 offset:{768+64*i}")
    a(f"""
    v_lshrrev_b32 v21, 1, v2
    v_lshl_add_u32 v20, v21, 4, v6
    v_lshlrev_b32 v20, 4, v20
    v_and_b32 v21, 1, v2
    v_lshl_add_u32 v20, v21, 3, v20
    s_lshl_b32 s44, s33, 3
    s_lshl_b32 s45, s36, 2
    s_add_u32 s44, s44, s45
    s_mul_i32 s44, s44, {A2_MT}
    s_add_u32 s44, s44, {A2_OFF + 20*1024}
    v_add_u32 v20, s44, v20
    s_mul_i32 s45, s34, 12
    s_mul_i32 s46, s37, 3
    s_add_u32 s45, s45, s46
    s_lshl_b32 s45, s45, 9
    s_add_u32 s46, s45, 512
    s_add_u32 s47, s45, 1024
    """)
    for mi in range(4):
        a(f"s_add_u32 s44, s37, {mi}")
        a("s_and_b32 s44, s44, 3")
        a(f"s_mul_i32 s44, s44, {A2_MT}")
        a(f"v_add_u32 v{24+mi}, s44, v20")
    a("s_waitcnt lgkmcnt(0)")

    def g_epi(swapped):
        for mi in range(4):
            P = 128 + 4 * mi
            for i in range(3):
                g = ACC + 4 * (mi * 6 + (3 + i if swapped else i))
                u = ACC + 4 * (mi * 6 + (i if swapped else 3 + i))
                for h in (0, 2):
                    a(f"v_pk_fma_f32 {vr(g+h,2)}, {vr(144+4*i+h,2)}, {vr(P,2)}, {vr(g+h,2)} op_sel_hi:[1,0,1] neg_lo:[0,1,0] neg_hi:[0,1,0]")
                for h in (0, 2):
                    a(f"v_pk_mul_f32 {vr(g+h,2)}, {vr(g+h,2)}, {vr(P+2,2)} op_sel_hi:[1,0]")
                for e in range(4):
                    a(f"v_exp_f32 v{g+e}, v{g+e}")
                for h in (0, 2):
                    a(f"v_pk_fma_f32 {vr(u+h,2)}, {vr(156+4*i+h,2)}, {vr(P,2)}, {vr(u+h,2)} op_sel_hi:[1,0,1] neg_lo:[0,1,0] neg_hi:[0,1,0]")
                for h in (0, 2):
                    a(f"v_pk_fma_f32 {vr(g+h,2)}, {vr(g+h,2)}, {vr(P+2,2)}, {vr(P+2,2)} op_sel:[0,1,1] op_sel_hi:[1,1,1]")
                for e in range(4):
                    a(f"v_rcp_f32 v{g+e}, v{g+e}")
                a("s_nop 0")
                for h in (0, 2):
                    a(f"v_pk_mul_f32 {vr(g+h,2)}, {vr(g+h,2)}, {vr(u+h,2)}")
                a(f"v_cvt_pk_bf16_f32 v{u}, v{g}, v{g+1}")
                a(f"v_cvt_pk_bf16_f32 v{u+1}, v{g+2}, v{g+3}")
                a(f"buffer_store_dwordx2 {vr(u,2)}, v{24+mi}, s[12:15], s{45+i} offen{ST_FLAGS}")
    a("s_cmp_eq_u32 s36, 0")
    a("s_cbranch_scc0 L_g1_g_sw")
    g_epi(False)
    a("s_branch L_g1_g_end")
    a.label("L_g1_g_sw")
    g_epi(True)
    a.label("L_g1_g_end")
    a.stamp(8, True)
    a.stamp_flush(12, 1, 32)
    a("s_endpgm")

    if AFIRST:
        g_lines = a.lines
        a.lines = main_lines
    a.label("L_g1_attn")
    a.tag = "a"
    a.vm = []
    AR_A = 18432
    BR_A = 55296
    BS_A = 15360
    srd(a, 16, 6, 640 * 3840)
    a(f"""
    s_lshl_b32 s42, s32, 10
    s_add_u32 s40, s42, {BR_A}
    s_add_u32 s41, s42, {BR_A+8192}
    s_mul_i32 s45, s34, 160
    """)

    def qkv_off(dst, sInstr):
        a(f"s_lshl_b32 s44, s{sInstr}, 6")
        a(f"v_add_u32 v20, s44, v0")
        divsmall(a, 21, 20, 30)
        a("v_mul_u32_u24 v22, 30, v21")
        a("v_sub_u32 v22, v20, v22")
        divsmall(a, 23, 22, 10)
        a("v_mul_u32_u24 v24, 10, v23")
        a("v_sub_u32 v22, v22, v24")
        a("v_and_b32 v21, 31, v21")
        unswap23(a, 24, 21, 25, 26)
        a("v_mul_u32_u24 v24, 3840, v24")
        a("v_mul_u32_u24 v23, 1280, v23")
        a("v_add_u32 v24, v24, v23")
        a("v_lshl_add_u32 v24, v22, 4, v24")
        a(f"v_add_u32 v{dst}, s45, v24")

    def ajob_off(dst, sJob):
        a("s_lshl_b32 s44, s33, 4")
        a(f"s_add_u32 s44, s44, s{sJob}")
        a("s_max_u32 s44, s44, 2")
        a("s_sub_u32 s44, s44, 2")
        a("s_mul_i32 s44, s44, 10240")
        a(f"v_add_u32 v{dst}, s44, v7")
    qkv_off(12, 32)
    a("s_add_u32 s46, s32, 8")
    a("s_min_u32 s46, s46, 14")
    qkv_off(13, 46)
    ajob_off(10, 32)
    a("s_add_u32 s46, s32, 8")
    ajob_off(11, 46)
    a("s_and_b32 s46, s32, 1")
    a("s_add_u32 s46, s46, 16")
    ajob_off(19, 46)
    a("""
    s_mov_b32 s47, 0
    s_mov_b32 s48, 0
    """)

    def dma_a(st):
        sb = (st & 3) * BS_A
        a(f"s_add_u32 m0, s40, {sb}")
        a("s_nop 0")
        a.vmem("buffer_load_dwordx4 v12, s[16:19], s48 offen lds", ("st", st))
        a("s_cmp_eq_u32 s32, 7")
        lab = f"L_a_s1_{a.tag}_{st}"
        a(f"s_cbranch_scc1 {lab}")
        a(f"s_add_u32 m0, s41, {sb}")
        a("s_nop 0")
        a.vmem("buffer_load_dwordx4 v13, s[16:19], s48 offen lds", ("st", st), optional=True)
        a.label(lab)
        a("s_add_u32 s48, s48, 122880")
        if st % 2 == 0:
            ab = ((st // 2) % 3) * AR_A
            lab = f"L_a_s4_{a.tag}_{st}"
            a("s_cmp_ge_u32 s32, 6")
            a(f"s_cbranch_scc1 {lab}_o")
            a.label(lab)
            a.vm.append((("st", st), True))
            a.ool.append(f"{lab}_o:\ns_add_u32 m0, s42, {ab + 10*1024}\ns_nop 0\nbuffer_load_dwordx4 v19, s[28:31], s47 offen lds\ns_branch {lab}")
            a(f"s_add_u32 m0, s42, {ab}")
            a("s_nop 0")
            a.vmem("buffer_load_dwordx4 v10, s[28:31], s47 offen lds", ("st", st))
            a(f"s_add_u32 m0, s42, {ab+8192}")
            a("s_nop 0")
            a.vmem("buffer_load_dwordx4 v11, s[28:31], s47 offen lds", ("st", st))
            a("s_add_u32 s47, s47, 128")

    a.stamp(1)
    for st in range(4):
        dma_a(st)
    def tlb_a(k0=4, nk=16, tg=0):
        a(f"""
        s_mul_i32 s44, s33, {2*nk}
        s_add_u32 s44, s44, {32*k0}
        v_min_u32 v20, {2*nk-1}, v0
        v_add_u32 v20, s44, v20
        v_mul_u32_u24 v20, 3840, v20
        v_add_u32 v20, s45, v20
        s_mul_i32 s44, s32, 1280
        s_cmp_lt_u32 s32, 3
        s_cbranch_scc0 L_tlb_a0_{a.tag}_{tg}
        """)
        a.vmem("buffer_load_dword v244, v20, s[16:19], s44 offen", "pf", optional=True)
        a.label(f"L_tlb_a0_{a.tag}_{tg}")
        if TLBPF >= 3:
            a(f"""
            s_sub_u32 s44, s32, 3
            s_cmp_lt_u32 s44, 3
            s_cbranch_scc0 L_tlb_a1_{a.tag}_{tg}
            s_mul_i32 s44, s44, 1280
            """)
            a.vmem("buffer_load_dword v244, v20, s[16:19], s44 offen offset:128", "pf", optional=True)
            a.label(f"L_tlb_a1_{a.tag}_{tg}")
    if TLBPF and TLBAT < 0:
        tlb_a()

    def pf_w_a():
        a("""
        s_add_u32 s44, s33, 4
        s_lshl_b32 s44, s44, 5
        s_lshl_b32 s46, s37, 3
        s_add_u32 s44, s44, s46
        v_lshrrev_b32 v20, 3, v0
        v_add_u32 v20, s44, v20
        v_mul_u32_u24 v20, 3840, v20
        v_and_b32 v21, 7, v0
        v_min_u32 v21, 5, v21
        v_lshrrev_b32 v22, 1, v21
        v_mul_u32_u24 v22, 1280, v22
        v_and_b32 v21, 1, v21
        v_lshl_add_u32 v22, v21, 7, v22
        v_add3_u32 v20, v20, v22, s45
        """)
        a.vmem("buffer_load_dword v244, v20, s[16:19], 0 offen", "pf")

    def pf_x_a():
        a("""
        s_lshl_b32 s44, s33, 4
        s_add_u32 s44, s44, s32
        s_add_u32 s44, s44, 8
        s_lshl_b32 s44, s44, 3
        v_lshrrev_b32 v20, 3, v0
        v_add_u32 v20, s44, v20
        v_mul_u32_u24 v20, 1280, v20
        v_and_b32 v21, 7, v0
        v_lshl_add_u32 v20, v21, 7, v20
        """)
        a.vmem("buffer_load_dword v245, v20, s[28:31], 0 offen offset:256", "pf")

    def frag_of(mi, dst):
        a(f"s_add_u32 s44, s37, {mi}")
        a("s_sub_u32 s46, s44, 5")
        a("s_cmp_ge_u32 s44, 5")
        a("s_cselect_b32 s46, s46, s44")
        if mi < 4:
            a("s_and_b32 s44, s44, 3")
            a("s_add_u32 s44, s44, 5")
        else:
            a("s_mov_b32 s44, 4")
        a("s_cmp_eq_u32 s36, 0")
        a(f"s_cselect_b32 s{dst}, s46, s44")

    for mi in range(5):
        frag_of(mi, 44)
        a(f"s_mul_i32 s{70+mi}, s44, {16*488}")
        a("s_lshl_b32 s46, s44, 8")
        a(f"s_add_u32 s{75+mi}, s46, {STAT_LDS}")
        a("s_lshl_b32 s44, s44, 11")
        a(f"v_add_u32 v{XA+mi}, s44, v8")
        a(f"v_xor_b32 v{XA+5+mi}, 64, v{XA+mi}")
    WAa = 220
    a(f"""
    v_mul_u32_u24 v20, 480, v9
    v_lshl_add_u32 v20, v4, 3, v20
    v_add_u32 v20, {BR_A}, v20
    """)
    for j in range(4):
        a("s_lshl_b32 s44, s36, 1")
        a(f"s_add_u32 s44, s44, {j}")
        a("s_and_b32 s44, s44, 3")
        a("s_lshl_b32 s46, s37, 2")
        a("s_add_u32 s44, s44, s46")
        if j in (1, 3):
            a(f"s_mov_b32 s{50 if j == 1 else 51}, s44")
        a("s_lshl_b32 s44, s44, 5")
        a(f"v_add_u32 v{WAa+j}, s44, v20")

    def xaddr_a(mi, ks):
        return XA + 5 * (ks & 1) + mi, ((ks // 2) % 3) * AR_A

    def waddr_a(j, ks):
        return WAa + j, (ks & 3) * BS_A, 3840

    CSa, RSa = 232, 24
    T32 = 32 * 488
    a("""
    v_mul_u32_u24 v21, 488, v6
    v_lshl_add_u32 v21, v2, 3, v21
    """)
    for j in range(4):
        a("s_lshl_b32 s44, s36, 1")
        a(f"s_add_u32 s44, s44, {j}")
        a("s_and_b32 s44, s44, 3")
        a("s_lshl_b32 s46, s37, 2")
        a("s_add_u32 s44, s44, s46")
        a("s_lshl_b32 s46, s44, 5")
        a(f"v_add_u32 v{200+j}, s46, v21")
        a("s_lshl_b32 s44, s44, 6")
        a(f"s_add_u32 s44, s44, {CS_LDS}")
        a(f"v_lshl_add_u32 v{224+j}, v2, 4, s44")
    a(f"""
    v_lshl_add_u32 v20, v6, 1, s36
    v_add_u32 v21, 16, v20
    v_subrev_u32 v22, 16, v20
    v_max_i32 v22, 0, v22
    s_mul_i32 s44, s37, 40
    v_mul_u32_u24 v21, 488, v21
    v_mul_u32_u24 v22, 488, v22
    v_lshl_add_u32 v23, v2, 4, s44
    v_add_u32 v204, v21, v23
    v_add_u32 v205, v22, v23
    v_lshl_add_u32 v20, v2, 2, v3
    v_lshl_add_u32 v20, v20, 1, s36
    v_add_u32 v21, 16, v20
    v_subrev_u32 v22, 16, v20
    v_max_i32 v22, 0, v22
    v_mul_u32_u24 v21, 488, v21
    v_mul_u32_u24 v22, 488, v22
    v_lshl_add_u32 v23, v4, 3, s44
    v_add_u32 v206, v21, v23
    v_add_u32 v207, v22, v23
    s_mul_i32 s44, s34, 80
    s_mul_i32 s46, s37, 20
    s_add_u32 s44, s44, s46
    v_lshl_add_u32 v23, v2, 2, s44
    v_lshrrev_b32 v21, 3, v23
    v_lshlrev_b32 v21, 8, v21
    v_and_b32 v23, 4, v23
    v_lshl_add_u32 v21, v23, 1, v21
    v_lshrrev_b32 v23, 3, v6
    s_lshl_b32 s46, s33, 3
    v_add_u32 v23, s46, v23
    v_mul_u32_u24 v23, {A2_MT}, v23
    v_and_b32 v22, 7, v6
    v_lshl_add_u32 v22, v22, 1, s36
    v_lshl_add_u32 v23, v22, 4, v23
    v_add_u32 v218, v23, v21
    s_add_u32 s44, s44, 16
    s_lshr_b32 s46, s44, 3
    s_lshl_b32 s46, s46, 8
    s_and_b32 s44, s44, 4
    s_lshl_b32 s44, s44, 1
    s_add_u32 s46, s46, s44
    v_add_u32 v219, s46, v23
    v_lshlrev_b32 v20, 2, v2
    v_add_u32 v21, 9, v6
    """)
    for r in range(4):
        a(f"v_add_u32 v22, {r}, v20")
        a(f"v_cmp_ge_u32 s[{80+2*r}:{81+2*r}], v22, v21")
        a(f"v_cmp_le_u32 s[{88+2*r}:{89+2*r}], v22, v6")
        a(f"v_add_u32 v22, 7, v22")
        a(f"v_cmp_ge_u32 s[38:39], v22, v6")
        a("s_nop 1")
        a(f"s_and_b64 s[{88+2*r}:{89+2*r}], s[{88+2*r}:{89+2*r}], s[38:39]")
    a("v_cmp_gt_u32 s[38:39], 3, v2")
    a("v_cmp_gt_u32 s[96:97], 2, v2")
    hx = {B2AT: b2_issue, B2AT + 6: b2_finish}
    for bi, (at, k0, nk) in enumerate(PFSCHED):
        hx[at] = (lambda k0=k0, nk=nk, bi=bi: tlb_a(k0, nk, bi))
    hk = {ks: mk_roll(ks, (16,), 122880, hx.get(ks)) for ks in range(NK - 1)}
    vm0 = list(a.vm)
    a("s_cmp_eq_u32 s36, 0")
    a("s_cbranch_scc0 L_a_loop1")
    a.tag = "a0"
    k1_mainloop(a, 5, 4, dma_a, xaddr_a, waddr_a, ACC, FR, 2, 2, CSa, RSa, hooks=hk, mstat=112, NMM=5, mslots=(0,))
    a("s_branch L_a_loopend")
    a.label("L_a_loop1")
    a.tag = "a1"
    a.vm = vm0
    k1_mainloop(a, 5, 4, dma_a, xaddr_a, waddr_a, ACC, FR, 2, 2, CSa, RSa, hooks=hk, mstat=112, NMM=4, mslots=(0, 4))
    a.label("L_a_loopend")
    a.stamp(7)
    a("s_mov_b32 s16, 0xffff0000")
    a("s_mov_b32 s17, 0x3acccccd")
    a("""
    s_nop 7
    v_lshrrev_b32 v21, 2, v6
    v_cmp_eq_u32 s[40:41], v21, v2
    v_and_b32 v21, 3, v6
    v_cmp_eq_u32 s[42:43], 1, v21
    v_cmp_eq_u32 s[44:45], 2, v21
    v_cmp_eq_u32 s[46:47], 3, v21
    s_nop 1
    """)
    for mi, S in ((0, 12), (1, 16)):
        R0, Q0 = 112 + 8 * mi, 116 + 8 * mi
        a(f"v_mov_b32 v{S}, v{R0}")
        a(f"v_cndmask_b32 v{S+1}, v{Q0}, v{Q0+1}, s[42:43]")
        a(f"v_cndmask_b32 v{S+1}, v{S+1}, v{Q0+2}, s[44:45]")
        a(f"v_cndmask_b32 v{S+1}, v{S+1}, v{Q0+3}, s[46:47]")
        a(f"v_cndmask_b32 v{S+1}, 0, v{S+1}, s[40:41]")
        red_g(a, S + 1, 20)
    rowstat_math(a, 12, 20)
    rowstat_math(a, 16, 20)
    a(f"""
    v_lshl_add_u32 v20, v6, 4, s75
    ds_write_b128 v20, v[12:15]
    s_cmp_eq_u32 s36, 0
    s_cbranch_scc1 L_a_nos1
    v_lshl_add_u32 v20, v6, 4, s79
    ds_write_b128 v20, v[16:19]
    L_a_nos1:
    s_lshl_b32 s44, s37, 2
    s_lshl_b32 s46, s36, 1
    s_add_u32 s44, s44, s46
    s_lshl_b32 s44, s44, 6
    s_add_u32 s44, s44, {CS_LDS}
    v_lshl_add_u32 v20, v2, 4, s44
    ds_write_b128 v20, v[232:235]
    ds_write_b128 v20, v[236:239] offset:64
    s_waitcnt lgkmcnt(0)
    s_barrier
    """)
    a.stamp(9)
    a("v_lshlrev_b32 v21, 4, v6")
    for mi in range(5):
        a(f"v_add_u32 v20, s{75+mi}, v21")
        a(f"ds_read_b64 {vr(128+2*mi,2)}, v20")
    for j in range(4):
        a(f"ds_read_b128 {vr(140+4*j,4)}, v{224+j}")
    a("s_waitcnt lgkmcnt(0)")
    for j in range(4):
        if j in (1, 3):
            a(f"s_cmp_eq_u32 s{50 if j == 1 else 51}, 15")
            a(f"s_cbranch_scc1 L_g1_a_skip{j}")
        for mi in range(5):
            P = 128 + 2 * mi
            acc = ACC + 4 * (mi * 4 + j)
            if mi == 4:
                a("s_cmp_eq_u32 s36, 0")
                a(f"s_cbranch_scc0 L_g1_a_skip{j}")
            for h in (0, 2):
                a(f"v_pk_fma_f32 {vr(acc+h,2)}, {vr(140+4*j+h,2)}, {vr(P,2)}, {vr(acc+h,2)} op_sel_hi:[1,0,1] neg_lo:[0,1,0] neg_hi:[0,1,0]")
            for h in (0, 2):
                a(f"v_pk_mul_f32 {vr(acc+h,2)}, {vr(acc+h,2)}, {vr(P,2)} op_sel:[0,1] op_sel_hi:[1,1]")
            a(f"v_cvt_pk_bf16_f32 v{acc}, v{acc}, v{acc+1}")
            a(f"v_cvt_pk_bf16_f32 v{acc+1}, v{acc+2}, v{acc+3}")
            a(f"v_add_u32 v{acc+2}, s{70+mi}, v{200+j}")
            a(f"ds_write_b64 v{acc+2}, {vr(acc,2)}")
        a.label(f"L_g1_a_skip{j}")
    a("s_waitcnt lgkmcnt(0)")
    a("s_barrier")
    a.stamp(10)
    KF, VT0, VT1, QF, SS, PP, OO = 32, 52, 62, 72, 88, 120, 136
    for qb in range(4):
        a(f"ds_read_b64 {vr(QF+4*qb,2)}, v204 offset:{qb*T32}")
        a(f"ds_read_b64 {vr(QF+4*qb+2,2)}, v204 offset:{qb*T32+8}")
    a(f"ds_read_b64 {vr(KF,2)}, v205 offset:160")
    a(f"ds_read_b64 {vr(KF+2,2)}, v205 offset:168")
    for t in range(4):
        a(f"ds_read_b64 {vr(KF+4+4*t,2)}, v204 offset:{t*T32+160}")
        a(f"ds_read_b64 {vr(KF+4+4*t+2,2)}, v204 offset:{t*T32+168}")
    a(f"ds_read_b64_tr_b16 {vr(VT0,2)}, v207 offset:320")
    a(f"ds_read_b64_tr_b16 {vr(VT1,2)}, v207 offset:352")
    for t in range(4):
        a(f"ds_read_b64_tr_b16 {vr(VT0+2+2*t,2)}, v206 offset:{t*T32+320}")
        a(f"ds_read_b64_tr_b16 {vr(VT1+2+2*t,2)}, v206 offset:{t*T32+352}")
    a("s_cmp_eq_u32 s33, 0")
    for r in range(4):
        a(f"s_cselect_b64 s[{60+2*r}:{61+2*r}], 0, s[{80+2*r}:{81+2*r}]")
    a("""
    s_mov_b32 s18, 0x3ea52b5c
    s_mov_b32 s19, 0x3ea52b5c
    v_mov_b32 v29, 0xff800000
    s_waitcnt lgkmcnt(10)
    """)
    a.stamp(11)
    for qb in range(4):
        q = QF + 4 * qb
        a(f"v_cndmask_b32 v{q}, 0, v{q}, s[38:39]")
        a(f"v_cndmask_b32 v{q+1}, 0, v{q+1}, s[38:39]")
        a(f"v_cndmask_b32 v{q+2}, 0, v{q+2}, s[96:97]")
        a(f"v_cndmask_b32 v{q+3}, 0, v{q+3}, s[96:97]")
    a("s_nop 1")
    for qb in range(4):
        a(f"v_mfma_f32_16x16x32_bf16 {vr(SS+8*qb,4)}, {vr(KF+4*qb,4)}, {vr(QF+4*qb,4)}, 0")
        a(f"v_mfma_f32_16x16x32_bf16 {vr(SS+8*qb+4,4)}, {vr(KF+4*qb+4,4)}, {vr(QF+4*qb,4)}, 0")
    a("s_nop 7")
    for qb in range(4):
        S = SS + 8 * qb
        mb = 60 if qb == 0 else 80
        for r in range(4):
            a(f"v_cndmask_b32 v{S+r}, v29, v{S+r}, s[{mb+2*r}:{mb+1+2*r}]")
            a(f"v_cndmask_b32 v{S+4+r}, v29, v{S+4+r}, s[{88+2*r}:{89+2*r}]")
        mx, t = 24 + (qb & 1) * 2, 25 + (qb & 1) * 2
        a(f"v_max3_f32 v{mx}, v{S}, v{S+1}, v{S+2}")
        a(f"v_max3_f32 v{mx}, v{mx}, v{S+3}, v{S+4}")
        a(f"v_max3_f32 v{mx}, v{mx}, v{S+5}, v{S+6}")
        a(f"v_max_f32 v{mx}, v{mx}, v{S+7}")
        a(f"v_mov_b32 v{t}, v{mx}")
        a("s_nop 1")
        a(f"v_permlane32_swap_b32 v{mx}, v{t}")
        a("s_nop 1")
        a(f"v_max_f32 v{mx}, v{mx}, v{t}")
        a(f"v_mov_b32 v{t}, v{mx}")
        a("s_nop 1")
        a(f"v_permlane16_swap_b32 v{mx}, v{t}")
        a("s_nop 1")
        a(f"v_max_f32 v{mx}, v{mx}, v{t}")
        a(f"v_mul_f32 v{mx}, s18, v{mx}")
        for h in range(0, 8, 2):
            a(f"v_pk_fma_f32 {vr(S+h,2)}, {vr(S+h,2)}, s[18:19], {vr(mx,2)} op_sel_hi:[1,1,0] neg_lo:[0,0,1] neg_hi:[0,0,1]")
        for e in range(8):
            a(f"v_exp_f32 v{S+e}, v{S+e}")
        a("s_nop 0")
        a(f"v_pk_add_f32 {vr(mx,2)}, {vr(S,2)}, {vr(S+2,2)}")
        a(f"v_pk_add_f32 {vr(30,2)}, {vr(S+4,2)}, {vr(S+6,2)}")
        a(f"v_pk_add_f32 {vr(mx,2)}, {vr(mx,2)}, {vr(30,2)}")
        a(f"v_add_f32 v{mx}, v{mx}, v{t}")
        red_g(a, mx, t)
        a(f"v_rcp_f32 v{mx}, v{mx}")
        a("s_nop 0")
        for h in range(0, 8, 2):
            a(f"v_pk_mul_f32 {vr(S+h,2)}, {vr(S+h,2)}, {vr(mx,2)} op_sel_hi:[1,0]")
        for h in range(4):
            a(f"v_cvt_pk_bf16_f32 v{PP+4*qb+h}, v{S+2*h}, v{S+2*h+1}")
    a.stamp(12)
    a("s_waitcnt lgkmcnt(0)")
    a("s_nop 1")
    for qb in range(4):
        a(f"v_mfma_f32_16x16x32_bf16 {vr(OO+8*qb,4)}, {vr(VT0+2*qb,4)}, {vr(PP+4*qb,4)}, 0")
        a(f"v_mfma_f32_16x16x32_bf16 {vr(OO+8*qb+4,4)}, {vr(VT1+2*qb,4)}, {vr(PP+4*qb,4)}, 0")
    a("s_nop 7")
    for qb in range(4):
        O = OO + 8 * qb
        a(f"v_cvt_pk_bf16_f32 v{O}, v{O}, v{O+1}")
        a(f"v_cvt_pk_bf16_f32 v{O+1}, v{O+2}, v{O+3}")
        a(f"v_cvt_pk_bf16_f32 v{O+4}, v{O+4}, v{O+5}")
        a(f"v_cvt_pk_bf16_f32 v{O+5}, v{O+6}, v{O+7}")
        a(f"s_mov_b32 s44, {A2_OFF + qb*2*A2_MT}")
        a(f"buffer_store_dwordx2 {vr(O,2)}, v218, s[12:15], s44 offen{ST_FLAGS}")
    a("s_mov_b64 exec, 0xffff")
    for qb in range(4):
        O = OO + 8 * qb
        a(f"s_mov_b32 s44, {A2_OFF + qb*2*A2_MT}")
        a(f"buffer_store_dwordx2 {vr(O+4,2)}, v219, s[12:15], s44 offen{ST_FLAGS}")
    a("s_mov_b64 exec, -1")
    a.stamp(8, True)
    a.stamp_flush(12, 1, 32)
    a.label("L_g1_done")
    a("s_endpgm")
    for blk in a.ool:
        a(blk)
    a.ool = []
    if AFIRST:
        a.lines.extend(g_lines)


def gen_k2(a):
    a.raw(".p2align 8")
    a.label("g2_kernel")
    a.kidx = 2
    a.vm = []
    a("""
    s_cmp_ge_u32 s2, 256
    s_cbranch_scc1 L_g2_done
    """)
    a.stamp(0)
    a("""
    s_load_dwordx2 s[4:5], s[0:1], 0
    s_load_dwordx2 s[10:11], s[0:1], 56
    s_load_dwordx2 s[28:29], s[0:1], 72
    v_lshrrev_b32 v1, 6, v0
    v_and_b32 v0, 63, v0
    s_nop 0
    v_readfirstlane_b32 s32, v1
    s_and_b32 s33, s2, 7
    s_lshr_b32 s3, s2, 3
    s_and_b32 s34, s3, 7
    s_lshr_b32 s3, s3, 3
    s_lshl_b32 s33, s33, 2
    s_add_u32 s33, s33, s3
    v_lshrrev_b32 v2, 4, v0
    v_lshlrev_b32 v5, 4, v0
    """)
    a(f"""
    s_mul_i32 s40, s32, 10
    s_lshl_b32 s41, s32, 3
    s_add_u32 s41, s41, 4
    s_cmp_lt_u32 s32, 2
    s_cselect_b32 s40, s40, s41
    s_lshl_b32 s47, s40, 10
    s_mul_i32 s48, s34, 68
    s_add_u32 s48, s48, s40
    s_mul_i32 s48, s48, 5120
    s_add_u32 s48, s48, {B2_OFF}
    s_mul_i32 s42, s32, 20480
    s_mul_i32 s45, s34, 160
    """)
    for mi in range(4):
        a(f"s_lshl_b32 s44, s33, 2")
        a(f"s_add_u32 s44, s44, {mi}")
        a(f"s_mul_i32 s44, s44, {A2_MT}")
        if A2_OFF:
            a(f"s_add_u32 s44, s44, {A2_OFF}")
        a(f"v_add_u32 v{10+mi}, s44, v5")
    a("v_add_u32 v14, 4096, v5")
    a("s_waitcnt lgkmcnt(0)")
    srd(a, 12, 28, WS_BYTES)
    srd(a, 20, 4, 2048 * 1280)
    srd(a, 24, 10, 2048 * 1280)
    ACC = 32
    ST = 112

    def issue(st):
        b = ST + 36 * (st & 3)
        for mi in range(4):
            a.vmem(f"buffer_load_dwordx4 {vr(b+4*mi,4)}, v{10+mi}, s[12:15], s47 offen", ("st", st))
        for j in range(4):
            a.vmem(f"buffer_load_dwordx4 {vr(b+16+4*j,4)}, v5, s[12:15], s48 offen offset:{1024*j}", ("st", st))
        a.vmem(f"buffer_load_dwordx4 {vr(b+32,4)}, v14, s[12:15], s48 offen", ("st", st))
        a("s_add_u32 s47, s47, 1024")
        a("s_add_u32 s48, s48, 5120")

    def body(n):
        a.vm = []
        a.stamp(1)
        for st in range(4):
            issue(st)
        a.stamp(2)
        for s in range(n):
            b = ST + 36 * (s & 3)
            a.wait_vm(("st", s))
            if s in (0, 3, 7):
                a.stamp({0: 3, 3: 4, 7: 5}[s])
            for j in range(5):
                for mi in range(4):
                    acc = ACC + 4 * (mi * 5 + j)
                    c = "0" if s == 0 else vr(acc, 4)
                    a(f"v_mfma_f32_16x16x32_bf16 {vr(acc,4)}, {vr(b+16+4*j,4)}, {vr(b+4*mi,4)}, {c}")
            if s + 4 < n:
                issue(s + 4)

    a("s_cmp_lt_u32 s32, 2")
    a("s_cbranch_scc0 L_g2_h")
    body(10)
    a("s_branch L_g2_red")
    a.label("L_g2_h")
    body(8)
    a.label("L_g2_red")
    a.stamp(6)
    for r in range(3):
        a(f"s_add_u32 s40, s32, {8*r}")
        a("s_min_u32 s40, s40, 19")
        a("s_mul_i32 s41, s40, 52")
        a("s_lshr_b32 s41, s41, 8")
        a("s_mul_i32 s43, s41, 5")
        a("s_sub_u32 s43, s40, s43")
        a(f"""
        s_lshl_b32 s44, s33, 6
        s_lshl_b32 s41, s41, 4
        s_add_u32 s44, s44, s41
        v_and_b32 v21, 15, v0
        v_add_u32 v21, s44, v21
        v_mul_u32_u24 v21, 1280, v21
        v_lshl_add_u32 v21, v2, 3, v21
        s_lshl_b32 s43, s43, 5
        s_add_u32 s43, s43, s45
        v_add_u32 v{112+r}, s43, v21
        buffer_load_dwordx2 {vr(116+2*r,2)}, v{112+r}, s[20:23], 0 offen
        """)
    a("v_add_u32 v20, s42, v5")
    for st in range(20):
        a(f"ds_write_b128 v20, {vr(ACC+4*st,4)} offset:{st*1024}")
    a("s_waitcnt lgkmcnt(0)")
    a("s_barrier")
    a.stamp(7, True)
    a.stamp_flush(12, 2, 32)
    a("s_mov_b32 s16, 0xffff0000")
    a("s_lshl_b32 s40, s32, 10")
    a("v_add_u32 v20, s40, v5")
    a("v_add_u32 v21, 40960, v20")
    a("v_add_u32 v22, 81920, v20")
    a("v_add_u32 v23, 122880, v20")
    for r in range(3):
        if r == 2:
            a("s_cmp_ge_u32 s32, 4")
            a("s_cbranch_scc1 L_g2_r2skip")
        for w in range(8):
            base = 128 + 32 * r + 4 * w
            a(f"ds_read_b128 {vr(base,4)}, v{20+(w>>1)} offset:{(w&1)*20480 + r*8192}")
    a.label("L_g2_r2skip")
    a("s_waitcnt vmcnt(0) lgkmcnt(0)")
    for r in range(3):
        if r == 2:
            a("s_cmp_ge_u32 s32, 4")
            a("s_cbranch_scc1 L_g2_done")
        B = 128 + 32 * r
        X = 116 + 2 * r
        for h in (0, 2):
            a(f"v_pk_add_f32 {vr(B+h,2)}, {vr(B+h,2)}, {vr(B+4+h,2)}")
            a(f"v_pk_add_f32 {vr(B+8+h,2)}, {vr(B+8+h,2)}, {vr(B+12+h,2)}")
            a(f"v_pk_add_f32 {vr(B+16+h,2)}, {vr(B+16+h,2)}, {vr(B+20+h,2)}")
            a(f"v_pk_add_f32 {vr(B+24+h,2)}, {vr(B+24+h,2)}, {vr(B+28+h,2)}")
            a(f"v_pk_add_f32 {vr(B+8+h,2)}, {vr(B+8+h,2)}, {vr(B+16+h,2)}")
            a(f"v_pk_add_f32 {vr(B+8+h,2)}, {vr(B+8+h,2)}, {vr(B+24+h,2)}")
        for p in range(2):
            a0, a1, b0, b1 = B + 2 * p, B + 1 + 2 * p, B + 8 + 2 * p, B + 9 + 2 * p
            a(f"v_cvt_pk_bf16_f32 v25, v{a0}, v{a1}")
            a(f"v_cvt_pk_bf16_f32 v26, v{b0}, v{b1}")
            a(f"v_lshlrev_b32 v{a0}, 16, v25")
            a(f"v_and_b32 v{a1}, s16, v25")
            a(f"v_lshlrev_b32 v{b0}, 16, v26")
            a(f"v_and_b32 v{b1}, s16, v26")
            a(f"v_lshlrev_b32 v26, 16, v{X+p}")
            a(f"v_and_b32 v27, s16, v{X+p}")
            a(f"v_pk_add_f32 {vr(a0,2)}, {vr(a0,2)}, v[26:27]")
            a(f"v_cvt_pk_bf16_f32 v25, v{a0}, v{a1}")
            a(f"v_lshlrev_b32 v{a0}, 16, v25")
            a(f"v_and_b32 v{a1}, s16, v25")
            a(f"v_pk_add_f32 {vr(a0,2)}, {vr(a0,2)}, {vr(b0,2)}")
            a(f"v_cvt_pk_bf16_f32 v{B+16+p}, v{a0}, v{a1}")
        a(f"buffer_store_dwordx2 {vr(B+16,2)}, v{112+r}, s[24:27], 0 offen")
    a.label("L_g2_done")
    a("s_endpgm")


def kd(name, vgpr, sgpr=102):
    acc = (vgpr + 3) // 4 * 4
    return f""".p2align 6
.amdhsa_kernel {name}
  .amdhsa_next_free_vgpr {vgpr}
  .amdhsa_next_free_sgpr {sgpr}
  .amdhsa_accum_offset {acc}
  .amdhsa_group_segment_fixed_size 0
  .amdhsa_kernarg_size 80
  .amdhsa_user_sgpr_count 2
  .amdhsa_user_sgpr_kernarg_segment_ptr 1
  .amdhsa_system_sgpr_workgroup_id_x 1
.end_amdhsa_kernel
"""


def main(outpath):
    a = Asm()
    a.raw("; @launch kernel=g1_kernel grid=(256,1,1) block=(512,1,1) lds=163840")
    a.raw("; @launch kernel=g2_kernel grid=(256,1,1) block=(512,1,1) lds=163840")
    a.raw('.amdgcn_target "amdgcn-amd-amdhsa--gfx950"')
    a.raw(".text")
    for k in ("g1_kernel", "g2_kernel"):
        a.raw(f".globl {k}")
        a.raw(f".type {k},@function")
    gen_k1(a)
    gen_k2(a)
    a.label("L_code_end")
    a.raw('.section .rodata,"a"')
    a.raw(kd("g1_kernel", 256))
    a.raw(kd("g2_kernel", 256))
    open(outpath, "w").write(a.text())


if __name__ == "__main__":
    if len(sys.argv) > 2 and sys.argv[2] == "stamp":
        STAMP = True
    main(sys.argv[1] if len(sys.argv) > 1 else f"cdna_kernels/{NAME}.s")
```
